```python
import torch

def _softmax(x, axis=-1):
    return torch.softmax(x, dim=axis)

def _gelu(x):
    return torch.nn.functional.gelu(x, approximate='tanh')

def _silu(x):
    return torch.nn.functional.silu(x)

def _sigmoid(x):
    return torch.sigmoid(x)

def _layernorm(x, axis=-1, eps=1e-05):
    m = x.mean(dim=axis, keepdim=True)
    v = x.var(dim=axis, keepdim=True, unbiased=False)
    return (x - m) / torch.sqrt(v + eps)

def _scatter_add(tgt, idx, src, axis=0):
    return tgt.clone().index_add_(axis, idx, src)

def _segment_sum(src, seg, n):
    out = torch.zeros((n,) + src.shape[1:], dtype=src.dtype)
    return out.index_add_(0, seg, src)

def _pad(x, pw):
    flat = tuple((v for pair in reversed(pw) for v in pair))
    return torch.nn.functional.pad(x, flat)
kernel_name = 'sequential_preLN__memory_aug_recurrent_mem_tr__swiglu_ffn__prompt'

def setup_inputs():

    _w = lambda a: (lambda t: t.to(torch.bfloat16) if t.is_floating_point() else t)(torch.as_tensor(a))

    def _A_setup():
        B, S, Dm = (1, 2048, 448)
        H, Dh = (16, 256)
        M, seg = (8, 32)
        seg = min(seg, S)
        S = S // seg * seg
        return {'x': _w((lambda *s: torch.randn(*s, dtype=torch.bfloat16) * 0.05)(B, S, Dm)), 'mem0': _w((lambda *s: torch.randn(*s, dtype=torch.bfloat16) * 0.2)(B, M, Dm)), 'Wq': _w((lambda *s: torch.randn(*s, dtype=torch.bfloat16) * 1.6)(Dm, H, Dh) * Dm ** (-0.5)), 'Wk': _w((lambda *s: torch.randn(*s, dtype=torch.bfloat16) * 1.6)(Dm, H, Dh) * Dm ** (-0.5)), 'Wv': _w((lambda *s: torch.randn(*s, dtype=torch.bfloat16) * 0.2)(Dm, H, Dh) * Dm ** (-0.5)), 'Wo': _w((lambda *s: torch.randn(*s, dtype=torch.bfloat16) * 0.2)(H, Dh, Dm) * (H * Dh) ** (-0.5)), 'seg_len': seg}
    _A_in = _A_setup()

    def _B_setup():
        B, S, D, F = (1, 2048, 448, 1792)
        return {'x': _w((lambda *s: torch.randn(*s, dtype=torch.bfloat16) * 0.05)(B, S, D)), 'w_gate': _w((lambda *s: torch.randn(*s, dtype=torch.bfloat16) * 0.05)(D, F)), 'w_up': _w((lambda *s: torch.randn(*s, dtype=torch.bfloat16) * 0.05)(D, F)), 'w_down': _w((lambda *s: torch.randn(*s, dtype=torch.bfloat16) * 0.05)(F, D))}
    _B_in = _B_setup()
    return {'A_x': _A_in['x'], 'A_mem0': _A_in['mem0'], 'A_Wq': _A_in['Wq'], 'A_Wk': _A_in['Wk'], 'A_Wv': _A_in['Wv'], 'A_Wo': _A_in['Wo'], 'A_seg_len': _A_in['seg_len'], 'B_x': _B_in['x'], 'B_w_gate': _B_in['w_gate'], 'B_w_up': _B_in['w_up'], 'B_w_down': _B_in['w_down']}

def reference(A_x, A_mem0, A_Wq, A_Wk, A_Wv, A_Wo, A_seg_len, B_x, B_w_gate, B_w_up, B_w_down):

    def _A_ref(x, mem0, Wq, Wk, Wv, Wo, seg_len):
        B, S, Dm = x.shape
        H, Dh = (Wq.shape[1], Wq.shape[2])
        M = mem0.shape[1]
        scale = Dh ** (-0.5)
        n_seg = S // seg_len
        L = M + seg_len
        idx = torch.arange(L)
        mask = (idx[:, None] < M) | (idx[:, None] >= idx[None, :])
        mem = mem0
        outs = []
        for s in range(n_seg):
            xs = x[:, s * seg_len:(s + 1) * seg_len, :].clone()
            h = torch.concatenate([mem, xs], axis=1)
            q = torch.einsum('btd,dhe->bhte', h, Wq)
            k = torch.einsum('btd,dhe->bhte', h, Wk)
            v = torch.einsum('btd,dhe->bhte', h, Wv)
            scores = torch.einsum('bhqe,bhke->bhqk', q, k) * scale
            scores = torch.where(mask[None, None], scores, -1000000000.0)
            p = _softmax(scores, axis=-1)
            o = torch.einsum('bhqk,bhke->bhqe', p, v)
            o = torch.einsum('bhte,hed->btd', o, Wo)
            mem = o[:, :M, :].clone()
            outs.append(o[:, M:, :])
        return torch.concatenate(outs, axis=1)

    def _B_ref(x, w_gate, w_up, w_down):
        g = _silu(x @ w_gate)
        u = x @ w_up
        return g * u @ w_down
    x = A_x
    h = x + _A_ref(_layernorm(x, axis=-1), A_mem0, A_Wq, A_Wk, A_Wv, A_Wo, A_seg_len)
    h2 = h + _B_ref(_layernorm(h, axis=-1), B_w_gate, B_w_up, B_w_down)
    return h2
```

```python
import sys
sys.path.insert(0, 'tools'); sys.path.insert(0, 'gen')
from adsl import *
from layout import *

NA, NB = 16, 14
NCHAIN = NA + NB
SPIN_MAX = 100000

S_WS = 4
S_DBG = 8
S_STEP = 12
S_ROLE = 13
S_WAVE = 14
S_J = 15
S_MEMF = 16
S_P = 17
S_NXT = 18
S_W = 19
S_T0 = 20
S_SPIN = 28
S_M0 = 29
S_D0 = 30
S_D1 = 31
S_EXEC = 32
S_TS = 40
NSTAMP = 8
TS_LDS = 147456
WS = f's[{S_WS}:{S_WS+3}]'

class Cfg:
    stamps = False
    warm = True
    wstore = True
    warm_ahead = 2
    nsteps = 63

def stamp(a, cfg, k):
    if cfg.stamps:
        a(f's_memtime s[{S_TS+2*k}:{S_TS+2*k+1}]')
        if k == 0: a(f's_memrealtime s[{S_TS+14}:{S_TS+15}]')

def stamp_flush(a, cfg, vt):
    if not cfg.stamps: return
    a('s_waitcnt lgkmcnt(0)')
    a(f's_lshl_b32 s{S_T0}, s{S_WAVE}, 6')
    a(f's_add_u32 s{S_T0}, s{S_T0}, s{S_STEP}')
    a(f's_lshl_b32 s{S_T0}, s{S_T0}, 5')
    a(f's_add_u32 s{S_T0}, s{S_T0}, {TS_LDS}')
    a(f's_mov_b64 s[{S_EXEC}:{S_EXEC+1}], exec')
    a(f's_mov_b64 exec, 1')
    a(f'v_mov_b32 v{vt}, s{S_T0}')
    for k in range(NSTAMP):
        a(f'v_mov_b32 v{vt+1}, s{S_TS+2*k}')
        a(f'ds_write_b32 v{vt}, v{vt+1} offset:{4*k}')
    a('s_waitcnt lgkmcnt(0)')
    a(f's_mov_b64 exec, s[{S_EXEC}:{S_EXEC+1}]')

def stamp_store(a, cfg, vl16, vt):
    if not cfg.stamps: return
    a('s_waitcnt lgkmcnt(0)')
    a(f's_lshl_b32 s{S_T0}, s{S_WAVE}, 11')
    a(f's_add_u32 s{S_T0+1}, s{S_T0}, {TS_LDS}')
    a(f'v_add_u32 v{vt+4}, s{S_T0+1}, v{vl16}')
    a(f's_lshl_b32 s{S_T0+1}, s{S_ROLE}, 13')
    a(f's_add_u32 s{S_T0}, s{S_T0}, s{S_T0+1}')
    a(f's_add_u32 s{S_T0}, s{S_T0}, {TS_OFF}')
    for i in range(2):
        a(f'ds_read_b128 v[{vt}:{vt+3}], v{vt+4} offset:{i*1024}')
        a('s_waitcnt lgkmcnt(0)')
        a(f'buffer_store_dwordx4 v[{vt}:{vt+3}], v{vl16}, {WS}, s{S_T0} offen offset:{i*1024}')
        a('s_waitcnt vmcnt(0)')

def prologue_common(a, L_exit):
    a(f'''
s_cmp_ge_u32 s2, 256
s_cbranch_scc1 {L_exit}
s_load_dwordx2 s[{S_DBG}:{S_DBG+1}], s[0:1], 96
s_load_dwordx2 s[{S_WS}:{S_WS+1}], s[0:1], 104
s_getreg_b32 s{S_T0}, hwreg(HW_REG_XCC_ID)
s_and_b32 s{S_T0}, s{S_T0}, 15
v_lshrrev_b32 v1, 6, v0
s_nop 0
v_readfirstlane_b32 s{S_WAVE}, v1
s_waitcnt lgkmcnt(0)
s_and_b32 s{S_WS+1}, s{S_WS+1}, 0xffff
s_mov_b32 s{S_WS+2}, {WS_BYTES}
s_mov_b32 s{S_WS+3}, 0x20000
s_and_b32 s{S_DBG+1}, s{S_DBG+1}, 0xffff
s_mov_b32 s{S_DBG+2}, 256
s_mov_b32 s{S_DBG+3}, 0x20000
s_cmp_lg_u32 s{S_WAVE}, 0
s_cbranch_scc1 Lel_wait
s_lshl_b32 s{S_T0+1}, s{S_T0}, 2
v_mov_b32 v2, s{S_T0+1}
v_mov_b32 v3, 1
s_mov_b64 s[{S_EXEC}:{S_EXEC+1}], exec
s_mov_b64 exec, 1
buffer_atomic_add v3, v2, s[{S_DBG}:{S_DBG+3}], 0 offen sc0
s_waitcnt vmcnt(0)
v_readfirstlane_b32 s{S_T0+2}, v3
s_nop 3
s_cmp_ge_u32 s{S_T0+2}, {NCHAIN}
s_cbranch_scc1 Lel_none
s_cmp_lg_u32 s{S_T0+2}, {NCHAIN-1}
s_cbranch_scc1 Lel_poll
s_add_u32 s{S_T0+3}, s{S_T0}, 1
v_mov_b32 v4, s{S_T0+3}
v_mov_b32 v5, 0
v_mov_b32 v2, 32
buffer_atomic_cmpswap v[4:5], v2, s[{S_DBG}:{S_DBG+3}], 0 offen sc0
s_waitcnt vmcnt(0)
Lel_poll:
s_mov_b32 s{S_SPIN}, 0
v_mov_b32 v2, 32
Lel_spin:
buffer_load_dword v3, v2, s[{S_DBG}:{S_DBG+3}], 0 offen sc1
s_waitcnt vmcnt(0)
v_readfirstlane_b32 s{S_T0+3}, v3
s_add_u32 s{S_SPIN}, s{S_SPIN}, 1
s_cmp_gt_u32 s{S_SPIN}, {SPIN_MAX}
s_cbranch_scc1 Lel_none
s_cmp_eq_u32 s{S_T0+3}, 0
s_cbranch_scc1 Lel_spin
s_add_u32 s{S_T0+1}, s{S_T0}, 1
s_cmp_eq_u32 s{S_T0+3}, s{S_T0+1}
s_cbranch_scc1 Lel_pub
Lel_none:
s_mov_b32 s{S_T0+2}, 255
Lel_pub:
v_mov_b32 v3, s{S_T0+2}
v_mov_b32 v2, 0
ds_write_b32 v2, v3
s_waitcnt lgkmcnt(0)
s_mov_b64 exec, s[{S_EXEC}:{S_EXEC+1}]
Lel_wait:
s_barrier
v_mov_b32 v2, 0
ds_read_b32 v3, v2
s_waitcnt lgkmcnt(0)
v_readfirstlane_b32 s{S_ROLE}, v3
s_nop 3
s_barrier
s_cmp_ge_u32 s{S_ROLE}, {NCHAIN}
s_cbranch_scc1 {L_exit}
''')

def wbase(f): return ('a', 8*f) if f < 32 else ('v', 120+8*(f-32))
def wfrag(f):
    t, b = wbase(f); return f'{t}[{b}:{b+7}]'
def wfrag_half(f, rh):
    t, b = wbase(f); b += 4*rh; return f'{t}[{b}:{b+3}]'

def load_weights(a, nfrag, s_base, vl16):
    n = 0
    for f in range(nfrag):
        for rh in range(2):
            off = f*2048 + rh*1024
            if off % 4096 == 0 and off > 0:
                a(f's_add_u32 s{s_base}, s{s_base}, 4096')
            a(f'buffer_load_dwordx4 {wfrag_half(f, rh)}, v{vl16}, {WS}, s{s_base} offen offset:{off % 4096}')
            n += 1
            if n % 32 == 0: a('s_waitcnt vmcnt(16)')
    a('s_waitcnt vmcnt(0)')

def poll_mem(a, vaddr, vdata, lab):
    a(f's_mov_b32 s{S_SPIN}, 0')
    a(f'{lab}:')
    a(f'buffer_load_dwordx4 v[{vdata}:{vdata+3}], v{vaddr}, {WS}, s{S_MEMF} offen sc1')
    a(f'buffer_load_dwordx4 v[{vdata+4}:{vdata+7}], v{vaddr+1}, {WS}, s{S_MEMF} offen sc1')
    a(f's_add_u32 s{S_SPIN}, s{S_SPIN}, 1')
    a(f's_cmp_gt_u32 s{S_SPIN}, {SPIN_MAX}')
    a(f's_cbranch_scc1 {lab}_out')
    a(f's_waitcnt vmcnt(0)')
    t = vdata + 8
    a(f'v_max3_u32 v{t}, v{vdata}, v{vdata+1}, v{vdata+2}')
    a(f'v_max3_u32 v{t+1}, v{vdata+3}, v{vdata+4}, v{vdata+5}')
    a(f'v_max3_u32 v{t}, v{t}, v{vdata+6}, v{vdata+7}')
    a(f'v_max_u32 v{t}, v{t}, v{t+1}')
    a(f'v_cmp_eq_u32 vcc, -1, v{t}')
    a(f's_cbranch_vccnz {lab}')
    a(f'{lab}_out:')
    a(f's_waitcnt vmcnt(0)')

def setup_common(a, R):
    VL, VL16, VIDX, VPA = R.alloc('VL'), R.alloc('VL16'), R.alloc('VIDX'), R.alloc('VPA', 2)
    a(f'v_and_b32 v{VL}, 63, v0')
    a(f'v_lshlrev_b32 v{VL16}, 4, v{VL}')
    a(f'v_and_b32 v{VIDX}, 8, v{VL}')
    a(f'v_cmp_ne_u32 vcc, 0, v{VIDX}')
    a(f'v_mov_b32 v{VIDX}, 0x4444')
    a(f'v_mov_b32 v{VPA}, 0xeeee')
    a(f'v_cndmask_b32 v{VIDX}, v{VIDX}, v{VPA}, vcc')
    a(f's_lshl_b32 s{S_T0}, s{S_WAVE}, 1')
    a(f's_min_u32 s{S_T0+1}, s{S_T0}, 6')
    a(f's_add_u32 s{S_T0}, s{S_T0}, 1')
    a(f's_min_u32 s{S_T0+2}, s{S_T0}, 6')
    a(f's_lshl_b32 s{S_T0+1}, s{S_T0+1}, 10')
    a(f's_lshl_b32 s{S_T0+2}, s{S_T0+2}, 10')
    a(f'v_add_u32 v{VPA}, s{S_T0+1}, v{VL16}')
    a(f'v_add_u32 v{VPA+1}, s{S_T0+2}, v{VL16}')
    return VL, VL16, VIDX, VPA


class LG:
    def __init__(self, a): self.a = a; self.q = []
    def op(self, text, tag=None):
        self.a(text); self.q.append(tag)
    def wait(self, tag):
        idx = max(i for i, t in enumerate(self.q) if t == tag)
        n = len(self.q) - 1 - idx
        self.a(f's_waitcnt lgkmcnt({min(n, 15)})')
        self.q = self.q[idx+1:] if n <= 15 else self.q[len(self.q)-15:]
    def waitall(self):
        self.a('s_waitcnt lgkmcnt(0)'); self.q = []

A_MEML, A_TT, A_SP = 0, 7168, 21504

def emit_A(a, cfg, L_exit):
    R = Regs(0, 120)
    R.next = 1
    a('; ================= A side =================')
    VL, VL16, VIDX, VPA = setup_common(a, R)
    VKM, VKM2, VXG, VXG2 = R.alloc('VKM'), R.alloc('VKM2'), R.alloc('VXG'), R.alloc('VXG2')
    VTW, VTR, VTRB = R.alloc('VTW'), R.alloc('VTR'), R.alloc('VTRB')
    VSPE, VSPF, VSR, VPX = R.alloc('VSPE'), R.alloc('VSPF'), R.alloc('VSR'), R.alloc('VPX')
    IDN = R.alloc('IDN', 2, 2)
    VPM = 0
    MS = R.alloc('MS', 28, 2); KX = R.alloc('KX', 28, 2); KM = R.alloc('KM', 14, 2)
    ACC = R.alloc('ACC', 8, 2); CV = R.alloc('CV', 4, 2); TA = R.alloc('TA', 4, 2); SA = R.alloc('SA', 12, 2)
    assert CV == ACC + 8
    VWA, VSINK = R.alloc('VWA'), R.alloc('VSINK')
    a(f's_mul_i32 s{S_T0}, s{S_ROLE}, 28')
    a(f's_mul_i32 s{S_T0+1}, s{S_WAVE}, 7')
    a(f's_add_u32 s{S_T0}, s{S_T0}, s{S_T0+1}')
    a(f's_mul_i32 s{S_T0}, s{S_T0}, {7*2048}')
    a(f's_add_u32 s{S_T0}, s{S_T0}, {AF_OFF}')
    load_weights(a, 49, S_T0, VL16)
    TJ, TG, TX, TY, CQ, RP = MS, MS+1, MS+2, MS+3, MS+4, MS+5
    a(f'v_and_b32 v{TJ}, 15, v{VL}')
    a(f'v_lshrrev_b32 v{TG}, 4, v{VL}')
    a(f's_mul_i32 s{S_T0}, s{S_WAVE}, {14*128}')
    a(f's_add_u32 s{S_T0}, s{S_T0}, {A_MEML}')
    a(f'v_and_b32 v{TX}, 7, v{TJ}')
    a(f'v_lshlrev_b32 v{TX}, 4, v{TX}')
    a(f'v_lshlrev_b32 v{TY}, 7, v{TG}')
    a(f'v_add3_u32 v{VKM}, v{TX}, v{TY}, s{S_T0}')
    a(f'v_lshrrev_b32 v{TY}, 1, v{TG}')
    a(f'v_lshlrev_b32 v{TY}, 7, v{TY}')
    a(f'v_add3_u32 v{VKM2}, v{TX}, v{TY}, s{S_T0}')
    a(f'v_and_b32 v{TY}, 1, v{TG}')
    a(f'v_lshlrev_b32 v{TY}, 3, v{TY}')
    a(f'v_add_u32 v{VKM2}, v{VKM2}, v{TY}')
    a(f'v_add_u32 v{VKM2}, {12*128}, v{VKM2}')
    a(f's_mul_i32 s{S_T0}, s{S_WAVE}, 7168')
    a(f'v_lshlrev_b32 v{TX}, 4, v{TJ}')
    a(f'v_lshlrev_b32 v{TY}, 9, v{TG}')
    a(f'v_add3_u32 v{VXG}, v{TX}, v{TY}, s{S_T0}')
    a(f'v_lshrrev_b32 v{TY}, 1, v{TG}')
    a(f'v_lshlrev_b32 v{TY}, 9, v{TY}')
    a(f'v_add3_u32 v{VXG2}, v{TX}, v{TY}, s{S_T0}')
    a(f'v_and_b32 v{TY}, 1, v{TG}')
    a(f'v_lshlrev_b32 v{TY}, 3, v{TY}')
    a(f'v_add_u32 v{VXG2}, v{VXG2}, v{TY}')
    a(f'v_add_u32 v{VXG2}, {12*512}, v{VXG2}')
    a(f's_mul_i32 s{S_T0}, s{S_WAVE}, 3584')
    a(f's_add_u32 s{S_T0}, s{S_T0}, {A_TT}')
    a(f'v_lshrrev_b32 v{TX}, 1, v{TG}')
    a(f'v_lshlrev_b32 v{TX}, 5, v{TX}')
    a(f'v_lshl_add_u32 v{TX}, v{TJ}, 3, v{TX}')
    a(f'v_and_b32 v{TX}, 127, v{TX}')
    a(f'v_lshlrev_b32 v{TY}, 7, v{TG}')
    a(f'v_add3_u32 v{VTW}, v{TX}, v{TY}, s{S_T0}')
    a(f'v_and_b32 v{CQ}, 3, v{VL}')
    a(f'v_bfe_u32 v{RP}, v{VL}, 2, 2')
    def traddr(dst, cl_extra):
        a(f'v_and_b32 v{TX}, 1, v{TG}')
        a(f'v_lshlrev_b32 v{TX}, 3, v{TX}')
        a(f'v_add_u32 v{TX}, v{TX}, v{RP}')
        if cl_extra: a(f'v_add_u32 v{TX}, {cl_extra}, v{TX}')
        a(f'v_lshlrev_b32 v{TX}, 3, v{TX}')
        a(f'v_lshrrev_b32 v{TY}, 1, v{CQ}')
        a(f'v_lshl_add_u32 v{TX}, v{TY}, 5, v{TX}')
        a(f'v_and_b32 v{TX}, 127, v{TX}')
        a(f'v_lshl_add_u32 v{TX}, v{CQ}, 7, v{TX}')
        a(f'v_lshrrev_b32 v{TY}, 1, v{TG}')
        a(f'v_lshl_add_u32 v{TX}, v{TY}, 9, v{TX}')
        a(f'v_add_u32 v{dst}, s{S_T0}, v{TX}')
    traddr(VTR, 0); traddr(VTRB, 4)
    a(f'v_lshlrev_b32 v{TX}, 2, v{TG}')
    a(f'v_sub_u32 v{TX}, v{TJ}, v{TX}')
    for half in range(2):
        a(f'v_cmp_eq_u32 vcc, {2*half}, v{TX}')
        a(f'v_mov_b32 v{TY}, 0x3f80')
        a(f'v_mov_b32 v{CQ}, 0')
        a(f'v_cndmask_b32 v{IDN+half}, v{CQ}, v{TY}, vcc')
        a(f'v_cmp_eq_u32 vcc, {2*half+1}, v{TX}')
        a(f'v_mov_b32 v{TY}, 0x3f800000')
        a(f's_nop 0')
        a(f'v_cndmask_b32 v{CQ}, v{CQ}, v{TY}, vcc')
        a(f'v_or_b32 v{IDN+half}, v{IDN+half}, v{CQ}')
    a(f's_mul_i32 s{S_T0}, s{S_WAVE}, 1536')
    a(f's_add_u32 s{S_T0}, s{S_T0}, {A_SP}')
    a(f'v_and_b32 v{TX}, 1, v{TG}')
    a(f'v_mul_u32_u24 v{TX}, {4*192}, v{TX}')
    a(f'v_lshrrev_b32 v{TY}, 5, v{VL}')
    a(f'v_lshlrev_b32 v{CQ}, 6, v{TY}')
    a(f'v_lshl_add_u32 v{CQ}, v{TJ}, 2, v{CQ}')
    a(f'v_add3_u32 v{VSPE}, v{TX}, v{CQ}, s{S_T0}')
    a(f'v_mul_u32_u24 v{TY}, 192, v{TY}')
    a(f'v_lshl_add_u32 v{TY}, v{TJ}, 2, v{TY}')
    a(f'v_add3_u32 v{VSPF}, v{TX}, v{TY}, s{S_T0}')
    a(f'v_add_u32 v{VSPF}, 128, v{VSPF}')
    a(f'v_lshrrev_b32 v{TX}, 3, v{VL}')
    a(f'v_and_b32 v{TY}, 7, v{VL}')
    a(f'v_mul_u32_u24 v{CQ}, 192, v{TX}')
    a(f'v_lshl_add_u32 v{VSR}, v{TY}, 4, v{CQ}')
    a(f'v_add_u32 v{VSR}, {A_SP}, v{VSR}')
    a(f'v_lshrrev_b32 v{CQ}, 1, v{TY}')
    a(f'v_lshlrev_b32 v{RP}, 7, v{CQ}')
    a(f'v_lshl_add_u32 v{RP}, v{TX}, 4, v{RP}')
    a(f'v_and_b32 v{TJ}, 1, v{TY}')
    a(f'v_lshl_add_u32 v{RP}, v{TJ}, 3, v{RP}')
    a(f's_lshl_b32 s{S_T0}, s{S_ROLE}, 9')
    a(f'v_add_u32 v{VPX}, s{S_T0}, v{RP}')
    a(f'v_lshlrev_b32 v{RP}, 2, v{CQ}')
    a(f'v_lshl_add_u32 v{RP}, v{TX}, 4, v{RP}')
    a(f's_lshl_b32 s{S_T0}, s{S_ROLE}, 7')
    a(f's_add_u32 s{S_T0}, s{S_T0}, 8192')
    a(f'v_add_u32 v{VPM}, s{S_T0}, v{RP}')
    a(f'v_mul_u32_u24 v{CQ}, 192, v{TX}')
    a(f'v_lshl_add_u32 v{VL}, v{TY}, 2, v{CQ}')
    a(f'v_add_u32 v{VL}, {A_SP+128}, v{VL}')
    VSM = VL
    a(f's_mov_b32 s{S_STEP}, 0')
    a(f's_mov_b32 s{S_MEMF}, {MEMF_OFF}')
    a(f's_mov_b32 s{S_P}, {P_OFF}')
    a(f's_mov_b32 s{S_NXT}, {XNP_OFF}')
    a(f'v_lshlrev_b32 v{VWA}, 2, v{VL16}')
    a(f's_lshl_b32 s{S_T0}, s{S_ROLE}, 2')
    a(f's_add_u32 s{S_T0}, s{S_T0}, s{S_WAVE}')
    a(f's_mul_i32 s{S_T0}, s{S_T0}, 7168')
    a(f's_add_u32 s{S_W}, s{S_T0}, {UF_OFF + cfg.warm_ahead*UF_STEP}')
    def warm(i):
        if cfg.warm:
            if i == 0:
                a(f'buffer_load_dword v{VSINK}, v{VWA}, {WS}, s{S_W} offen')
            else:
                a(f's_add_u32 s{S_T0}, s{S_W}, 4096')
                a(f'buffer_load_dword v{VSINK}, v{VWA}, {WS}, s{S_T0} offen')
                a(f's_add_u32 s{S_W}, s{S_W}, {UF_STEP}')
    def kx_load():
        a(f's_add_u32 s{S_T0}, s{S_NXT}, 4096')
        for T in range(2):
            for sg in range(3):
                off = sg*2048 + T*256
                so = S_NXT if off < 4096 else S_T0
                a(f'buffer_load_dwordx4 v[{KX+14*T+4*sg}:{KX+14*T+4*sg+3}], v{VXG}, {WS}, s{so} offen offset:{off % 4096}')
            a(f'buffer_load_dwordx2 v[{KX+14*T+12}:{KX+14*T+13}], v{VXG2}, {WS}, s{S_NXT} offen offset:{T*256}')
        a(f's_add_u32 s{S_NXT}, s{S_NXT}, {XNP_STEP}')
    kx_load()
    a('LA_loop:')
    stamp(a, cfg, 0)
    poll_mem(a, VPA, ACC, 'LA_poll')
    stamp(a, cfg, 1)
    a(f'ds_write_b128 v{VPA}, v[{ACC}:{ACC+3}] offset:{A_MEML}')
    a(f'ds_write_b128 v{VPA+1}, v[{ACC+4}:{ACC+7}] offset:{A_MEML}')
    a('s_waitcnt lgkmcnt(0)')
    a('s_barrier')
    lg = LG(a)
    for kk in range(7):
        lg.op(f'ds_read_b128 v[{MS+4*kk}:{MS+4*kk+3}], v{VL16} offset:{A_MEML+kk*1024}', f'ms{kk}')
    for r in range(0, 8, 2): a(f'v_mov_b64 v[{ACC+r}:{ACC+r+1}], 0')
    stamp(a, cfg, 2)
    def acc(tt): return ACC + 4*(tt & 1)
    keys = [KM, KX, KX+14]
    def s_mfma1(sg, T):
        ta = TA if sg < 3 else CV+2
        c = '0' if sg == 0 else f'v[{SA+4*T}:{SA+4*T+3}]'
        if sg < 3:
            a(f'v_mfma_f32_16x16x32_bf16 v[{SA+4*T}:{SA+4*T+3}], v[{ta}:{ta+3}], v[{keys[T]+4*sg}:{keys[T]+4*sg+3}], {c}')
        else:
            a(f'v_mfma_f32_16x16x16_bf16 v[{SA+4*T}:{SA+4*T+3}], v[{ta}:{ta+1}], v[{keys[T]+12}:{keys[T]+13}], {c}')
    F = {}
    def add(tt, kk, fn): F.setdefault((tt, kk), []).append(fn)
    for sg in range(3):
        add(0, 2+sg, (lambda sg=sg: lg.op(f'ds_read_b128 v[{KM+4*sg}:{KM+4*sg+3}], v{VKM} offset:{sg*512}', 'km')))
    add(0, 5, lambda: lg.op(f'ds_read_b64 v[{KM+12}:{KM+13}], v{VKM2}', 'km'))
    add(1, 0, lambda: warm(0))
    add(1, 5, lambda: warm(1))
    for tt in range(1, 7):
        p = tt - 1; cv = CV + 2*(p & 1)
        add(tt, 2, (lambda p=p, cv=cv: a(f'v_cvt_pk_bf16_f32 v{cv}, v{acc(p)}, v{acc(p)+1}')))
        add(tt, 2, (lambda p=p, cv=cv: a(f'v_cvt_pk_bf16_f32 v{cv+1}, v{acc(p)+2}, v{acc(p)+3}')))
        add(tt, 3, (lambda p=p, cv=cv: lg.op(f'ds_write_b64 v{VTW}, v[{cv}:{cv+1}] offset:{p*512}', 'tw')))
        if tt < 6:
            add(tt, 3, (lambda p=p: a(f'v_mov_b64 v[{acc(p)}:{acc(p)+1}], 0')))
            add(tt, 4, (lambda p=p: a(f'v_mov_b64 v[{acc(p)+2}:{acc(p)+3}], 0')))
        if tt in (2, 4, 6):
            sg = tt//2 - 1; ta = TA
            add(tt, 4, (lambda sg=sg, ta=ta: lg.op(f'ds_read_b64_tr_b16 v[{ta}:{ta+1}], v{VTR} offset:{sg*1024}', f'tr{sg}')))
            add(tt, 5, (lambda sg=sg, ta=ta: lg.op(f'ds_read_b64_tr_b16 v[{ta+2}:{ta+3}], v{VTRB} offset:{sg*1024}', f'tr{sg}')))
        if tt in (3, 5):
            sg = tt//2 - 1
            add(tt, 4, (lambda sg=sg: (lg.wait(f'tr{sg}'), s_mfma1(sg, 0))))
            add(tt, 5, (lambda sg=sg: s_mfma1(sg, 1)))
            add(tt, 6, (lambda sg=sg: s_mfma1(sg, 2)))
    for tt in range(7):
        for kk in range(7):
            if tt == 0: lg.wait(f'ms{kk}')
            a(f'v_smfmac_f32_16x16x64_bf16 v[{acc(tt)}:{acc(tt)+3}], v[{MS+4*kk}:{MS+4*kk+3}], {wfrag(tt*7+kk)}, v{VIDX}')
            for fn in F.get((tt, kk), []): fn()
    stamp(a, cfg, 3)
    a('s_nop 7')
    a(f'v_cvt_pk_bf16_f32 v{CV}, v{acc(6)}, v{acc(6)+1}')
    a(f'v_cvt_pk_bf16_f32 v{CV+1}, v{acc(6)+2}, v{acc(6)+3}')
    a('s_nop 1')
    a(f'v_mfma_f32_16x16x16_bf16 v[{ACC+4}:{ACC+7}], v[{CV}:{CV+1}], v[{IDN}:{IDN+1}], 0')
    lg.wait('tr2')
    for T in range(3): s_mfma1(2, T)
    a(f'v_cvt_pk_bf16_f32 v{CV+2}, v{ACC+4}, v{ACC+5}')
    a(f'v_cvt_pk_bf16_f32 v{CV+3}, v{ACC+6}, v{ACC+7}')
    a('s_nop 1')
    for T in range(3): s_mfma1(3, T)
    a('s_nop 5')
    a(f'v_permlane32_swap_b32 v{SA}, v{SA+1}')
    a(f'v_permlane32_swap_b32 v{SA+2}, v{SA+3}')
    a(f'v_add_f32 v{SA}, v{SA}, v{SA+1}')
    a(f'v_add_f32 v{SA+2}, v{SA+2}, v{SA+3}')
    lg.op(f'ds_write_b32 v{VSPF}, v{SA}')
    lg.op(f'ds_write_b32 v{VSPF}, v{SA+2} offset:{2*192}')
    for r in range(4):
        a(f'v_permlane32_swap_b32 v{SA+4+r}, v{SA+8+r}')
    for r in range(4):
        a(f'v_add_f32 v{SA+4+r}, v{SA+4+r}, v{SA+8+r}')
        lg.op(f'ds_write_b32 v{VSPE}, v{SA+4+r} offset:{r*192}')
    lg.waitall()
    a('s_barrier')
    stamp(a, cfg, 4)
    a(f's_cmp_lg_u32 s{S_WAVE}, 0')
    a('s_cbranch_scc1 LA_next')
    X = MS; Mv = MS + 16; T0, T1 = MS + 20, MS + 21
    for w in range(4):
        a(f'ds_read_b128 v[{X+4*w}:{X+4*w+3}], v{VSR} offset:{w*1536}')
        a(f'ds_read_b32 v{Mv+w}, v{VSM} offset:{w*1536}')
    a('s_waitcnt lgkmcnt(4)')
    for r in range(4): a(f'v_add_f32 v{X+r}, v{X+r}, v{X+4+r}')
    a(f'v_add_f32 v{Mv}, v{Mv}, v{Mv+1}')
    a('s_waitcnt lgkmcnt(0)')
    for r in range(4): a(f'v_add_f32 v{X+8+r}, v{X+8+r}, v{X+12+r}')
    a(f'v_add_f32 v{Mv+2}, v{Mv+2}, v{Mv+3}')
    for r in range(4): a(f'v_add_f32 v{X+r}, v{X+r}, v{X+8+r}')
    a(f'v_add_f32 v{Mv}, v{Mv}, v{Mv+2}')
    a(f'v_max3_f32 v{T0}, v{X}, v{X+1}, v{X+2}')
    a(f'v_max3_f32 v{T0}, v{T0}, v{X+3}, v{Mv}')
    for ctl in ('quad_perm:[1,0,3,2]', 'quad_perm:[2,3,0,1]', 'row_half_mirror'):
        a('s_nop 1')
        a(f'v_max_f32_dpp v{T0}, v{T0}, v{T0} {ctl} row_mask:0xf bank_mask:0xf')
    for r in range(4): a(f'v_sub_f32 v{X+r}, v{X+r}, v{T0}')
    a(f'v_sub_f32 v{Mv}, v{Mv}, v{T0}')
    for r in range(4): a(f'v_exp_f32 v{X+r}, v{X+r}')
    a(f'v_exp_f32 v{Mv}, v{Mv}')
    a(f'v_add_f32 v{T0}, v{X}, v{X+1}')
    a(f'v_add_f32 v{T1}, v{X+2}, v{X+3}')
    a(f'v_add_f32 v{T0}, v{T0}, v{Mv}')
    a(f'v_add_f32 v{T0}, v{T0}, v{T1}')
    for ctl in ('quad_perm:[1,0,3,2]', 'quad_perm:[2,3,0,1]', 'row_half_mirror'):
        a('s_nop 1')
        a(f'v_add_f32_dpp v{T0}, v{T0}, v{T0} {ctl} row_mask:0xf bank_mask:0xf')
    a(f'v_rcp_f32 v{T0}, v{T0}')
    a('s_nop 0')
    for r in range(4): a(f'v_mul_f32 v{X+r}, v{X+r}, v{T0}')
    a(f'v_mul_f32 v{Mv}, v{Mv}, v{T0}')
    a(f'v_cvt_pk_bf16_f32 v{X+4}, v{X}, v{X+1}')
    a(f'v_cvt_pk_bf16_f32 v{X+5}, v{X+2}, v{X+3}')
    a(f'v_mov_b32_dpp v{T1}, v{Mv} quad_perm:[1,0,3,2] row_mask:0xf bank_mask:0xf')
    a(f'v_and_b32 v{X+4}, 0x7fff7fff, v{X+4}')
    a(f'v_and_b32 v{X+5}, 0x7fff7fff, v{X+5}')
    a(f'buffer_store_dwordx2 v[{X+4}:{X+5}], v{VPX}, {WS}, s{S_P} offen')
    a(f'v_cvt_pk_bf16_f32 v{X+6}, v{Mv}, v{T1}')
    a(f'v_and_b32 v{X+6}, 0x7fff7fff, v{X+6}')
    a(f's_mov_b32 s{S_EXEC}, 0x55555555')
    a(f's_mov_b32 s{S_EXEC+1}, 0x55555555')
    a(f's_mov_b64 exec, s[{S_EXEC}:{S_EXEC+1}]')
    a(f'buffer_store_dword v{X+6}, v{VPM}, {WS}, s{S_P} offen')
    a(f's_mov_b64 exec, -1')
    a('LA_next:')
    stamp(a, cfg, 5)
    kx_load()
    stamp_flush(a, cfg, TA)
    a(f's_add_u32 s{S_STEP}, s{S_STEP}, 1')
    a(f's_add_u32 s{S_MEMF}, s{S_MEMF}, {MEMF_STEP}')
    a(f's_add_u32 s{S_P}, s{S_P}, {P_STEP}')
    a(f's_cmp_lt_u32 s{S_STEP}, {cfg.nsteps}')
    a('s_cbranch_scc1 LA_loop')
    a('s_waitcnt vmcnt(0)')
    stamp_store(a, cfg, VL16, MS)
    a(f's_branch {L_exit}')

B_MEML, B_RED, B_WL = 0, 7168, 16384

def emit_B(a, cfg, L_exit):
    R = Regs(0, 120)
    R.next = 1
    a('; ================= B side =================')
    VL, VL16, VIDX, VPA = setup_common(a, R)
    VWL, VPX, VPM, VRR, VMO, VWO = (R.alloc(n) for n in ('VWL', 'VPX', 'VPM', 'VRR', 'VMO', 'VWO'))
    MS = R.alloc('MS', 28, 2)
    ACC = R.alloc('ACC', 8, 2); CV = R.alloc('CV', 4, 2)
    LW = R.alloc('LW', 16, 2); WB = R.alloc('WB', 16, 2); UB = R.alloc('UB', 32, 2)
    PX = MS; PM = MS + 8; PV = MS + 12; RD = MS + 20
    a(f's_sub_u32 s{S_J}, s{S_ROLE}, {NA}')
    for ti in range(7):
        hh, T = ti >> 1, ti & 1
        a(f's_lshl_b32 s{S_T0}, s{S_WAVE}, 2')
        a(f's_add_u32 s{S_T0}, s{S_T0}, {hh}')
        a(f's_mul_i32 s{S_T0}, s{S_T0}, 28')
        a(f's_lshl_b32 s{S_T0+1}, s{S_J}, 1')
        a(f's_add_u32 s{S_T0}, s{S_T0}, s{S_T0+1}')
        a(f's_add_u32 s{S_T0}, s{S_T0}, {T}')
        a(f's_mul_i32 s{S_T0}, s{S_T0}, {7*2048}')
        a(f's_add_u32 s{S_T0}, s{S_T0}, {BF_OFF}')
        for kk in range(7):
            for rh in range(2):
                off = kk*2048 + rh*1024
                if off % 4096 == 0 and off > 0: a(f's_add_u32 s{S_T0}, s{S_T0}, 4096')
                a(f'buffer_load_dwordx4 {wfrag_half(ti*7+kk, rh)}, v{VL16}, {WS}, s{S_T0} offen offset:{off % 4096}')
        a('s_waitcnt vmcnt(14)')
    a(f's_lshl_b32 s{S_T0}, s{S_WAVE}, 2')
    a(f's_add_u32 s{S_T0}, s{S_T0}, 3')
    a(f's_mul_i32 s{S_T0}, s{S_T0}, 28')
    a(f's_lshl_b32 s{S_T0+1}, s{S_J}, 1')
    a(f's_add_u32 s{S_T0}, s{S_T0}, s{S_T0+1}')
    a(f's_add_u32 s{S_T0}, s{S_T0}, 1')
    a(f's_mul_i32 s{S_T0}, s{S_T0}, {7*2048}')
    a(f's_add_u32 s{S_T0}, s{S_T0}, {BF_OFF}')
    a(f's_mul_i32 s{S_T0+1}, s{S_WAVE}, 14336')
    a(f's_add_u32 s{S_T0+1}, s{S_T0+1}, {B_WL}')
    a(f'v_add_u32 v{VWL}, s{S_T0+1}, v{VL16}')
    for d in range(14):
        a(f's_add_u32 m0, s{S_T0+1}, {d*1024}')
        a(f's_add_u32 s{S_T0+2}, s{S_T0}, {d*1024}')
        a(f'buffer_load_dwordx4 v{VL16}, {WS}, s{S_T0+2} offen lds')
    a('s_waitcnt vmcnt(0)')
    TX, TY, TZ = MS, MS+1, MS+2
    a(f's_lshl_b32 s{S_T0}, s{S_WAVE}, 11')
    a(f'v_add_u32 v{VPX}, s{S_T0}, v{VL16}')
    a(f'v_lshrrev_b32 v{TX}, 5, v{VL}')
    a(f'v_lshlrev_b32 v{TX}, 1, v{TX}')
    a(f'v_bfe_u32 v{TY}, v{VL}, 3, 1')
    a(f'v_add_u32 v{TX}, v{TX}, v{TY}')
    a(f'v_lshlrev_b32 v{TX}, 7, v{TX}')
    a(f'v_and_b32 v{TY}, 7, v{VL}')
    a(f'v_lshl_add_u32 v{TX}, v{TY}, 4, v{TX}')
    a(f's_lshl_b32 s{S_T0}, s{S_WAVE}, 9')
    a(f's_add_u32 s{S_T0}, s{S_T0}, 8192')
    a(f'v_add_u32 v{VPM}, s{S_T0}, v{TX}')
    a(f's_lshr_b32 s{S_T0}, s{S_WAVE}, 1')
    a(f's_lshl_b32 s{S_T0}, s{S_T0}, 10')
    a(f's_and_b32 s{S_T0+1}, s{S_WAVE}, 1')
    a(f's_lshl_b32 s{S_T0+1}, s{S_T0+1}, 8')
    a(f's_add_u32 s{S_T0}, s{S_T0}, s{S_T0+1}')
    a(f's_add_u32 s{S_T0}, s{S_T0}, {B_RED}')
    a(f'v_lshl_add_u32 v{VRR}, v{VL}, 2, s{S_T0}')
    a(f'v_lshrrev_b32 v{TX}, 2, v{VL}')
    a(f'v_lshrrev_b32 v{TY}, 3, v{TX}')
    a(f'v_lshlrev_b32 v{TY}, 7, v{TY}')
    a(f'v_and_b32 v{TZ}, 3, v{VL}')
    a(f'v_lshl_add_u32 v{TY}, v{TZ}, 4, v{TY}')
    a(f'v_bfe_u32 v{TZ}, v{TX}, 1, 2')
    a(f'v_lshl_add_u32 v{TY}, v{TZ}, 2, v{TY}')
    a(f's_lshl_b32 s{S_T0}, s{S_J}, 2')
    a(f's_lshr_b32 s{S_T0+1}, s{S_WAVE}, 1')
    a(f's_lshl_b32 s{S_T0+1}, s{S_T0+1}, 1')
    a(f's_add_u32 s{S_T0}, s{S_T0}, s{S_T0+1}')
    a(f's_lshl_b32 s{S_T0}, s{S_T0}, 7')
    a(f's_and_b32 s{S_T0+1}, s{S_WAVE}, 1')
    a(f's_lshl_b32 s{S_T0+1}, s{S_T0+1}, 6')
    a(f's_add_u32 s{S_T0}, s{S_T0}, s{S_T0+1}')
    a(f'v_add_u32 v{VMO}, s{S_T0}, v{TY}')
    a(f's_lshl_b32 s{S_T0}, s{S_J}, 14')
    a(f's_lshl_b32 s{S_T0+1}, s{S_WAVE}, 12')
    a(f's_add_u32 s{S_T0}, s{S_T0}, s{S_T0+1}')
    a(f'v_add_u32 v{VWO}, s{S_T0}, v{VL16}')
    a(f's_lshl_b32 s{S_T0}, s{S_WAVE}, 11')
    a(f's_add_u32 s{S_T0}, s{S_T0}, {B_RED}')
    a(f'v_add_u32 v{VL}, s{S_T0}, v{VL16}')
    VRW = VL
    a(f's_lshl_b32 s{S_T0}, s{S_WAVE}, 2')
    a(f's_mul_i32 s{S_T0}, s{S_T0}, 28')
    a(f's_lshl_b32 s{S_T0+1}, s{S_J}, 1')
    a(f's_add_u32 s{S_T0}, s{S_T0}, s{S_T0+1}')
    a(f's_lshl_b32 s{S_T0}, s{S_T0}, 10')
    a(f's_add_u32 s{S_NXT}, s{S_T0}, {UF_OFF}')
    def u_load1(hh, T):
        b = UB + 16*(hh >> 1) + 8*T + 4*(hh & 1)
        a(f's_add_u32 s{S_T0}, s{S_NXT}, {hh*28*1024}')
        a(f'buffer_load_dwordx4 v[{b}:{b+3}], v{VL16}, {WS}, s{S_T0} offen offset:{T*1024}')
    def w_store1(T, pair):
        b = WB + 8*T + 4*pair
        a(f'buffer_store_dwordx4 v[{b}:{b+3}], v{VWO}, {WS}, s{S_W} offen offset:{(T*2+pair)*1024} sc1')
    a(f's_mov_b32 s{S_STEP}, 0')
    a(f's_mov_b32 s{S_MEMF}, {MEMF_OFF}')
    a(f's_mov_b32 s{S_P}, {P_OFF}')
    a(f's_mov_b32 s{S_W}, {W_OFF - W_STEP}')
    a('LB_loop:')
    stamp(a, cfg, 0)
    poll_mem(a, VPA, ACC, 'LB_poll')
    stamp(a, cfg, 1)
    a(f'ds_write_b128 v{VPA}, v[{ACC}:{ACC+3}] offset:{B_MEML}')
    a(f'ds_write_b128 v{VPA+1}, v[{ACC+4}:{ACC+7}] offset:{B_MEML}')
    a('s_waitcnt lgkmcnt(0)')
    a('s_barrier')
    lg = LG(a)
    for kk in range(7):
        lg.op(f'ds_read_b128 v[{MS+4*kk}:{MS+4*kk+3}], v{VL16} offset:{B_MEML+kk*1024}', f'ms{kk}')
    for r in range(0, 8, 2): a(f'v_mov_b64 v[{ACC+r}:{ACC+r+1}], 0')
    if cfg.wstore:
        a(f's_cmp_eq_u32 s{S_STEP}, 0')
        a('s_cbranch_scc1 LB_now')
        for T in range(2):
            for pair in range(2): w_store1(T, pair)
        a('LB_now:')
    def acc(t): return ACC + 4*(t & 1)
    def lwread(kk):
        b = LW + 8*(kk & 1)
        lg.op(f'ds_read_b128 v[{b}:{b+3}], v{VWL} offset:{kk*2048}', f'lw{kk}')
        lg.op(f'ds_read_b128 v[{b+4}:{b+7}], v{VWL} offset:{kk*2048+1024}', f'lw{kk}')
    def cvt(t, i):
        hh, T = t >> 1, t & 1
        pair, hp = hh >> 1, hh & 1
        b = WB + 8*T + 4*pair
        a(f'v_cvt_pk_bf16_f32 v{b+2*i+hp}, v{acc(t)+2*i}, v{acc(t)+2*i+1}')
    for t in range(8):
        for kk in range(7):
            if t == 0: lg.wait(f'ms{kk}')
            if t == 7:
                lg.wait(f'lw{kk}')
                w = f'v[{LW+8*(kk&1)}:{LW+8*(kk&1)+7}]'
            else:
                w = wfrag(t*7+kk)
            a(f'v_smfmac_f32_16x16x64_bf16 v[{acc(t)}:{acc(t)+3}], v[{MS+4*kk}:{MS+4*kk+3}], {w}, v{VIDX}')
            if t < 4 and kk in (1, 5): u_load1(t, 0 if kk == 1 else 1)
            if t == 4 and kk == 0: a(f's_add_u32 s{S_NXT}, s{S_NXT}, {UF_STEP}')
            if t == 6 and kk == 0: lwread(0)
            if t == 6 and kk == 1: lwread(1)
            if t >= 1 and kk == 2: cvt(t-1, 0); cvt(t-1, 1)
            if t >= 1 and t < 7 and kk == 3: a(f'v_mov_b64 v[{acc(t+1)}:{acc(t+1)+1}], 0')
            if t >= 1 and t < 7 and kk == 4: a(f'v_mov_b64 v[{acc(t+1)+2}:{acc(t+1)+3}], 0')
            if t == 7 and kk + 2 <= 6: lwread(kk+2)
    a('s_nop 7')
    cvt(7, 0); cvt(7, 1)
    stamp(a, cfg, 2)
    a(f's_cmp_ge_u32 s{S_STEP}, {cfg.nsteps}')
    a('s_cbranch_scc1 LB_fin')
    a(f's_mov_b32 s{S_SPIN}, 0')
    a('LB_pp:')
    a(f'buffer_load_dwordx4 v[{PX}:{PX+3}], v{VPX}, {WS}, s{S_P} offen sc1')
    a(f'buffer_load_dwordx4 v[{PX+4}:{PX+7}], v{VPX}, {WS}, s{S_P} offen offset:1024 sc1')
    a(f'buffer_load_dwordx4 v[{PM}:{PM+3}], v{VPM}, {WS}, s{S_P} offen sc1')
    a(f's_add_u32 s{S_SPIN}, s{S_SPIN}, 1')
    a(f's_cmp_gt_u32 s{S_SPIN}, {SPIN_MAX}')
    a('s_cbranch_scc1 LB_pp_out')
    a('s_waitcnt vmcnt(0)')
    a(f'v_or3_b32 v{RD}, v{PX}, v{PX+1}, v{PX+2}')
    a(f'v_or3_b32 v{RD+1}, v{PX+3}, v{PX+4}, v{PX+5}')
    a(f'v_or3_b32 v{RD+2}, v{PX+6}, v{PX+7}, v{PM}')
    a(f'v_or3_b32 v{RD}, v{RD}, v{PM+1}, v{PM+2}')
    a(f'v_or3_b32 v{RD+1}, v{RD+1}, v{RD+2}, v{PM+3}')
    a(f'v_or_b32 v{RD}, v{RD}, v{RD+1}')
    a(f'v_and_b32 v{RD}, 0x80008000, v{RD}')
    a(f'v_cmp_ne_u32 vcc, 0, v{RD}')
    a('s_cbranch_vccnz LB_pp')
    a('LB_pp_out:')
    a('s_waitcnt vmcnt(0)')
    stamp(a, cfg, 3)
    for r in range(0, 8, 2): a(f'v_mov_b64 v[{PV+r}:{PV+r+1}], 0')
    a('s_nop 1')
    for T in range(2):
        a(f'v_smfmac_f32_16x16x64_bf16 v[{PV+4*T}:{PV+4*T+3}], v[{PM}:{PM+3}], v[{WB+8*T}:{WB+8*T+7}], v{VIDX}')
    for hp in range(2):
        for T in range(2):
            a(f'v_smfmac_f32_16x16x64_bf16 v[{PV+4*T}:{PV+4*T+3}], v[{PX+4*hp}:{PX+4*hp+3}], v[{UB+16*hp+8*T}:{UB+16*hp+8*T+7}], v{VIDX}')
    a('s_nop 5')
    a(f'ds_write_b128 v{VRW}, v[{PV}:{PV+3}]')
    a('s_nop 1')
    a(f'ds_write_b128 v{VRW}, v[{PV+4}:{PV+7}] offset:1024')
    a('s_waitcnt lgkmcnt(0)')
    a('s_barrier')
    for w in range(4):
        for half in range(2):
            a(f'ds_read_b32 v{RD+2*w+half}, v{VRR} offset:{w*2048+half*512}')
    a('s_waitcnt lgkmcnt(4)')
    a(f'v_add_f32 v{RD}, v{RD}, v{RD+1}')
    a(f'v_add_f32 v{RD+2}, v{RD+2}, v{RD+3}')
    a('s_waitcnt lgkmcnt(0)')
    a(f'v_add_f32 v{RD+4}, v{RD+4}, v{RD+5}')
    a(f'v_add_f32 v{RD+6}, v{RD+6}, v{RD+7}')
    a(f'v_add_f32 v{RD}, v{RD}, v{RD+2}')
    a(f'v_add_f32 v{RD+4}, v{RD+4}, v{RD+6}')
    a(f'v_add_f32 v{RD}, v{RD}, v{RD+4}')
    a('s_nop 1')
    a(f'v_mov_b32_dpp v{RD+1}, v{RD} row_shl:4 row_mask:0xf bank_mask:0xf')
    a(f'v_cvt_pk_bf16_f32 v{RD}, v{RD}, v{RD+1}')
    a(f'v_min_u32 v{RD}, 0xfffffffe, v{RD}')
    a(f's_add_u32 s{S_T0}, s{S_MEMF}, {MEMF_STEP}')
    a(f's_mov_b32 s{S_EXEC}, 0x0f0f0f0f')
    a(f's_mov_b32 s{S_EXEC+1}, 0x0f0f0f0f')
    a(f's_mov_b64 exec, s[{S_EXEC}:{S_EXEC+1}]')
    a(f'buffer_store_dword v{RD}, v{VMO}, {WS}, s{S_T0} offen')
    a(f's_mov_b64 exec, -1')
    stamp(a, cfg, 4)
    stamp(a, cfg, 5)
    stamp_flush(a, cfg, LW)
    a(f's_add_u32 s{S_STEP}, s{S_STEP}, 1')
    a(f's_add_u32 s{S_MEMF}, s{S_MEMF}, {MEMF_STEP}')
    a(f's_add_u32 s{S_P}, s{S_P}, {P_STEP}')
    a(f's_add_u32 s{S_W}, s{S_W}, {W_STEP}')
    a('s_branch LB_loop')
    a('LB_fin:')
    a(f's_add_u32 s{S_W}, s{S_W}, {W_STEP}')
    if cfg.wstore:
        for T in range(2):
            for pair in range(2): w_store1(T, pair)
    a('s_waitcnt vmcnt(0)')
    stamp_store(a, cfg, VL16, MS)
    a(f's_branch {L_exit}')

def gen_chain_body(cfg):
    a = Asm()
    prologue_common(a, 'L_exit')
    a(f's_cmp_ge_u32 s{S_ROLE}, {NA}')
    a('s_cbranch_scc1 LB_entry')
    emit_A(a, cfg, 'L_exit')
    a('LB_entry:')
    emit_B(a, cfg, 'L_exit')
    a('L_exit:')
    a('s_endpgm')
    return a.text(), (155648 if cfg.stamps else 73728)

def gen_chain_kernel(name, cfg):
    a = Asm()
    lds = 155648 if cfg.stamps else 73728
    a(header(name, 256, 256, lds))
    prologue_common(a, 'L_exit')
    a(f's_cmp_ge_u32 s{S_ROLE}, {NA}')
    a('s_cbranch_scc1 LB_entry')
    emit_A(a, cfg, 'L_exit')
    a('LB_entry:')
    emit_B(a, cfg, 'L_exit')
    a('L_exit:')
    a('s_endpgm')
    a(footer(name, nv=512, ns=102, accum=256, kernarg=112))
    return a.text(), lds

if __name__ == '__main__':
    cfg = Cfg(); cfg.stamps = len(sys.argv) > 1 and sys.argv[1] == 'stamps'
    txt, lds = gen_chain_kernel('chain_kernel', cfg)
    open('chain.s', 'w').write(txt)
    import subprocess
    r = subprocess.run(['clang', '-x', 'assembler', '-target', 'amdgcn-amd-amdhsa', '-mcpu=gfx950', '-c', 'chain.s', '-o', 'chain.o'], capture_output=True, text=True)
    print(r.returncode, r.stderr[:3000]); print(len(txt.splitlines()), 'lines, lds', lds)
```

```python
import sys
sys.path.insert(0, 'tools'); sys.path.insert(0, 'gen')
from adsl import *
from layout import *
import struct
def f32(x): return struct.unpack('<I', struct.pack('<f', x))[0]

def srd(a, s, ka_off, nbytes, tmp_done=None):
    a(f's_load_dwordx2 s[{s}:{s+1}], s[0:1], {ka_off}')
def srd_fin(a, s, nbytes):
    a(f's_and_b32 s{s+1}, s{s+1}, 0xffff')
    a(f's_mov_b32 s{s+2}, {nbytes}')
    a(f's_mov_b32 s{s+3}, 0x20000')

def key_of_rho(a, dst, vrho, t0, t1):
    a(f'v_lshrrev_b32 v{t0}, 3, v{vrho}')
    a(f'v_lshlrev_b32 v{dst}, 4, v{t0}')
    a(f'v_bfe_u32 v{t0}, v{vrho}, 2, 1')
    a(f'v_lshl_add_u32 v{dst}, v{t0}, 2, v{dst}')
    a(f'v_and_b32 v{t0}, 1, v{vrho}')
    a(f'v_add_u32 v{dst}, v{dst}, v{t0}')
    a(f'v_bfe_u32 v{t0}, v{vrho}, 1, 1')
    a(f'v_lshl_add_u32 v{dst}, v{t0}, 3, v{dst}')

def rowsum4(a, v, t):
    a(f'v_mov_b32 v{t}, v{v}')
    a('s_nop 1')
    a(f'v_permlane16_swap_b32 v{v}, v{t}')
    a(f'v_add_f32 v{v}, v{v}, v{t}')
    a(f'v_mov_b32 v{t}, v{v}')
    a('s_nop 1')
    a(f'v_permlane32_swap_b32 v{v}, v{t}')
    a(f'v_add_f32 v{v}, v{v}, v{t}')
def rowmax4(a, v, t):
    a(f'v_mov_b32 v{t}, v{v}')
    a('s_nop 1')
    a(f'v_permlane16_swap_b32 v{v}, v{t}')
    a(f'v_max_f32 v{v}, v{v}, v{t}')
    a(f'v_mov_b32 v{t}, v{v}')
    a('s_nop 1')
    a(f'v_permlane32_swap_b32 v{v}, v{t}')
    a(f'v_max_f32 v{v}, v{v}, v{t}')

def kernel_header(name):
    return f'''.globl {name}
.p2align 8
.type {name},@function
{name}:
'''
def kernel_desc(name, nv, accum, ns=102):
    return f'''.amdhsa_kernel {name}
  .amdhsa_next_free_vgpr {nv}
  .amdhsa_next_free_sgpr {ns}
  .amdhsa_accum_offset {accum}
  .amdhsa_group_segment_fixed_size 0
  .amdhsa_kernarg_size 112
  .amdhsa_user_sgpr_count 2
  .amdhsa_user_sgpr_kernarg_segment_ptr 1
  .amdhsa_system_sgpr_workgroup_id_x 1
.end_amdhsa_kernel
'''
def assemble_file(launches, bodies):
    out = []
    for (k, g, b, l) in launches:
        out.append(f'; @launch kernel={k} grid=({g},1,1) block=({b},1,1) lds={l}')
    out.append('.amdgcn_target "amdgcn-amd-amdhsa--gfx950"')
    out.append('.text')
    for (name, text, nv, accum) in bodies:
        out.append(kernel_header(name) + text)
    out.append('.section .rodata,"a"')
    for (name, text, nv, accum) in bodies:
        out.append('.p2align 6')
        out.append(kernel_desc(name, nv, accum))
    return '\n'.join(out) + '\n'
```

```python
S, DM, H, DH, M, SEG, NSEG, FF = 2048, 448, 16, 256, 8, 32, 64, 1792
FRAG = 2048
AF_OFF = 0
AF_SZ = 16*28*7*FRAG
BF_OFF = AF_OFF + AF_SZ
UF_OFF = BF_OFF + AF_SZ
UF_STEP = 16*28*1024
UF_SZ = 64*UF_STEP
XNP_OFF = UF_OFF + UF_SZ
XNP_STEP = 56*32*16
XNP_SZ = 64*XNP_STEP
MEMF_OFF = XNP_OFF + XNP_SZ
MEMF_STEP = 7168
MEMF_SZ = 64*MEMF_STEP
P_OFF = MEMF_OFF + MEMF_SZ
P_STEP = 10240
P_SZ = 64*P_STEP
W_OFF = P_OFF + P_SZ
W_STEP = 14*16384
W_SZ = 64*W_STEP
XNQ_OFF = W_OFF + W_SZ
XNQ_STEP = 28672
XNQ_SZ = 64*XNQ_STEP
PT_OFF = XNQ_OFF + XNQ_SZ
PTX_STEP = 16*2*1024
PTM_STEP = 8*2*1024
PT_STEP = PTX_STEP + PTM_STEP
PT_SZ = 64*PT_STEP
HF_OFF = PT_OFF + PT_SZ
HF_STEP = 28672
HF_SZ = 64*HF_STEP
ACT_OFF = HF_OFF + HF_SZ
ACT_STEP = 2*56*1024
ACT_SZ = 64*ACT_STEP
ST_OFF = ACT_OFF + ACT_SZ
ST_STEP = 32*32*8
ST_SZ = 64*ST_STEP
FLAG_OFF = ST_OFF + ST_SZ
FLAG_SZ = 1 << 16
TS_OFF = FLAG_OFF + FLAG_SZ
TS_SZ = 1 << 20
END_OFF = TS_OFF + TS_SZ
WS_BYTES = 268435456
LOG2E = 1.4426950408889634
KA_X, KA_MEM0, KA_WQ, KA_WK, KA_WV, KA_WO, KA_WG, KA_WU, KA_WD, KA_OUT, KA_DBG, KA_WS = 0, 8, 16, 24, 32, 40, 64, 72, 80, 88, 96, 104
if __name__ == '__main__':
    for k, v in list(globals().items()):
        if k.isupper() and isinstance(v, int): print(k, v, hex(v))
```

```python
from common import *

def emit_prep(a, L='PR'):
    WSR, W1, W2, XS_, M0_ = 4, 8, 12, 16, 20
    WS = f's[{WSR}:{WSR+3}]'
    sW, sM, sH, sKK, sT = 24, 25, 26, 27, 28
    a(f'''
s_cmp_ge_u32 s2, 256
s_cbranch_scc1 {L}_exit
s_load_dwordx2 s[{WSR}:{WSR+1}], s[0:1], {KA_WS}
v_lshrrev_b32 v1, 6, v0
s_nop 0
v_readfirstlane_b32 s{sW}, v1
v_and_b32 v1, 63, v0              ; lane
s_cmp_ge_u32 s2, 224
s_cbranch_scc1 {L}_ln
; ---------------- P2: A' / B fragments
s_cmp_ge_u32 s2, 112
s_cselect_b32 s{sM}, 1, 0
s_mul_i32 s{sT}, s{sM}, 112
s_sub_u32 s{sT}, s2, s{sT}
s_mul_i32 s{sH}, s{sT}, 9363
s_lshr_b32 s{sH}, s{sH}, 16
s_mul_i32 s{sKK}, s{sH}, 7
s_sub_u32 s{sKK}, s{sT}, s{sKK}
s_cmp_eq_u32 s{sM}, 0
s_cbranch_scc0 {L}_ptrB
s_load_dwordx2 s[{W1}:{W1+1}], s[0:1], {KA_WQ}
s_load_dwordx2 s[{W2}:{W2+1}], s[0:1], {KA_WK}
s_branch {L}_ptr
{L}_ptrB:
s_load_dwordx2 s[{W1}:{W1+1}], s[0:1], {KA_WV}
s_load_dwordx2 s[{W2}:{W2+1}], s[0:1], {KA_WO}
{L}_ptr:
s_waitcnt lgkmcnt(0)''')
    srd_fin(a, WSR, WS_BYTES); srd_fin(a, W1, 3670016); srd_fin(a, W2, 3670016)
    VL, VL16, VA, VB, VT, VT2, VTR, VTRB = 1, 2, 3, 4, 5, 6, 7, 8
    AOP, BOP, RAW, ACC = 16, 144, 208, 240
    a(f'v_lshlrev_b32 v{VL16}, 4, v{VL}')
    a(f'v_and_b32 v{VT}, 15, v{VL}')
    key_of_rho(a, VA, VT, VT2, None)
    a(f'v_lshlrev_b32 v{VA}, 13, v{VA}')
    a(f'v_lshrrev_b32 v{VT2}, 4, v{VL}')
    a(f'v_lshl_add_u32 v{VA}, v{VT2}, 4, v{VA}')
    a(f's_lshl_b32 s{sT}, s{sKK}, 19')
    a(f's_lshl_b32 s{sT+1}, s{sH}, 9')
    a(f's_add_u32 s{sT}, s{sT}, s{sT+1}')
    for rh in range(2):
        for XY in range(2):
            a(f's_add_u32 s{sT+2}, s{sT}, {(32*rh+2*XY)*8192}')
            for ks in range(8):
                b = AOP + ((rh*2+XY)*8+ks)*4
                a(f'buffer_load_dwordx4 v[{b}:{b+3}], v{VA}, s[{W1}:{W1+3}], s{sT+2} offen offset:{ks*64}')
    a(f's_mul_i32 s{sT+3}, s{sH}, 28')
    a(f's_mul_i32 s{sT+4}, s{sW}, 7')
    a(f's_add_u32 s{sT+3}, s{sT+3}, s{sT+4}')
    a(f's_mul_i32 s{sT+3}, s{sT+3}, 7')
    a(f's_add_u32 s{sT+3}, s{sT+3}, s{sKK}')
    a(f's_lshl_b32 s{sT+3}, s{sT+3}, 11')
    a(f's_mul_i32 s{sT+5}, s{sM}, {BF_OFF}')
    a(f's_add_u32 s{sT+3}, s{sT+3}, s{sT+5}')
    sOUT = sT+3
    def mfmas(bop):
        for t in range(4):
            for ks in range(8):
                c = '0' if ks == 0 else f'v[{ACC+4*t}:{ACC+4*t+3}]'
                ab = AOP + (t*8+ks)*4
                a(f'v_mfma_f32_16x16x32_bf16 v[{ACC+4*t}:{ACC+4*t+3}], v[{ab}:{ab+3}], v[{bop+4*ks}:{bop+4*ks+3}], {c}')
    def epilogue(scale):
        a('s_nop 7')
        if scale:
            a(f'v_mov_b32 v{VT}, {hex(f32(LOG2E/16))}')
            for r in range(16): a(f'v_mul_f32 v{ACC+r}, v{ACC+r}, v{VT}')
        for rh in range(2):
            x, y = ACC + 8*rh, ACC + 8*rh + 4
            o = RAW + 4*rh if False else 12
            a(f'v_cvt_pk_bf16_f32 v12, v{x}, v{x+1}')
            a(f'v_cvt_pk_bf16_f32 v13, v{x+2}, v{x+3}')
            a(f'v_cvt_pk_bf16_f32 v14, v{y}, v{y+1}')
            a(f'v_cvt_pk_bf16_f32 v15, v{y+2}, v{y+3}')
            a(f'buffer_store_dwordx4 v[12:15], v{VL16}, {WS}, s{sOUT} offen offset:{rh*1024}')
            a('s_nop 2')
        a(f's_add_u32 s{sOUT}, s{sOUT}, {7*2048}')
    a(f's_cmp_eq_u32 s{sM}, 0')
    a(f's_cbranch_scc0 {L}_matB')
    a(f'v_and_b32 v{VT}, 15, v{VL}')
    a(f'v_lshlrev_b32 v{VB}, 13, v{VT}')
    a(f'v_lshrrev_b32 v{VT2}, 4, v{VL}')
    a(f'v_lshl_add_u32 v{VB}, v{VT2}, 4, v{VB}')
    a(f's_mul_i32 s{sT+4}, s{sW}, {7*16*8192}')
    a(f's_lshl_b32 s{sT+5}, s{sH}, 9')
    a(f's_add_u32 s{sT+4}, s{sT+4}, s{sT+5}')
    def bload(buf):
        for ks in range(8):
            b = BOP + 32*buf + 4*ks
            a(f'buffer_load_dwordx4 v[{b}:{b+3}], v{VB}, s[{W2}:{W2+3}], s{sT+4} offen offset:{ks*64}')
        a(f's_add_u32 s{sT+4}, s{sT+4}, {16*8192}')
    bload(0)
    for cti in range(7):
        if cti < 6:
            bload((cti+1) & 1)
            a('s_waitcnt vmcnt(8)')
        else:
            a('s_waitcnt vmcnt(0)')
        mfmas(BOP + 32*(cti & 1))
        epilogue(True)
    a(f's_branch {L}_exit')
    a(f'{L}_matB:')
    a(f'v_lshrrev_b32 v{VT}, 1, v{VL}')
    a(f'v_mul_u32_u24 v{VB}, 896, v{VT}')
    a(f'v_and_b32 v{VT}, 1, v{VL}')
    a(f'v_lshl_add_u32 v{VB}, v{VT}, 4, v{VB}')
    a(f's_mul_i32 s{sT+4}, s{sH}, 229376')
    a(f's_mul_i32 s{sT+5}, s{sW}, {7*32}')
    a(f's_add_u32 s{sT+4}, s{sT+4}, s{sT+5}')
    a(f's_lshl_b32 s{sT+5}, s{sW}, 13')
    a(f'v_add_u32 v{VT2}, s{sT+5}, v{VL16}')
    VLW = 9
    a(f'v_mov_b32 v{VLW}, v{VT2}')
    a(f'v_lshrrev_b32 v{VT}, 4, v{VL}')
    a(f'v_lshlrev_b32 v{VT}, 3, v{VT}')
    a(f'v_bfe_u32 v{VT2}, v{VL}, 2, 2')
    a(f'v_add_u32 v{VT}, v{VT}, v{VT2}')
    a(f'v_lshlrev_b32 v{VT}, 5, v{VT}')
    a(f'v_and_b32 v{VT2}, 3, v{VL}')
    a(f'v_lshl_add_u32 v{VT}, v{VT2}, 3, v{VT}')
    a(f'v_add_u32 v{VTR}, s{sT+5}, v{VT}')
    def rawload():
        for ks in range(8):
            a(f's_add_u32 s{sT+6}, s{sT+4}, {ks*28672}')
            a(f'buffer_load_dwordx4 v[{RAW+4*ks}:{RAW+4*ks+3}], v{VB}, s[{W2}:{W2+3}], s{sT+6} offen')
        a(f's_add_u32 s{sT+4}, s{sT+4}, 32')
    rawload()
    for cti in range(7):
        a('s_waitcnt vmcnt(0)')
        for ks in range(8):
            a(f'ds_write_b128 v{VLW}, v[{RAW+4*ks}:{RAW+4*ks+3}] offset:{ks*1024}')
        a('s_waitcnt lgkmcnt(0)')
        if cti < 6: rawload()
        for ks in range(8):
            b = BOP + 4*ks
            a(f'ds_read_b64_tr_b16 v[{b}:{b+1}], v{VTR} offset:{ks*1024}')
            a(f'ds_read_b64_tr_b16 v[{b+2}:{b+3}], v{VTR} offset:{ks*1024+128}')
        a('s_waitcnt lgkmcnt(0)')
        mfmas(BOP)
        epilogue(False)
    a(f's_branch {L}_exit')
    a(f'{L}_ln:')
    a(f's_load_dwordx2 s[{XS_}:{XS_+1}], s[0:1], {KA_X}')
    a(f's_load_dwordx2 s[{M0_}:{M0_+1}], s[0:1], {KA_MEM0}')
    a('s_waitcnt lgkmcnt(0)')
    srd_fin(a, WSR, WS_BYTES); srd_fin(a, XS_, 1835008); srd_fin(a, M0_, 7168)
    sQ, sS, sXY = 26, 27, 25
    a(f's_sub_u32 s{sQ}, s2, 224')
    a(f's_lshr_b32 s{sS}, s{sW}, 1')
    a(f's_lshl_b32 s{sT}, s{sQ}, 1')
    a(f's_add_u32 s{sS}, s{sS}, s{sT}')
    a(f's_and_b32 s{sXY}, s{sW}, 1')
    VKEY, VG, VXA, VQ, VPO, VS, VM, VR = 2, 3, 4, 5, 6, 7, 8, 9
    RAWX, FX, TMP = 16, 72, 184
    a(f'v_and_b32 v{TMP}, 15, v{VL}')
    key_of_rho(a, VKEY, TMP, TMP+1, None)
    a(f's_lshl_b32 s{sT}, s{sXY}, 1')
    a(f'v_add_u32 v{VKEY}, s{sT}, v{VKEY}')
    a(f'v_lshrrev_b32 v{VG}, 4, v{VL}')
    a(f'v_mul_u32_u24 v{VXA}, 896, v{VKEY}')
    a(f'v_lshrrev_b32 v{TMP}, 1, v{VG}')
    a(f'v_lshl_add_u32 v{VXA}, v{TMP}, 5, v{VXA}')
    a(f'v_and_b32 v{TMP+1}, 1, v{VG}')
    a(f'v_lshl_add_u32 v{VXA}, v{TMP+1}, 3, v{VXA}')
    a(f's_mul_i32 s{sT}, s{sS}, {32*896}')
    for kb in range(14):
        for p in range(2):
            b = RAWX + (kb*2+p)*2
            a(f'buffer_load_dwordx2 v[{b}:{b+1}], v{VXA}, s[{XS_}:{XS_+3}], s{sT} offen offset:{(32*kb+8*p)*2}')
    a(f'v_lshlrev_b32 v{VPO}, 10, v{TMP}')
    a(f'v_lshl_add_u32 v{VPO}, v{VKEY}, 4, v{VPO}')
    a(f'v_lshl_add_u32 v{VPO}, v{TMP+1}, 3, v{VPO}')
    a(f'v_lshlrev_b32 v{VQ}, 4, v{VL}')
    a('s_waitcnt vmcnt(0)')
    for i in range(56):
        a(f'v_lshlrev_b32 v{FX+2*i}, 16, v{RAWX+i}')
        a(f'v_and_b32 v{FX+2*i+1}, 0xffff0000, v{RAWX+i}')
    a(f'v_mov_b32 v{VS}, 0')
    for i in range(0, 112, 2):
        a(f'v_add_f32 v{TMP}, v{FX+i}, v{FX+i+1}')
        a(f'v_add_f32 v{VS}, v{VS}, v{TMP}')
    rowsum4(a, VS, TMP)
    a(f'v_mul_f32 v{VM}, {hex(f32(1/448))}, v{VS}')
    a(f'v_mov_b32 v{VS}, 0')
    for i in range(112):
        a(f'v_sub_f32 v{FX+i}, v{FX+i}, v{VM}')
        a(f'v_fmac_f32 v{VS}, v{FX+i}, v{FX+i}')
    rowsum4(a, VS, TMP)
    a(f'v_mov_b32 v{TMP}, {hex(f32(1e-5))}')
    a(f'v_fmac_f32 v{TMP}, {hex(f32(1/448))}, v{VS}')
    a(f'v_rsq_f32 v{VR}, v{TMP}')
    a('s_nop 0')
    for i in range(112): a(f'v_mul_f32 v{FX+i}, v{FX+i}, v{VR}')
    a(f's_lshl_b32 s{sT}, s{sS}, 1')
    a(f's_add_u32 s{sT}, s{sT}, s{sXY}')
    a(f's_mul_i32 s{sT}, s{sT}, {14*1024}')
    a(f's_add_u32 s{sT}, s{sT}, {XNQ_OFF}')
    a(f's_mul_i32 s{sT+1}, s{sS}, {XNP_STEP}')
    a(f's_add_u32 s{sT+1}, s{sT+1}, {XNP_OFF}')
    for kb in range(14):
        x = FX + kb*8; y = x + 4
        q = TMP + 4*(kb & 1); pp = TMP + 8 + 4*(kb & 1)
        a(f'v_cvt_pk_bf16_f32 v{q}, v{x}, v{x+1}')
        a(f'v_cvt_pk_bf16_f32 v{q+1}, v{y}, v{y+1}')
        a(f'v_cvt_pk_bf16_f32 v{q+2}, v{x+2}, v{x+3}')
        a(f'v_cvt_pk_bf16_f32 v{q+3}, v{y+2}, v{y+3}')
        a(f'v_mov_b32 v{pp}, v{q}')
        a(f'v_mov_b32 v{pp+1}, v{q+2}')
        a(f'v_mov_b32 v{pp+2}, v{q+1}')
        a(f'v_mov_b32 v{pp+3}, v{q+3}')
        if kb*1024 >= 4096 and (kb*1024) % 4096 == 0: a(f's_add_u32 s{sT}, s{sT}, 4096')
        a(f'buffer_store_dwordx4 v[{q}:{q+3}], v{VQ}, {WS}, s{sT} offen offset:{(kb*1024) % 4096}')
        a(f's_add_u32 s{sT+2}, s{sT+1}, {4*kb*512}')
        a(f'buffer_store_dwordx2 v[{pp}:{pp+1}], v{VPO}, {WS}, s{sT+2} offen')
        a(f'buffer_store_dwordx2 v[{pp+2}:{pp+3}], v{VPO}, {WS}, s{sT+2} offen offset:512')
        if kb & 1: a('s_waitcnt vmcnt(0)')
    fill0 = MEMF_OFF + MEMF_STEP; filln = P_OFF + P_SZ - fill0
    per = (filln + 31) // 32; per = (per + 4095) // 4096 * 4096
    a(f'v_lshlrev_b32 v{TMP}, 4, v0')
    for r in range(4): a(f'v_mov_b32 v{TMP+4+r}, -1')
    a(f's_mul_i32 s{sT}, s{sQ}, {per}')
    a(f's_add_u32 s{sT}, s{sT}, {fill0}')
    a(f's_mov_b32 s{sT+1}, {P_OFF + P_SZ}')
    for it in range(per // 4096):
        a(f's_cmp_ge_u32 s{sT}, s{sT+1}')
        a(f's_cbranch_scc1 {L}_filled')
        a(f'buffer_store_dwordx4 v[{TMP+4}:{TMP+7}], v{TMP}, {WS}, s{sT} offen')
        a(f's_add_u32 s{sT}, s{sT}, 4096')
    a(f'{L}_filled:')
    assert filln % 4096 == 0 or True
    a(f's_cmp_lg_u32 s{sQ}, 0')
    a(f's_cbranch_scc1 {L}_exit')
    for rnd in range(2):
        a(f'v_add_u32 v{TMP+1}, {256*rnd}, v0')
        a(f'v_and_b32 v{TMP+2}, 7, v{TMP+1}')
        a(f'v_mul_u32_u24 v{TMP+2}, 896, v{TMP+2}')
        a(f'v_lshrrev_b32 v{TMP+3}, 3, v{TMP+1}')
        a(f'v_lshl_add_u32 v{TMP+2}, v{TMP+3}, 4, v{TMP+2}')
        a(f'v_lshlrev_b32 v{TMP+1}, 4, v{TMP+1}')
        a(f'v_cmp_gt_u32 vcc, 7168, v{TMP+1}')
        a(f's_and_saveexec_b64 s[{sT+2}:{sT+3}], vcc')
        a(f's_cbranch_execz {L}_m0skip{rnd}')
        a(f'buffer_load_dwordx4 v[{TMP+4}:{TMP+7}], v{TMP+2}, s[{M0_}:{M0_+3}], 0 offen')
        a('s_waitcnt vmcnt(0)')
        a(f's_mov_b32 s{sT}, {MEMF_OFF}')
        a(f'buffer_store_dwordx4 v[{TMP+4}:{TMP+7}], v{TMP+1}, {WS}, s{sT} offen')
        a(f'{L}_m0skip{rnd}:')
        a(f's_mov_b64 exec, s[{sT+2}:{sT+3}]')
    a(f'{L}_exit:')
    a('s_endpgm')

if __name__ == '__main__':
    a = Asm(); emit_prep(a)
    txt = assemble_file([('prep_kernel', 256, 256, 32768)], [('prep_kernel', a.text(), 256, 256)])
    open('prep.s', 'w').write(txt)
    import subprocess
    r = subprocess.run(['clang', '-x', 'assembler', '-target', 'amdgcn-amd-amdhsa', '-mcpu=gfx950', '-c', 'prep.s', '-o', 'prep.o'], capture_output=True, text=True)
    print(r.returncode, r.stderr[:3000], len(txt.splitlines()))
    print((P_OFF+P_SZ-MEMF_OFF-MEMF_STEP), (P_OFF+P_SZ-MEMF_OFF-MEMF_STEP) % 4096, (MEMF_OFF+MEMF_STEP) % 16)
```

```python
from common import *

WSR = 4
WS = f's[{WSR}:{WSR+3}]'
sW, sSEG, sSTR, sT = 24, 25, 26, 28

class LG:
    def __init__(self, a): self.a = a; self.q = []
    def op(self, text, tag=None): self.a(text); self.q.append(tag)
    def wait(self, tag):
        idx = max(i for i, t in enumerate(self.q) if t == tag)
        n = len(self.q) - 1 - idx
        self.a(f's_waitcnt lgkmcnt({min(n, 15)})')
        self.q = self.q[idx+1:] if n <= 15 else self.q[len(self.q)-15:]
    def waitall(self): self.a('s_waitcnt lgkmcnt(0)'); self.q = []
class VM:
    def __init__(self, a): self.a = a; self.q = []
    def op(self, text, tag=None): self.a(text); self.q.append(tag)
    def wait(self, tag):
        idxs = [i for i, t in enumerate(self.q) if t == tag]
        if not idxs: return
        idx = max(idxs); n = len(self.q) - 1 - idx
        self.a(f's_waitcnt vmcnt({min(n, 63)})')
        self.q = self.q[idx+1:]
    def waitall(self): self.a('s_waitcnt vmcnt(0)'); self.q = []

def role_prologue(a, L, ngrid):
    a(f'''
s_cmp_ge_u32 s2, {ngrid}
s_cbranch_scc1 {L}_exit
s_load_dwordx2 s[{WSR}:{WSR+1}], s[0:1], {KA_WS}
v_lshrrev_b32 v1, 6, v0
s_nop 0
v_readfirstlane_b32 s{sW}, v1
v_and_b32 v1, 63, v0
v_lshlrev_b32 v2, 4, v1
s_waitcnt lgkmcnt(0)''')
    srd_fin(a, WSR, WS_BYTES)

def divmod_small(a, sq, sr_, sx, d):
    m = (65536 + d - 1) // d
    for x in range(1024): assert (x*m) >> 16 == x // d, (x, d)
    a(f's_mul_i32 s{sq}, s{sx}, {m}')
    a(f's_lshr_b32 s{sq}, s{sq}, 16')
    a(f's_mul_i32 s{sr_}, s{sq}, {d}')
    a(f's_sub_u32 s{sr_}, s{sx}, s{sr_}')

def emit_U(a, nrep, L='RU', sc=''):
    role_prologue(a, L, 28*nrep)
    sCG, sREP = sT, sT+1
    divmod_small(a, sREP, sCG, 2, 28)
    a(f's_mov_b32 s{sSEG}, s{sREP}')
    VL, VL16 = 1, 2
    TK, STG, ACC, OUT = 4, 36, 64, 96
    VLW, VLR = 104, 105
    sTIX = sT+2
    a(f's_lshl_b32 s{sTIX}, s{sCG}, 4')
    a(f's_lshl_b32 s{sT+3}, s{sW}, 2')
    a(f's_add_u32 s{sTIX}, s{sTIX}, s{sT+3}')
    a(f's_mul_i32 s{sT+3}, s{sTIX}, 14336')
    a(f's_add_u32 s{sT+3}, s{sT+3}, {BF_OFF}')
    n = 0
    for i in range(4):
        for kb in range(14):
            off = (i*14+kb)*1024
            if off % 4096 == 0 and off > 0: a(f's_add_u32 s{sT+3}, s{sT+3}, 4096')
            b = (i*14+kb)*4
            a(f'buffer_load_dwordx4 a[{b}:{b+3}], v{VL16}, {WS}, s{sT+3} offen offset:{off % 4096}')
            n += 1
            if n % 32 == 0: a('s_waitcnt vmcnt(16)')
    a(f's_mul_i32 s{sT+3}, s{sW}, 7168')
    a(f'v_add_u32 v{VLW}, s{sT+3}, v{VL16}')
    a(f'v_mov_b32 v{VLR}, v{VL16}')
    sSRC = sT+4
    def stage_loads():
        a(f's_mul_i32 s{sSRC}, s{sSEG}, {XNQ_STEP}')
        a(f's_mul_i32 s{sT+5}, s{sW}, 7168')
        a(f's_add_u32 s{sSRC}, s{sSRC}, s{sT+5}')
        a(f's_add_u32 s{sSRC}, s{sSRC}, {XNQ_OFF}')
        a(f's_add_u32 s{sT+5}, s{sSRC}, 4096')
        for i in range(7):
            so = sSRC if i < 4 else sT+5
            a(f'buffer_load_dwordx4 v[{STG+4*i}:{STG+4*i+3}], v{VL16}, {WS}, s{so} offen offset:{(i*1024) % 4096}')
    def stage_write():
        for i in range(7):
            a(f'ds_write_b128 v{VLW}, v[{STG+4*i}:{STG+4*i+3}] offset:{i*1024}')
        a(f'v_xor_b32 v{VLW}, 0x8000, v{VLW}')
    stage_loads()
    a('s_waitcnt vmcnt(0)')
    stage_write()
    a('s_waitcnt lgkmcnt(0)')
    a('s_barrier')
    a(f'{L}_loop:')
    sCUR = sT+6
    a(f's_mov_b32 s{sCUR}, s{sSEG}')
    a(f's_add_u32 s{sSEG}, s{sSEG}, {nrep}')
    a(f's_cmp_ge_u32 s{sSEG}, 64')
    a(f's_cbranch_scc1 {L}_nopf')
    stage_loads()
    a(f'{L}_nopf:')
    lg = LG(a)
    def tkread(kb):
        b = TK + 8*(kb & 3)
        lg.op(f'ds_read_b128 v[{b}:{b+3}], v{VLR} offset:{kb*1024}', f'k{kb}')
        lg.op(f'ds_read_b128 v[{b+4}:{b+7}], v{VLR} offset:{(14+kb)*1024}', f'k{kb}')
    for kb in range(3): tkread(kb)
    for kb in range(14):
        lg.wait(f'k{kb}')
        b = TK + 8*(kb & 3)
        for i in range(4):
            for XY in range(2):
                d = ACC + (i*2+XY)*4
                c = '0' if kb == 0 else f'v[{d}:{d+3}]'
                wb = (i*14+kb)*4
                a(f'v_mfma_f32_16x16x32_bf16 v[{d}:{d+3}], v[{b+4*XY}:{b+4*XY+3}], a[{wb}:{wb+3}], {c}')
            if i == 1 and kb + 3 < 14: tkread(kb+3)
    a(f'v_xor_b32 v{VLR}, 0x8000, v{VLR}')
    a(f's_mul_i32 s{sT+7}, s{sCUR}, {UF_STEP}')
    a(f's_lshl_b32 s{sT+8}, s{sTIX}, 10')
    a(f's_add_u32 s{sT+7}, s{sT+7}, s{sT+8}')
    a(f's_add_u32 s{sT+7}, s{sT+7}, {UF_OFF}')
    a('s_nop 7')
    for i in range(4):
        x, y = ACC + i*8, ACC + i*8 + 4
        o = OUT + 4*(i & 1)
        a(f'v_cvt_pk_bf16_f32 v{o}, v{x}, v{x+1}')
        a(f'v_cvt_pk_bf16_f32 v{o+1}, v{x+2}, v{x+3}')
        a(f'v_cvt_pk_bf16_f32 v{o+2}, v{y}, v{y+1}')
        a(f'v_cvt_pk_bf16_f32 v{o+3}, v{y+2}, v{y+3}')
        a(f'buffer_store_dwordx4 v[{o}:{o+3}], v{VL16}, {WS}, s{sT+7} offen offset:{i*1024} {sc}')
        if i == 1: a('s_nop 2')
    a(f's_cmp_ge_u32 s{sSEG}, 64')
    a(f's_cbranch_scc1 {L}_done')
    a('s_waitcnt vmcnt(4)')
    stage_write()
    a('s_waitcnt lgkmcnt(0)')
    a('s_barrier')
    a(f's_branch {L}_loop')
    a(f'{L}_done:')
    a('s_waitcnt vmcnt(0)')
    a(f'{L}_exit:')
    a('s_endpgm')


def wbase(f): return ('a', 8*f) if f < 32 else ('v', 120+8*(f-32))
def whalf(f, rh):
    t, b = wbase(f); b += 4*rh; return f'{t}[{b}:{b+3}]'

def emit_X(a, nrep, L='RX', sc=''):
    role_prologue(a, L, 16*nrep)
    sH, sREP = sT, sT+1
    a(f's_and_b32 s{sH}, s2, 15')
    a(f's_lshr_b32 s{sSEG}, s2, 4')
    VL, VL16 = 1, 2
    TK, ACC = 4, 36
    VKX, VKM, VSW, VSR, VQ = 92, 93, 94, 95, 96
    T0 = 100
    sMSK = 48
    a(f's_mul_i32 s{sT+2}, s{sH}, 28')
    a(f's_mul_i32 s{sT+3}, s{sW}, 7')
    a(f's_add_u32 s{sT+2}, s{sT+2}, s{sT+3}')
    a(f's_mul_i32 s{sT+2}, s{sT+2}, {7*2048}')
    a(f's_add_u32 s{sT+2}, s{sT+2}, {AF_OFF}')
    n = 0
    for f in range(49):
        for rh in range(2):
            off = f*2048 + rh*1024
            if off % 4096 == 0 and off > 0: a(f's_add_u32 s{sT+2}, s{sT+2}, 4096')
            a(f'buffer_load_dwordx4 {whalf(f, rh)}, v{VL16}, {WS}, s{sT+2} offen offset:{off % 4096}')
            n += 1
            if n % 32 == 0: a('s_waitcnt vmcnt(16)')
    RHO, G, KEY = T0, T0+1, T0+2
    a(f'v_and_b32 v{RHO}, 15, v{VL}')
    a(f'v_lshrrev_b32 v{G}, 4, v{VL}')
    key_of_rho(a, KEY, RHO, T0+3, None)
    a(f's_mul_i32 s{sT+2}, s{sW}, {14*512}')
    a(f'v_lshrrev_b32 v{T0+3}, 1, v{G}')
    a(f'v_lshlrev_b32 v{T0+4}, 9, v{T0+3}')
    a(f'v_lshl_add_u32 v{T0+4}, v{KEY}, 4, v{T0+4}')
    a(f'v_and_b32 v{T0+5}, 1, v{G}')
    a(f'v_lshl_add_u32 v{T0+4}, v{T0+5}, 3, v{T0+4}')
    a(f'v_add_u32 v{VKX}, s{sT+2}, v{T0+4}')
    a(f's_mul_i32 s{sT+2}, s{sW}, {14*128}')
    a(f'v_lshlrev_b32 v{T0+4}, 7, v{T0+3}')
    a(f'v_and_b32 v{T0+6}, 7, v{RHO}')
    a(f'v_lshl_add_u32 v{T0+4}, v{T0+6}, 4, v{T0+4}')
    a(f'v_lshl_add_u32 v{T0+4}, v{T0+5}, 3, v{T0+4}')
    a(f'v_add_u32 v{VKM}, s{sT+2}, v{T0+4}')
    a(f's_mul_i32 s{sT+2}, s{sW}, 6144')
    a(f'v_add_u32 v{VSW}, s{sT+2}, v{VL16}')
    a(f's_and_b32 s{sT+2}, s{sW}, 1')
    a(f's_lshl_b32 s{sT+2}, s{sT+2}, 10')
    a(f'v_add_u32 v{VSR}, s{sT+2}, v{VL16}')
    a(f's_and_b32 s{sT+2}, s{sW}, 1')
    a(f's_lshl_b32 s{sT+2}, s{sT+2}, 1')
    a(f'v_add_u32 v{VQ}, s{sT+2}, v{KEY}')
    a(f'v_lshrrev_b32 v{T0+3}, 1, v{G}')
    a(f'v_lshlrev_b32 v{T0+3}, 4, v{T0+3}')
    a(f'v_and_b32 v{T0+4}, 1, v{G}')
    a(f'v_lshl_add_u32 v{T0+3}, v{T0+4}, 2, v{T0+3}')
    for Tp in range(2):
        for r in range(4):
            k = (r & 1) + 8*(r >> 1) + 2*Tp
            a(f'v_add_u32 v{T0+4}, {k}, v{T0+3}')
            m = sMSK + 2*(Tp*4+r)
            a(f'v_cmp_le_u32 s[{m}:{m+1}], v{T0+4}, v{VQ}')
    a('s_waitcnt vmcnt(0)')
    a(f'{L}_loop:')
    vm = VM(a)
    sXQ, sXP, sMF = sT+2, sT+3, sT+4
    a(f's_mul_i32 s{sXQ}, s{sSEG}, {XNQ_STEP}')
    a(f's_add_u32 s{sXQ}, s{sXQ}, {XNQ_OFF}')
    a(f's_mul_i32 s{sXP}, s{sSEG}, {XNP_STEP}')
    a(f's_add_u32 s{sXP}, s{sXP}, {XNP_OFF}')
    a(f's_mul_i32 s{sMF}, s{sSEG}, {MEMF_STEP}')
    a(f's_add_u32 s{sMF}, s{sMF}, {MEMF_OFF}')
    def tkload(kb):
        b = TK + 8*(kb & 3)
        a(f's_add_u32 s{sT+5}, s{sXQ}, {kb*1024}')
        vm.op(f'buffer_load_dwordx4 v[{b}:{b+3}], v{VL16}, {WS}, s{sT+5} offen', f'k{kb}')
        a(f's_add_u32 s{sT+5}, s{sXQ}, {(14+kb)*1024}')
        vm.op(f'buffer_load_dwordx4 v[{b+4}:{b+7}], v{VL16}, {WS}, s{sT+5} offen', f'k{kb}')
    for kb in range(3): tkload(kb)
    for kb in range(14):
        vm.wait(f'k{kb}')
        b = TK + 8*(kb & 3)
        for i in range(7):
            for XY in range(2):
                d = ACC + (i*2+XY)*4
                c = '0' if kb == 0 else f'v[{d}:{d+3}]'
                a(f'v_mfma_f32_16x16x32_bf16 v[{d}:{d+3}], {whalf(i*7 + kb//2, kb & 1)}, v[{b+4*XY}:{b+4*XY+3}], {c}')
            if i == 2 and kb + 3 < 14: tkload(kb+3)
    a('s_nop 7')
    for XY in range(2):
        for i in range(7):
            s_ = ACC + (i*2+XY)*4
            d = TK + XY*14 + (i//2)*4 + (i & 1)*2
            a(f'v_cvt_pk_bf16_f32 v{d}, v{s_}, v{s_+1}')
            a(f'v_cvt_pk_bf16_f32 v{d+1}, v{s_+2}, v{s_+3}')
    KB, K16, SA = ACC, ACC+24, ACC+32
    def keyload(sg):
        kb_ = KB + 12*(sg & 1) if sg < 3 else K16
        step = 4 if sg < 3 else 2
        a(f's_add_u32 s{sT+5}, s{sXP}, {sg*2048}')
        for Tp in range(2):
            d = kb_ + Tp*step
            vm.op(f'buffer_load_dwordx2 v[{d}:{d+1}], v{VKX}, {WS}, s{sT+5} offen offset:{Tp*32}', f's{sg}')
            if sg < 3: vm.op(f'buffer_load_dwordx2 v[{d+2}:{d+3}], v{VKX}, {WS}, s{sT+5} offen offset:{Tp*32+1024}', f's{sg}')
        d = kb_ + 2*step
        vm.op(f'buffer_load_dwordx2 v[{d}:{d+1}], v{VKM}, {WS}, s{sMF} offen offset:{sg*512} {"sc1" if sc else ""}', f's{sg}')
        if sg < 3: vm.op(f'buffer_load_dwordx2 v[{d+2}:{d+3}], v{VKM}, {WS}, s{sMF} offen offset:{sg*512+256} {"sc1" if sc else ""}', f's{sg}')
    keyload(0); keyload(1); keyload(3)
    for sg in range(4):
        vm.wait(f's{sg}')
        kb_ = KB + 12*(sg & 1) if sg < 3 else K16
        step = 4 if sg < 3 else 2
        for kt in range(3):
            for XY in range(2):
                d = SA + (kt*2+XY)*4
                c = '0' if sg == 0 else f'v[{d}:{d+3}]'
                ka = kb_ + kt*step; tb = TK + XY*14 + sg*4
                if sg < 3: a(f'v_mfma_f32_16x16x32_bf16 v[{d}:{d+3}], v[{ka}:{ka+3}], v[{tb}:{tb+3}], {c}')
                else: a(f'v_mfma_f32_16x16x16_bf16 v[{d}:{d+3}], v[{ka}:{ka+1}], v[{tb}:{tb+1}], {c}')
        if sg == 0: keyload(2)
    a('s_nop 7')
    for t in range(6):
        a(f'ds_write_b128 v{VSW}, v[{SA+4*t}:{SA+4*t+3}] offset:{t*1024}')
    a(f'v_xor_b32 v{VSW}, 0x8000, v{VSW}')
    a('s_waitcnt lgkmcnt(0)')
    a('s_barrier')
    a(f's_cmp_ge_u32 s{sW}, 2')
    a(f's_cbranch_scc1 {L}_next')
    R = ACC
    for w in range(4):
        for kt in range(3):
            b = R + w*12 + kt*4
            a(f'ds_read_b128 v[{b}:{b+3}], v{VSR} offset:{w*6144 + kt*2048}')
    a('s_waitcnt lgkmcnt(0)')
    for r in range(12):
        a(f'v_add_f32 v{R+r}, v{R+r}, v{R+12+r}')
        a(f'v_add_f32 v{R+24+r}, v{R+24+r}, v{R+36+r}')
    for r in range(12): a(f'v_add_f32 v{R+r}, v{R+r}, v{R+24+r}')
    NEG, MX, SM, TP = T0, T0+1, T0+2, T0+3
    a(f'v_mov_b32 v{NEG}, 0xff800000')
    for Tp in range(2):
        for r in range(4):
            m = sMSK + 2*(Tp*4+r)
            a(f'v_cndmask_b32 v{R+Tp*4+r}, v{NEG}, v{R+Tp*4+r}, s[{m}:{m+1}]')
    a(f'v_max3_f32 v{MX}, v{R}, v{R+1}, v{R+2}')
    for r in range(3, 11, 2): a(f'v_max3_f32 v{MX}, v{MX}, v{R+r}, v{R+r+1}')
    a(f'v_max_f32 v{MX}, v{MX}, v{R+11}')
    rowmax4(a, MX, TP)
    for r in range(12): a(f'v_sub_f32 v{R+r}, v{R+r}, v{MX}')
    for r in range(12): a(f'v_exp_f32 v{R+r}, v{R+r}')
    a('s_nop 0')
    a(f'v_add_f32 v{SM}, v{R+8}, v{R+9}')
    a(f'v_add_f32 v{TP}, v{R+10}, v{R+11}')
    a(f'v_add_f32 v{SM}, v{SM}, v{TP}')
    a(f'v_mov_b32 v{TP}, 0')
    a(f'v_cmp_gt_u32 vcc, 32, v{VL}')
    a('s_nop 1')
    a(f'v_cndmask_b32 v{SM}, v{TP}, v{SM}, vcc')
    for r in range(8): a(f'v_add_f32 v{SM}, v{SM}, v{R+r}')
    rowsum4(a, SM, TP)
    a(f'v_rcp_f32 v{SM}, v{SM}')
    a('s_nop 0')
    for r in range(12): a(f'v_mul_f32 v{R+r}, v{R+r}, v{SM}')
    O = R + 12
    for i in range(6): a(f'v_cvt_pk_bf16_f32 v{O+i}, v{R+2*i}, v{R+2*i+1}')
    a(f's_mul_i32 s{sT+5}, s{sSEG}, {PT_STEP}')
    a(f's_add_u32 s{sT+5}, s{sT+5}, {PT_OFF}')
    a(f's_lshl_b32 s{sT+6}, s{sH}, 1')
    a(f's_add_u32 s{sT+6}, s{sT+6}, s{sW}')
    a(f's_lshl_b32 s{sT+6}, s{sT+6}, 10')
    a(f's_add_u32 s{sT+6}, s{sT+6}, s{sT+5}')
    a(f'buffer_store_dwordx4 v[{O}:{O+3}], v{VL16}, {WS}, s{sT+6} offen {sc}')
    a(f's_lshr_b32 s{sT+6}, s{sH}, 1')
    a(f's_lshl_b32 s{sT+6}, s{sT+6}, 1')
    a(f's_add_u32 s{sT+6}, s{sT+6}, s{sW}')
    a(f's_lshl_b32 s{sT+6}, s{sT+6}, 10')
    a(f's_add_u32 s{sT+6}, s{sT+6}, s{sT+5}')
    a(f's_add_u32 s{sT+6}, s{sT+6}, {PTX_STEP}')
    a(f's_and_b32 s{sT+7}, s{sH}, 1')
    a(f's_lshl_b32 s{sT+7}, s{sT+7}, 2')
    a(f's_add_u32 s{sT+6}, s{sT+6}, s{sT+7}')
    a(f'buffer_store_dword v{O+4}, v{VL16}, {WS}, s{sT+6} offen {sc}')
    a(f'buffer_store_dword v{O+5}, v{VL16}, {WS}, s{sT+6} offen offset:8 {sc}')
    a(f'{L}_next:')
    a(f'v_xor_b32 v{VSR}, 0x8000, v{VSR}')
    a(f's_add_u32 s{sSEG}, s{sSEG}, {nrep}')
    a(f's_cmp_lt_u32 s{sSEG}, 64')
    a(f's_cbranch_scc1 {L}_loop')
    a('s_waitcnt vmcnt(0)')
    a(f'{L}_exit:')
    a('s_endpgm')

def emit_V(a, L='RV', sc=''):
    role_prologue(a, L, 64*14)
    XS_ = 8
    a(f's_load_dwordx2 s[{XS_}:{XS_+1}], s[0:1], {KA_X}')
    sJ = sT
    divmod_small(a, sSEG, sJ, 2, 14)
    a('s_waitcnt lgkmcnt(0)')
    srd_fin(a, XS_, 1835008)
    VL, VL16 = 1, 2
    UB, WB, PXB, PMB, ACC = 4, 36, 52, 84, 100
    T0 = 116
    vm = VM(a)
    ld = 'sc1' if sc else ''
    a(f's_mul_i32 s{sT+1}, s{sSEG}, {UF_STEP}')
    a(f's_lshl_b32 s{sT+2}, s{sW}, 2')
    a(f's_mul_i32 s{sT+2}, s{sT+2}, 28')
    a(f's_lshl_b32 s{sT+3}, s{sJ}, 1')
    a(f's_add_u32 s{sT+2}, s{sT+2}, s{sT+3}')
    a(f's_lshl_b32 s{sT+2}, s{sT+2}, 10')
    a(f's_add_u32 s{sT+1}, s{sT+1}, s{sT+2}')
    a(f's_add_u32 s{sT+1}, s{sT+1}, {UF_OFF}')
    for hh in range(4):
        a(f's_add_u32 s{sT+2}, s{sT+1}, {hh*28*1024}')
        for T in range(2):
            b = UB + (hh*2+T)*4
            vm.op(f'buffer_load_dwordx4 v[{b}:{b+3}], v{VL16}, {WS}, s{sT+2} offen offset:{T*1024} {ld}', 'u')
    a(f's_mul_i32 s{sT+1}, s{sSEG}, {W_STEP}')
    a(f's_lshl_b32 s{sT+2}, s{sJ}, 14')
    a(f's_add_u32 s{sT+1}, s{sT+1}, s{sT+2}')
    a(f's_lshl_b32 s{sT+2}, s{sW}, 12')
    a(f's_add_u32 s{sT+1}, s{sT+1}, s{sT+2}')
    a(f's_add_u32 s{sT+1}, s{sT+1}, {W_OFF}')
    for T in range(2):
        for pair in range(2):
            b = WB + (T*2+pair)*4
            vm.op(f'buffer_load_dwordx4 v[{b}:{b+3}], v{VL16}, {WS}, s{sT+1} offen offset:{(T*2+pair)*1024} {ld}', 'u')
    a(f's_mul_i32 s{sT+1}, s{sSEG}, {PT_STEP}')
    a(f's_add_u32 s{sT+1}, s{sT+1}, {PT_OFF}')
    a(f's_lshl_b32 s{sT+2}, s{sW}, 13')
    a(f's_add_u32 s{sT+2}, s{sT+2}, s{sT+1}')
    a(f's_add_u32 s{sT+3}, s{sT+2}, 4096')
    for hh in range(4):
        for XY in range(2):
            b = PXB + (hh*2+XY)*4; off = (hh*2+XY)*1024
            vm.op(f'buffer_load_dwordx4 v[{b}:{b+3}], v{VL16}, {WS}, s{sT+2 if off < 4096 else sT+3} offen offset:{off % 4096} {ld}', 'u')
    a(f's_lshl_b32 s{sT+2}, s{sW}, 12')
    a(f's_add_u32 s{sT+2}, s{sT+2}, s{sT+1}')
    a(f's_add_u32 s{sT+2}, s{sT+2}, {PTX_STEP}')
    for pair in range(2):
        for XY in range(2):
            b = PMB + (pair*2+XY)*4
            vm.op(f'buffer_load_dwordx4 v[{b}:{b+3}], v{VL16}, {WS}, s{sT+2} offen offset:{(pair*2+XY)*1024} {ld}', 'u')
    VROW, VX, VH, VST = T0, T0+1, T0+2, T0+3
    a(f'v_and_b32 v{T0+4}, 15, v{VL}')
    key_of_rho(a, VROW, T0+4, T0+5, None)
    a(f's_and_b32 s{sT+4}, s{sW}, 1')
    a(f's_lshl_b32 s{sT+4}, s{sT+4}, 1')
    a(f'v_add_u32 v{VROW}, s{sT+4}, v{VROW}')
    a(f's_lshr_b32 s{sT+5}, s{sW}, 1')
    a(f's_lshl_b32 s{sT+6}, s{sJ}, 1')
    a(f's_add_u32 s{sT+6}, s{sT+6}, s{sT+5}')
    a(f'v_lshrrev_b32 v{T0+4}, 4, v{VL}')
    a(f'v_mul_u32_u24 v{VX}, 896, v{VROW}')
    a(f'v_lshl_add_u32 v{VX}, v{T0+4}, 3, v{VX}')
    a(f's_lshl_b32 s{sT+7}, s{sT+6}, 5')
    a(f's_mul_i32 s{sT+8}, s{sSEG}, {32*896}')
    a(f's_add_u32 s{sT+7}, s{sT+7}, s{sT+8}')
    XV = T0+6
    vm.op(f'buffer_load_dwordx2 v[{XV}:{XV+1}], v{VX}, s[{XS_}:{XS_+3}], s{sT+7} offen', 'x')
    a(f'v_lshrrev_b32 v{T0+5}, 1, v{T0+4}')
    a(f'v_lshlrev_b32 v{VH}, 9, v{T0+5}')
    a(f'v_lshl_add_u32 v{VH}, v{VROW}, 4, v{VH}')
    a(f'v_and_b32 v{T0+5}, 1, v{T0+4}')
    a(f'v_lshl_add_u32 v{VH}, v{T0+5}, 3, v{VH}')
    vm.wait('u')
    for T in range(2):
        for XY in range(2):
            d = ACC + (T*2+XY)*4
            first = True
            for hh in range(4):
                ua = UB + (hh*2+T)*4; pb = PXB + (hh*2+XY)*4
                a(f'v_mfma_f32_16x16x32_bf16 v[{d}:{d+3}], v[{ua}:{ua+3}], v[{pb}:{pb+3}], {"0" if first else f"v[{d}:{d+3}]"}')
                first = False
            for pair in range(2):
                wa = WB + (T*2+pair)*4; pb = PMB + (pair*2+XY)*4
                a(f'v_mfma_f32_16x16x32_bf16 v[{d}:{d+3}], v[{wa}:{wa+3}], v[{pb}:{pb+3}], v[{d}:{d+3}]')
    a('s_nop 7')
    a(f's_lshl_b32 s{sT+9}, s{sW}, 12')
    a(f'v_add_u32 v4, s{sT+9}, v{VL16}')
    for t in range(4):
        a(f'ds_write_b128 v4, v[{ACC+4*t}:{ACC+4*t+3}] offset:{t*1024}')
    a('s_waitcnt lgkmcnt(0)')
    a('s_barrier')
    a(f's_lshl_b32 s{sT+9}, s{sW}, 10')
    a(f'v_add_u32 v4, s{sT+9}, v{VL16}')
    for w in range(4):
        a(f'ds_read_b128 v[{8+4*w}:{8+4*w+3}], v4 offset:{w*4096}')
    a('s_waitcnt lgkmcnt(0)')
    for r in range(4):
        a(f'v_add_f32 v{8+r}, v{8+r}, v{12+r}')
        a(f'v_add_f32 v{16+r}, v{16+r}, v{20+r}')
    for r in range(4): a(f'v_add_f32 v{8+r}, v{8+r}, v{16+r}')
    vm.wait('x')
    a(f'v_lshlrev_b32 v24, 16, v{XV}')
    a(f'v_and_b32 v25, 0xffff0000, v{XV}')
    a(f'v_lshlrev_b32 v26, 16, v{XV+1}')
    a(f'v_and_b32 v27, 0xffff0000, v{XV+1}')
    for r in range(4): a(f'v_add_f32 v{8+r}, v{8+r}, v{24+r}')
    a('v_cvt_pk_bf16_f32 v28, v8, v9')
    a('v_cvt_pk_bf16_f32 v29, v10, v11')
    a(f's_mul_i32 s{sT+9}, s{sSEG}, {HF_STEP}')
    a(f's_lshl_b32 s{sT+10}, s{sT+6}, 10')
    a(f's_add_u32 s{sT+9}, s{sT+9}, s{sT+10}')
    a(f's_add_u32 s{sT+9}, s{sT+9}, {HF_OFF}')
    a(f'buffer_store_dwordx2 v[28:29], v{VH}, {WS}, s{sT+9} offen {sc}')
    a('v_lshlrev_b32 v24, 16, v28')
    a('v_and_b32 v25, 0xffff0000, v28')
    a('v_lshlrev_b32 v26, 16, v29')
    a('v_and_b32 v27, 0xffff0000, v29')
    a('v_add_f32 v30, v24, v25')
    a('v_add_f32 v31, v26, v27')
    a('v_add_f32 v30, v30, v31')
    a('v_mul_f32 v31, v24, v24')
    for r in range(1, 4): a(f'v_fmac_f32 v31, v{24+r}, v{24+r}')
    rowsum4(a, 30, 32); rowsum4(a, 31, 32)
    a(f'v_lshlrev_b32 v32, 8, v{VROW}')
    a(f's_mul_i32 s{sT+9}, s{sSEG}, {ST_STEP}')
    a(f's_lshl_b32 s{sT+10}, s{sT+6}, 3')
    a(f's_add_u32 s{sT+9}, s{sT+9}, s{sT+10}')
    a(f's_add_u32 s{sT+9}, s{sT+9}, {ST_OFF}')
    a('v_cmp_gt_u32 vcc, 16, v1')
    a(f's_and_saveexec_b64 s[{sT+12}:{sT+13}], vcc')
    a(f'buffer_store_dwordx2 v[30:31], v32, {WS}, s{sT+9} offen {sc}')
    a(f's_mov_b64 exec, s[{sT+12}:{sT+13}]')
    a('s_waitcnt vmcnt(0)')
    a(f'{L}_exit:')
    a('s_endpgm')


def emit_F1(a, nrep, L='RF', sc=''):
    role_prologue(a, L, 14*nrep)
    WG_, WU_ = 8, 12
    a(f's_load_dwordx2 s[{WG_}:{WG_+1}], s[0:1], {KA_WG}')
    a(f's_load_dwordx2 s[{WU_}:{WU_+1}], s[0:1], {KA_WU}')
    sFG = sT
    divmod_small(a, sSEG, sFG, 2, 14)
    a('s_waitcnt lgkmcnt(0)')
    srd_fin(a, WG_, 1605632); srd_fin(a, WU_, 1605632)
    VL, VL16 = 1, 2
    ld = 'sc1' if sc else ''
    RAW = 8
    VG, VW, VR = 3, 4, 5
    a(f'v_lshrrev_b32 v{VG}, 2, v{VL}')
    a(f'v_mul_u32_u24 v{VG}, 3584, v{VG}')
    a(f'v_and_b32 v6, 3, v{VL}')
    a(f'v_lshl_add_u32 v{VG}, v6, 4, v{VG}')
    a(f's_mul_i32 s{sT+1}, s{sW}, 28672')
    a(f'v_add_u32 v{VW}, s{sT+1}, v{VL16}')
    a(f'v_lshrrev_b32 v6, 4, v{VL}')
    a(f'v_lshlrev_b32 v6, 3, v6')
    a(f'v_bfe_u32 v7, v{VL}, 2, 2')
    a(f'v_add_u32 v6, v6, v7')
    a(f'v_lshlrev_b32 v6, 6, v6')
    a(f'v_and_b32 v7, 3, v{VL}')
    a(f'v_lshl_add_u32 v6, v7, 3, v6')
    a(f'v_add_u32 v{VR}, s{sT+1}, v6')
    a(f's_lshl_b32 s{sT+2}, s{sFG}, 8')
    a(f's_lshl_b32 s{sT+3}, s{sW}, 6')
    a(f's_add_u32 s{sT+2}, s{sT+2}, s{sT+3}')
    for m, srdm in enumerate((WG_, WU_)):
        for kb in range(14):
            for half in range(2):
                a(f's_add_u32 s{sT+3}, s{sT+2}, {(32*kb + 16*half)*3584}')
                b = RAW + (kb*2+half)*4
                a(f'buffer_load_dwordx4 v[{b}:{b+3}], v{VG}, s[{srdm}:{srdm+3}], s{sT+3} offen')
        a('s_waitcnt vmcnt(0)')
        for kb in range(14):
            for half in range(2):
                b = RAW + (kb*2+half)*4
                a(f'ds_write_b128 v{VW}, v[{b}:{b+3}] offset:{kb*2048 + half*1024}')
        a('s_waitcnt lgkmcnt(0)')
        for tt in range(2):
            for kb in range(14):
                d = ((m*2+tt)*14+kb)*4
                a(f'ds_read_b64_tr_b16 a[{d}:{d+1}], v{VR} offset:{kb*2048 + tt*32}')
                a(f'ds_read_b64_tr_b16 a[{d+2}:{d+3}], v{VR} offset:{kb*2048 + tt*32 + 256}')
            a('s_waitcnt lgkmcnt(0)')
    TK, STG, ACC, CS, STAT, OUT = 4, 36, 64, 96, 112, 116
    ONE = 8
    for r in range(4): a(f'v_mov_b32 v{ONE+r}, 0x3f803f80')
    a('s_nop 1')
    for t in range(4):
        for kb in range(14):
            d = CS + 4*t; wb = (t*14+kb)*4
            a(f'v_mfma_f32_16x16x32_bf16 v[{d}:{d+3}], a[{wb}:{wb+3}], v[{ONE}:{ONE+3}], {"0" if kb == 0 else f"v[{d}:{d+3}]"}')
    a('s_barrier')
    VLW, VLR, VHB, VST = 124, 125, 126, 127
    SR = 128
    T0 = 160
    a(f's_mul_i32 s{sT+1}, s{sW}, 7168')
    a(f'v_add_u32 v{VLW}, s{sT+1}, v{VL16}')
    a(f'v_mov_b32 v{VLR}, v{VL16}')
    a(f'v_lshrrev_b32 v{T0}, 4, v{VL}')
    a(f'v_and_b32 v{T0+1}, 15, v{VL}')
    a(f'v_lshlrev_b32 v{VHB}, 9, v{T0}')
    a(f'v_lshl_add_u32 v{VHB}, v{T0+1}, 4, v{VHB}')
    a(f'v_lshlrev_b32 v{VST}, 8, v{T0+1}')
    a(f'v_lshl_add_u32 v{VST}, v{T0}, 3, v{VST}')
    sFD = 64
    for i in range(7):
        a(f's_mul_i32 s{sT+1}, s{sW}, 7')
        a(f's_add_u32 s{sT+1}, s{sT+1}, {i}')
        a(f's_cmp_ge_u32 s{sT+1}, 14')
        a(f's_cselect_b32 s{sT+2}, 1, 0')
        a(f's_mul_i32 s{sT+3}, s{sT+2}, 14')
        a(f's_sub_u32 s{sT+1}, s{sT+1}, s{sT+3}')
        a(f's_lshl_b32 s{sT+1}, s{sT+1}, 11')
        a(f's_lshl_b32 s{sT+2}, s{sT+2}, 8')
        a(f's_add_u32 s{sFD+i}, s{sT+1}, s{sT+2}')
    def stage_loads():
        a(f's_mul_i32 s{sT+4}, s{sSEG}, {HF_STEP}')
        a(f's_add_u32 s{sT+4}, s{sT+4}, {HF_OFF}')
        for i in range(7):
            a(f's_add_u32 s{sT+5}, s{sT+4}, s{sFD+i}')
            a(f'buffer_load_dwordx4 v[{STG+4*i}:{STG+4*i+3}], v{VHB}, {WS}, s{sT+5} offen {ld}')
    def stat_loads():
        a(f's_mul_i32 s{sT+4}, s{sSEG}, {ST_STEP}')
        a(f's_add_u32 s{sT+4}, s{sT+4}, {ST_OFF}')
        a(f's_add_u32 s{sT+5}, s{sT+4}, 4096')
        for T in range(2):
            for i in range(7):
                b = SR + (T*7+i)*2
                a(f'buffer_load_dwordx2 v[{b}:{b+1}], v{VST}, {WS}, s{sT+4 if T == 0 else sT+5} offen offset:{i*32} {ld}')
    def stage_write():
        for i in range(7):
            a(f'ds_write_b128 v{VLW}, v[{STG+4*i}:{STG+4*i+3}] offset:{i*1024}')
        a(f'v_xor_b32 v{VLW}, 0x8000, v{VLW}')
    stage_loads()
    a('s_waitcnt vmcnt(0)')
    stage_write()
    a('s_waitcnt lgkmcnt(0)')
    a('s_barrier')
    a(f'{L}_loop:')
    sCUR = sT+6
    stat_loads()
    a(f's_mov_b32 s{sCUR}, s{sSEG}')
    a(f's_add_u32 s{sSEG}, s{sSEG}, {nrep}')
    a(f's_cmp_ge_u32 s{sSEG}, 64')
    a(f's_cbranch_scc1 {L}_nopf')
    stage_loads()
    a(f'{L}_nopf:')
    lg = LG(a)
    def tkread(kb):
        b = TK + 8*(kb & 3)
        lg.op(f'ds_read_b128 v[{b}:{b+3}], v{VLR} offset:{kb*1024}', f'k{kb}')
        lg.op(f'ds_read_b128 v[{b+4}:{b+7}], v{VLR} offset:{(14+kb)*1024}', f'k{kb}')
    for kb in range(3): tkread(kb)
    for kb in range(14):
        lg.wait(f'k{kb}')
        b = TK + 8*(kb & 3)
        for t in range(4):
            for T in range(2):
                d = ACC + (t*2+T)*4
                c = '0' if kb == 0 else f'v[{d}:{d+3}]'
                wb = (t*14+kb)*4
                a(f'v_mfma_f32_16x16x32_bf16 v[{d}:{d+3}], a[{wb}:{wb+3}], v[{b+4*T}:{b+4*T+3}], {c}')
            if t == 1 and kb + 3 < 14: tkread(kb+3)
    a(f'v_xor_b32 v{VLR}, 0x8000, v{VLR}')
    a('s_waitcnt vmcnt(7)')
    a(f's_cmp_lt_u32 s{sSEG}, 64')
    a(f's_cbranch_scc1 {L}_st')
    a('s_waitcnt vmcnt(0)')
    a(f'{L}_st:')
    for T in range(2):
        b = SR + T*14
        for i in range(1, 7):
            a(f'v_add_f32 v{b}, v{b}, v{b+2*i}')
            a(f'v_add_f32 v{b+1}, v{b+1}, v{b+2*i+1}')
        rowsum4(a, b, T0); rowsum4(a, b+1, T0)
        a(f'v_mul_f32 v{b}, {hex(f32(1/448))}, v{b}')
        a(f'v_mul_f32 v{b+1}, {hex(f32(1/448))}, v{b+1}')
        a(f'v_fma_f32 v{b+1}, -v{b}, v{b}, v{b+1}')
        a(f'v_max_f32 v{b+1}, 0, v{b+1}')
        a(f'v_add_f32 v{b+1}, {hex(f32(1e-5))}, v{b+1}')
        a(f'v_rsq_f32 v{STAT+2*T}, v{b+1}')
        a('s_nop 0')
        a(f'v_mul_f32 v{STAT+2*T+1}, v{STAT+2*T}, v{b}')
    a(f's_mul_i32 s{sT+7}, s{sCUR}, {ACT_STEP}')
    a(f's_lshl_b32 s{sT+8}, s{sFG}, 2')
    a(f's_add_u32 s{sT+8}, s{sT+8}, s{sW}')
    a(f's_lshl_b32 s{sT+8}, s{sT+8}, 10')
    a(f's_add_u32 s{sT+7}, s{sT+7}, s{sT+8}')
    a(f's_add_u32 s{sT+7}, s{sT+7}, {ACT_OFF}')
    E = T0+2
    for T in range(2):
        R_, RM = STAT+2*T, STAT+2*T+1
        for tt in range(2):
            g = ACC + (tt*2+T)*4; u = ACC + ((2+tt)*2+T)*4
            for r in range(4):
                a(f'v_mul_f32 v{E+r}, v{RM}, v{CS+4*tt+r}')
                a(f'v_fma_f32 v{g+r}, v{R_}, v{g+r}, -v{E+r}')
                a(f'v_mul_f32 v{E+r}, v{RM}, v{CS+4*(2+tt)+r}')
                a(f'v_fma_f32 v{u+r}, v{R_}, v{u+r}, -v{E+r}')
            for r in range(4): a(f'v_mul_f32 v{E+r}, {hex(f32(-LOG2E))}, v{g+r}')
            for r in range(4): a(f'v_exp_f32 v{E+r}, v{E+r}')
            a('s_nop 0')
            for r in range(4): a(f'v_add_f32 v{E+r}, 1.0, v{E+r}')
            for r in range(4): a(f'v_rcp_f32 v{E+r}, v{E+r}')
            for r in range(4): a(f'v_mul_f32 v{g+r}, v{g+r}, v{u+r}')
            for r in range(4): a(f'v_mul_f32 v{g+r}, v{g+r}, v{E+r}')
            o = T0 + 8 + 4*T + 2*tt
            a(f'v_cvt_pk_bf16_f32 v{o}, v{g}, v{g+1}')
            a(f'v_cvt_pk_bf16_f32 v{o+1}, v{g+2}, v{g+3}')
        o = T0 + 8 + 4*T
        if T == 1: a(f's_add_u32 s{sT+7}, s{sT+7}, {56*1024}')
        a(f'buffer_store_dwordx4 v[{o}:{o+3}], v{VL16}, {WS}, s{sT+7} offen {sc}')
    a(f's_cmp_ge_u32 s{sSEG}, 64')
    a(f's_cbranch_scc1 {L}_done')
    a('s_waitcnt vmcnt(2)')
    stage_write()
    a('s_waitcnt lgkmcnt(0)')
    a('s_barrier')
    a(f's_branch {L}_loop')
    a(f'{L}_done:')
    a('s_waitcnt vmcnt(0)')
    a(f'{L}_exit:')
    a('s_endpgm')

def emit_F2(a, nrep, L='RG', sc=''):
    role_prologue(a, L, 7*nrep)
    WD_, OUT_ = 8, 12
    a(f's_load_dwordx2 s[{WD_}:{WD_+1}], s[0:1], {KA_WD}')
    a(f's_load_dwordx2 s[{OUT_}:{OUT_+1}], s[0:1], {KA_OUT}')
    sCG = sT
    divmod_small(a, sSEG, sCG, 2, 7)
    a('s_waitcnt lgkmcnt(0)')
    srd_fin(a, WD_, 1605632); srd_fin(a, OUT_, 1835008)
    VL, VL16 = 1, 2
    ld = 'sc1' if sc else ''
    RAW = 8
    VG, VW, VR = 3, 4, 5
    a(f'v_lshrrev_b32 v{VG}, 3, v{VL}')
    a(f'v_mul_u32_u24 v{VG}, 896, v{VG}')
    a(f'v_and_b32 v6, 7, v{VL}')
    a(f'v_lshl_add_u32 v{VG}, v6, 4, v{VG}')
    a(f's_mul_i32 s{sT+1}, s{sW}, 28672')
    a(f'v_add_u32 v{VW}, s{sT+1}, v{VL16}')
    a(f'v_lshrrev_b32 v6, 4, v{VL}')
    a(f'v_lshlrev_b32 v6, 2, v6')
    a(f'v_bfe_u32 v7, v{VL}, 2, 2')
    a(f'v_add_u32 v6, v6, v7')
    a(f'v_lshlrev_b32 v6, 7, v6')
    a(f'v_and_b32 v7, 3, v{VL}')
    a(f'v_lshl_add_u32 v6, v7, 3, v6')
    a(f'v_add_u32 v{VR}, s{sT+1}, v6')
    a(f's_mul_i32 s{sT+2}, s{sW}, {14*32*896}')
    a(f's_lshl_b32 s{sT+3}, s{sCG}, 7')
    a(f's_add_u32 s{sT+2}, s{sT+2}, s{sT+3}')
    for bt in range(2):
        for k7 in range(7):
            kf = bt*7 + k7
            for q4 in range(4):
                a(f's_add_u32 s{sT+3}, s{sT+2}, {(32*kf + 8*q4)*896}')
                b = RAW + (k7*4+q4)*4
                a(f'buffer_load_dwordx4 v[{b}:{b+3}], v{VG}, s[{WD_}:{WD_+3}], s{sT+3} offen')
        a('s_waitcnt vmcnt(0)')
        for k7 in range(7):
            for q4 in range(4):
                b = RAW + (k7*4+q4)*4
                a(f'ds_write_b128 v{VW}, v[{b}:{b+3}] offset:{k7*4096 + q4*1024}')
        a('s_waitcnt lgkmcnt(0)')
        for i in range(4):
            for k7 in range(7):
                d = (i*14 + bt*7 + k7)*4
                a(f'ds_read_b64_tr_b16 a[{d}:{d+1}], v{VR} offset:{k7*4096 + i*32}')
                a(f'ds_read_b64_tr_b16 a[{d+2}:{d+3}], v{VR} offset:{k7*4096 + i*32 + 2048}')
            a('s_waitcnt lgkmcnt(0)')
    a('s_barrier')
    TK, ACC, T0 = 4, 36, 72
    VRW, VRR, VHO, VOO = 68, 69, 70, 71
    a(f's_lshl_b32 s{sT+1}, s{sW}, 13')
    a(f'v_add_u32 v{VRW}, s{sT+1}, v{VL16}')
    a(f's_lshl_b32 s{sT+1}, s{sW}, 11')
    a(f'v_add_u32 v{VRR}, s{sT+1}, v{VL16}')
    a(f'v_and_b32 v{T0}, 15, v{VL}')
    a(f'v_lshrrev_b32 v{T0+1}, 4, v{VL}')
    a(f'v_lshrrev_b32 v{T0+2}, 1, v{T0+1}')
    a(f'v_lshlrev_b32 v{VHO}, 9, v{T0+2}')
    a(f'v_lshl_add_u32 v{VHO}, v{T0}, 4, v{VHO}')
    a(f'v_and_b32 v{T0+2}, 1, v{T0+1}')
    a(f'v_lshl_add_u32 v{VHO}, v{T0+2}, 3, v{VHO}')
    a(f'v_mul_u32_u24 v{VOO}, 896, v{T0}')
    a(f'v_lshl_add_u32 v{VOO}, v{T0+1}, 3, v{VOO}')
    sCT = sT+1
    a(f's_lshl_b32 s{sCT}, s{sCG}, 2')
    a(f's_add_u32 s{sCT}, s{sCT}, s{sW}')
    a(f'{L}_loop:')
    vm = VM(a)
    sAC = sT+2
    a(f's_mul_i32 s{sAC}, s{sSEG}, {ACT_STEP}')
    a(f's_mul_i32 s{sT+3}, s{sW}, {14*1024}')
    a(f's_add_u32 s{sAC}, s{sAC}, s{sT+3}')
    a(f's_add_u32 s{sAC}, s{sAC}, {ACT_OFF}')
    def tkload(kf):
        b = TK + 8*(kf & 3)
        a(f's_add_u32 s{sT+3}, s{sAC}, {kf*1024}')
        vm.op(f'buffer_load_dwordx4 v[{b}:{b+3}], v{VL16}, {WS}, s{sT+3} offen {ld}', f'k{kf}')
        a(f's_add_u32 s{sT+3}, s{sAC}, {(56+kf)*1024}')
        vm.op(f'buffer_load_dwordx4 v[{b+4}:{b+7}], v{VL16}, {WS}, s{sT+3} offen {ld}', f'k{kf}')
    for kf in range(3): tkload(kf)
    HV = T0 + 4
    a(f's_mul_i32 s{sT+4}, s{sSEG}, {HF_STEP}')
    a(f's_lshl_b32 s{sT+5}, s{sCT}, 10')
    a(f's_add_u32 s{sT+4}, s{sT+4}, s{sT+5}')
    a(f's_add_u32 s{sT+4}, s{sT+4}, {HF_OFF}')
    for T in range(2):
        vm.op(f'buffer_load_dwordx2 v[{HV+2*T}:{HV+2*T+1}], v{VHO}, {WS}, s{sT+4} offen offset:{T*256} {ld}', 'h')
    for kf in range(14):
        vm.wait(f'k{kf}')
        b = TK + 8*(kf & 3)
        for i in range(4):
            for T in range(2):
                d = ACC + (i*2+T)*4
                c = '0' if kf == 0 else f'v[{d}:{d+3}]'
                wb = (i*14+kf)*4
                a(f'v_mfma_f32_16x16x32_bf16 v[{d}:{d+3}], a[{wb}:{wb+3}], v[{b+4*T}:{b+4*T+3}], {c}')
            if i == 1 and kf + 3 < 14: tkload(kf+3)
    a('s_nop 7')
    for t in range(8):
        a(f'ds_write_b128 v{VRW}, v[{ACC+4*t}:{ACC+4*t+3}] offset:{t*1024}')
    a(f'v_xor_b32 v{VRW}, 0x8000, v{VRW}')
    a('s_waitcnt lgkmcnt(0)')
    a('s_barrier')
    for T in range(2):
        for w in range(4):
            b = ACC + (T*4+w)*4
            a(f'ds_read_b128 v[{b}:{b+3}], v{VRR} offset:{w*8192 + T*1024}')
    a(f'v_xor_b32 v{VRR}, 0x8000, v{VRR}')
    a('s_waitcnt lgkmcnt(0)')
    vm.waitall()
    a(f's_mul_i32 s{sT+4}, s{sSEG}, {32*896}')
    a(f's_lshl_b32 s{sT+5}, s{sCT}, 5')
    a(f's_add_u32 s{sT+4}, s{sT+4}, s{sT+5}')
    X = T0 + 8
    for T in range(2):
        b = ACC + T*16
        for r in range(4):
            a(f'v_add_f32 v{b+r}, v{b+r}, v{b+4+r}')
            a(f'v_add_f32 v{b+8+r}, v{b+8+r}, v{b+12+r}')
        for r in range(4): a(f'v_add_f32 v{b+r}, v{b+r}, v{b+8+r}')
        a(f'v_lshlrev_b32 v{X}, 16, v{HV+2*T}')
        a(f'v_and_b32 v{X+1}, 0xffff0000, v{HV+2*T}')
        a(f'v_lshlrev_b32 v{X+2}, 16, v{HV+2*T+1}')
        a(f'v_and_b32 v{X+3}, 0xffff0000, v{HV+2*T+1}')
        for r in range(4): a(f'v_add_f32 v{b+r}, v{b+r}, v{X+r}')
        a(f'v_cvt_pk_bf16_f32 v{X+4+2*T}, v{b}, v{b+1}')
        a(f'v_cvt_pk_bf16_f32 v{X+5+2*T}, v{b+2}, v{b+3}')
        if T == 1: a(f's_add_u32 s{sT+4}, s{sT+4}, {16*896}')
        a(f'buffer_store_dwordx2 v[{X+4+2*T}:{X+5+2*T}], v{VOO}, s[{OUT_}:{OUT_+3}], s{sT+4} offen')
    a(f's_add_u32 s{sSEG}, s{sSEG}, {nrep}')
    a(f's_cmp_lt_u32 s{sSEG}, 64')
    a(f's_cbranch_scc1 {L}_loop')
    a('s_waitcnt vmcnt(0)')
    a(f'{L}_exit:')
    a('s_endpgm')

if __name__ == '__main__':
    import subprocess
    for name, fn in [('u_kernel', lambda a: emit_U(a, 9))]:
        a = Asm(); fn(a)
        txt = assemble_file([(name, 252, 256, 65536)], [(name, a.text(), 512, 256)])
        open('r.s', 'w').write(txt)
        r = subprocess.run(['clang', '-x', 'assembler', '-target', 'amdgcn-amd-amdhsa', '-mcpu=gfx950', '-c', 'r.s', '-o', 'r.o'], capture_output=True, text=True)
        print(name, r.returncode, r.stderr[:3000], len(txt.splitlines()))
```

```python
class Asm:
    def __init__(self):
        self.lines = []
        self._lab = 0
    def __call__(self, s):
        for l in s.strip('\n').split('\n'):
            self.lines.append(l)
        return self
    def label(self, name): self.lines.append(name + ':')
    def newlabel(self, p='L'):
        self._lab += 1
        return f'{p}_{self._lab}'
    def text(self): return '\n'.join(self.lines) + '\n'

def vr(base, n=1):
    return f'v{base}' if n == 1 else f'v[{base}:{base+n-1}]'
def ar(base, n=1):
    return f'a{base}' if n == 1 else f'a[{base}:{base+n-1}]'
def sr(base, n=1):
    return f's{base}' if n == 1 else f's[{base}:{base+n-1}]'

def header(kernel, grid, block, lds):
    return f'''; @launch grid=({grid},1,1) block=({block},1,1) lds={lds}
.amdgcn_target "amdgcn-amd-amdhsa--gfx950"
.text
.globl {kernel}
.p2align 8
.type {kernel},@function
{kernel}:
'''
def footer(kernel, nv=256, ns=102, accum=256, kernarg=112):
    return f'''
.section .rodata,"a"
.p2align 6
.amdhsa_kernel {kernel}
  .amdhsa_next_free_vgpr {nv}
  .amdhsa_next_free_sgpr {ns}
  .amdhsa_accum_offset {accum}
  .amdhsa_group_segment_fixed_size 0
  .amdhsa_kernarg_size {kernarg}
  .amdhsa_user_sgpr_count 2
  .amdhsa_user_sgpr_kernarg_segment_ptr 1
  .amdhsa_system_sgpr_workgroup_id_x 1
.end_amdhsa_kernel
'''

class Regs:
    def __init__(self, lo, hi):
        self.lo, self.hi, self.next = lo, hi, lo
        self.map = {}
    def alloc(self, name, n=1, align=1):
        b = (self.next + align - 1) // align * align
        if b + n > self.hi: raise RuntimeError(f'out of regs allocating {name} ({n}) at {b}, hi={self.hi}')
        self.map[name] = (b, n); self.next = b + n
        return b
    def alias(self, name, base, n=1):
        self.map[name] = (base, n); return base
```

```python
from common import *
import prep, roles, chain
KN = 'sequential_preLN__memory_aug_recurrent_mem_tr__swiglu_ffn__prompt'
def build_v1(stamps=False):
    bodies = []; L = []
    a = Asm(); prep.emit_prep(a); bodies.append(('prep_kernel', a.text(), 256, 256)); L.append(('prep_kernel', 256, 256, 32768))
    a = Asm(); roles.emit_U(a, 9); bodies.append(('u_kernel', a.text(), 512, 256)); L.append(('u_kernel', 252, 256, 65536))
    cfg = chain.Cfg(); cfg.stamps = stamps
    t, lds = chain.gen_chain_body(cfg); bodies.append(('chain_kernel', t, 512, 256)); L.append(('chain_kernel', 256, 256, lds))
    a = Asm(); roles.emit_X(a, 16); bodies.append(('x_kernel', a.text(), 512, 256)); L.append(('x_kernel', 256, 256, 65536))
    a = Asm(); roles.emit_V(a); bodies.append(('v_kernel', a.text(), 128, 128)); L.append(('v_kernel', 896, 256, 16384))
    a = Asm(); roles.emit_F1(a, 16); bodies.append(('f1_kernel', a.text(), 512, 256)); L.append(('f1_kernel', 224, 256, 114688))
    a = Asm(); roles.emit_F2(a, 32); bodies.append(('f2_kernel', a.text(), 512, 256)); L.append(('f2_kernel', 224, 256, 114688))
    return assemble_file(L, bodies), L
if __name__ == '__main__':
    txt, L = build_v1()
    hdr = open(f'cdna_kernels/{KN}.s.ref').read().split('\n')
    keep = [l for l in hdr if l.startswith(';') and '@launch' not in l and 'Override launch' not in l and 'grid=ceil' not in l]
    keep = keep[:17]
    out = '\n'.join(keep) + '\n' + txt
    open(f'cdna_kernels/{KN}.s', 'w').write(out)
    print(len(out), 'bytes')
```

```python
import sys
sys.path.insert(0, 'tools'); sys.path.insert(0, 'gen')
from adsl import *
from layout import *

NA, NB = 16, 14
NCHAIN = NA + NB
SPIN_MAX = 20000

S_WS = 4
S_DBG = 8
S_STEP = 12
S_ROLE = 13
S_WAVE = 14
S_J = 15
S_MEMF = 16
S_P = 17
S_NXT = 18
S_W = 19
S_T0 = 20
S_SPIN = 28
S_M0 = 29
S_D0 = 30
S_D1 = 31
S_EXEC = 32
S_TS = 40
NSTAMP = 8
TS_LDS = 147456
WS = f's[{S_WS}:{S_WS+3}]'

class Cfg:
    stamps = False
    warm = True
    wstore = True
    fused = False
    warm_ahead = 1
    nsteps = 63

def stamp(a, cfg, k):
    if cfg.stamps:
        a(f's_memtime s[{S_TS+2*k}:{S_TS+2*k+1}]')
        if k == 0: a(f's_memrealtime s[{S_TS+14}:{S_TS+15}]')

def stamp_flush(a, cfg, vt):
    if not cfg.stamps: return
    a('s_waitcnt lgkmcnt(0)')
    a(f's_lshl_b32 s{S_T0}, s{S_WAVE}, 6')
    a(f's_add_u32 s{S_T0}, s{S_T0}, s{S_STEP}')
    a(f's_lshl_b32 s{S_T0}, s{S_T0}, 5')
    a(f's_add_u32 s{S_T0}, s{S_T0}, {TS_LDS}')
    a(f's_mov_b64 s[{S_EXEC}:{S_EXEC+1}], exec')
    a(f's_mov_b64 exec, 1')
    a(f'v_mov_b32 v{vt}, s{S_T0}')
    for k in range(NSTAMP):
        a(f'v_mov_b32 v{vt+1}, s{S_TS+2*k}')
        a(f'ds_write_b32 v{vt}, v{vt+1} offset:{4*k}')
    a('s_waitcnt lgkmcnt(0)')
    a(f's_mov_b64 exec, s[{S_EXEC}:{S_EXEC+1}]')

def stamp_store(a, cfg, vl16, vt):
    if not cfg.stamps: return
    a('s_waitcnt lgkmcnt(0)')
    a(f's_lshl_b32 s{S_T0}, s{S_WAVE}, 11')
    a(f's_add_u32 s{S_T0+1}, s{S_T0}, {TS_LDS}')
    a(f'v_add_u32 v{vt+4}, s{S_T0+1}, v{vl16}')
    a(f's_lshl_b32 s{S_T0+1}, s{S_ROLE}, 13')
    a(f's_add_u32 s{S_T0}, s{S_T0}, s{S_T0+1}')
    a(f's_add_u32 s{S_T0}, s{S_T0}, {TS_OFF}')
    for i in range(2):
        a(f'ds_read_b128 v[{vt}:{vt+3}], v{vt+4} offset:{i*1024}')
        a('s_waitcnt lgkmcnt(0)')
        a(f'buffer_store_dwordx4 v[{vt}:{vt+3}], v{vl16}, {WS}, s{S_T0} offen offset:{i*1024}')
        a('s_waitcnt vmcnt(0)')

def prologue_common(a, L_exit):
    a(f'''
s_cmp_ge_u32 s2, 256
s_cbranch_scc1 {L_exit}
s_load_dwordx2 s[{S_DBG}:{S_DBG+1}], s[0:1], 96
s_load_dwordx2 s[{S_WS}:{S_WS+1}], s[0:1], 104
s_getreg_b32 s{S_T0}, hwreg(HW_REG_XCC_ID)
s_and_b32 s{S_T0}, s{S_T0}, 15
v_lshrrev_b32 v1, 6, v0
s_nop 0
v_readfirstlane_b32 s{S_WAVE}, v1
s_waitcnt lgkmcnt(0)
s_and_b32 s{S_WS+1}, s{S_WS+1}, 0xffff
s_mov_b32 s{S_WS+2}, {WS_BYTES}
s_mov_b32 s{S_WS+3}, 0x20000
s_and_b32 s{S_DBG+1}, s{S_DBG+1}, 0xffff
s_mov_b32 s{S_DBG+2}, 256
s_mov_b32 s{S_DBG+3}, 0x20000
s_cmp_lg_u32 s{S_WAVE}, 0
s_cbranch_scc1 Lel_wait
s_lshl_b32 s{S_T0+1}, s{S_T0}, 2
v_mov_b32 v2, s{S_T0+1}
v_mov_b32 v3, 1
s_mov_b64 s[{S_EXEC}:{S_EXEC+1}], exec
s_mov_b64 exec, 1
buffer_atomic_add v3, v2, s[{S_DBG}:{S_DBG+3}], 0 offen sc0
s_waitcnt vmcnt(0)
v_readfirstlane_b32 s{S_T0+2}, v3
s_nop 3
s_cmp_ge_u32 s{S_T0+2}, {NCHAIN}
s_cbranch_scc1 Lel_none
s_cmp_lg_u32 s{S_T0+2}, {NCHAIN-1}
s_cbranch_scc1 Lel_poll
s_add_u32 s{S_T0+3}, s{S_T0}, 1
v_mov_b32 v4, s{S_T0+3}
v_mov_b32 v5, 0
v_mov_b32 v2, 32
buffer_atomic_cmpswap v[4:5], v2, s[{S_DBG}:{S_DBG+3}], 0 offen sc0
s_waitcnt vmcnt(0)
Lel_poll:
s_mov_b32 s{S_SPIN}, 0
v_mov_b32 v2, 32
Lel_spin:
buffer_load_dword v3, v2, s[{S_DBG}:{S_DBG+3}], 0 offen sc1
s_waitcnt vmcnt(0)
v_readfirstlane_b32 s{S_T0+3}, v3
s_add_u32 s{S_SPIN}, s{S_SPIN}, 1
s_cmp_gt_u32 s{S_SPIN}, {SPIN_MAX}
s_cbranch_scc1 Lel_none
s_cmp_eq_u32 s{S_T0+3}, 0
s_cbranch_scc1 Lel_spin
s_add_u32 s{S_T0+1}, s{S_T0}, 1
s_cmp_eq_u32 s{S_T0+3}, s{S_T0+1}
s_cbranch_scc1 Lel_pub
Lel_none:
s_mov_b32 s{S_T0+2}, 255
Lel_pub:
v_mov_b32 v3, s{S_T0+2}
v_mov_b32 v2, 0
ds_write_b32 v2, v3
s_waitcnt lgkmcnt(0)
s_mov_b64 exec, s[{S_EXEC}:{S_EXEC+1}]
Lel_wait:
s_barrier
v_mov_b32 v2, 0
ds_read_b32 v3, v2
s_waitcnt lgkmcnt(0)
v_readfirstlane_b32 s{S_ROLE}, v3
s_nop 3
s_barrier
s_cmp_ge_u32 s{S_ROLE}, {NCHAIN}
s_cbranch_scc1 {L_exit}
''')

def chain_wait(a, L, off, target, vt):
    a(f's_cmp_lg_u32 s{S_WAVE}, 0')
    a(f's_cbranch_scc1 {L}_w')
    a(f'v_mov_b32 v{vt}, {off}')
    a(f's_mov_b32 s{S_SPIN}, 0')
    a(f'{L}_p:')
    a(f'buffer_load_dword v{vt+1}, v{vt}, {WS}, 0 offen sc1')
    a('s_waitcnt vmcnt(0)')
    a(f'v_readfirstlane_b32 s{S_T0}, v{vt+1}')
    a(f's_add_u32 s{S_SPIN}, s{S_SPIN}, 1')
    a('s_nop 1')
    a(f's_cmp_ge_u32 s{S_T0}, {target}')
    a(f's_cbranch_scc1 {L}_w')
    a(f's_cmp_gt_u32 s{S_SPIN}, {SPIN_MAX}')
    a(f's_cbranch_scc1 {L}_w')
    a('s_sleep 2')
    a(f's_branch {L}_p')
    a(f'{L}_w:')
    a('s_barrier')
def chain_signal(a, base, sseg, vt):
    a(f's_lshl_b32 s{S_T0+1}, s{sseg}, 7')
    a(f's_add_u32 s{S_T0+1}, s{S_T0+1}, {base}')
    a(f'v_mov_b32 v{vt}, s{S_T0+1}')
    a(f'v_mov_b32 v{vt+1}, 1')
    a('s_mov_b64 exec, 1')
    a(f'buffer_atomic_add v{vt+1}, v{vt}, {WS}, 0 offen')
    a('s_mov_b64 exec, -1')

def wbase(f): return ('a', 8*f) if f < 32 else ('v', 120+8*(f-32))
def wfrag(f):
    t, b = wbase(f); return f'{t}[{b}:{b+7}]'
def wfrag_half(f, rh):
    t, b = wbase(f); b += 4*rh; return f'{t}[{b}:{b+3}]'

def load_weights(a, nfrag, s_base, vl16):
    n = 0
    for f in range(nfrag):
        for rh in range(2):
            off = f*2048 + rh*1024
            if off % 4096 == 0 and off > 0:
                a(f's_add_u32 s{s_base}, s{s_base}, 4096')
            a(f'buffer_load_dwordx4 {wfrag_half(f, rh)}, v{vl16}, {WS}, s{s_base} offen offset:{off % 4096}')
            n += 1
            if n % 32 == 0: a('s_waitcnt vmcnt(16)')
    a('s_waitcnt vmcnt(0)')

def poll_mem(a, vaddr, vdata, lab):
    a(f's_mov_b32 s{S_SPIN}, 0')
    a(f'{lab}:')
    a(f'buffer_load_dwordx4 v[{vdata}:{vdata+3}], v{vaddr}, {WS}, s{S_MEMF} offen sc1')
    a(f'buffer_load_dwordx4 v[{vdata+4}:{vdata+7}], v{vaddr+1}, {WS}, s{S_MEMF} offen sc1')
    a(f's_add_u32 s{S_SPIN}, s{S_SPIN}, 1')
    a(f's_cmp_gt_u32 s{S_SPIN}, {SPIN_MAX}')
    a(f's_cbranch_scc1 {lab}_out')
    a(f's_waitcnt vmcnt(0)')
    t = vdata + 8
    a(f'v_max3_u32 v{t}, v{vdata}, v{vdata+1}, v{vdata+2}')
    a(f'v_max3_u32 v{t+1}, v{vdata+3}, v{vdata+4}, v{vdata+5}')
    a(f'v_max3_u32 v{t}, v{t}, v{vdata+6}, v{vdata+7}')
    a(f'v_max_u32 v{t}, v{t}, v{t+1}')
    a(f'v_cmp_eq_u32 vcc, -1, v{t}')
    a(f's_cbranch_vccnz {lab}')
    a(f'{lab}_out:')
    a(f's_waitcnt vmcnt(0)')

def setup_common(a, R):
    VL, VL16, VIDX, VPA = R.alloc('VL'), R.alloc('VL16'), R.alloc('VIDX'), R.alloc('VPA', 2)
    a(f'v_and_b32 v{VL}, 63, v0')
    a(f'v_lshlrev_b32 v{VL16}, 4, v{VL}')
    a(f'v_and_b32 v{VIDX}, 8, v{VL}')
    a(f'v_cmp_ne_u32 vcc, 0, v{VIDX}')
    a(f'v_mov_b32 v{VIDX}, 0x4444')
    a(f'v_mov_b32 v{VPA}, 0xeeee')
    a(f'v_cndmask_b32 v{VIDX}, v{VIDX}, v{VPA}, vcc')
    a(f's_lshl_b32 s{S_T0}, s{S_WAVE}, 1')
    a(f's_min_u32 s{S_T0+1}, s{S_T0}, 6')
    a(f's_add_u32 s{S_T0}, s{S_T0}, 1')
    a(f's_min_u32 s{S_T0+2}, s{S_T0}, 6')
    a(f's_lshl_b32 s{S_T0+1}, s{S_T0+1}, 10')
    a(f's_lshl_b32 s{S_T0+2}, s{S_T0+2}, 10')
    a(f'v_add_u32 v{VPA}, s{S_T0+1}, v{VL16}')
    a(f'v_add_u32 v{VPA+1}, s{S_T0+2}, v{VL16}')
    return VL, VL16, VIDX, VPA


class LG:
    def __init__(self, a): self.a = a; self.q = []
    def op(self, text, tag=None):
        self.a(text); self.q.append(tag)
    def wait(self, tag):
        idx = max(i for i, t in enumerate(self.q) if t == tag)
        n = len(self.q) - 1 - idx
        self.a(f's_waitcnt lgkmcnt({min(n, 15)})')
        self.q = self.q[idx+1:] if n <= 15 else self.q[len(self.q)-15:]
    def waitall(self):
        self.a('s_waitcnt lgkmcnt(0)'); self.q = []

A_MEML, A_TT, A_SP = 0, 7168, 21504

def emit_A(a, cfg, L_exit):
    R = Regs(0, 120)
    R.next = 1
    a('; ================= A side =================')
    VL, VL16, VIDX, VPA = setup_common(a, R)
    VKM, VKM2, VXG, VXG2 = R.alloc('VKM'), R.alloc('VKM2'), R.alloc('VXG'), R.alloc('VXG2')
    VTW, VTR, VTRB = R.alloc('VTW'), R.alloc('VTR'), R.alloc('VTRB')
    VSPE, VSPF, VSR, VPX = R.alloc('VSPE'), R.alloc('VSPF'), R.alloc('VSR'), R.alloc('VPX')
    IDN = R.alloc('IDN', 2, 2)
    VPM = 0
    MS = R.alloc('MS', 28, 2); KX = R.alloc('KX', 28, 2); KM = R.alloc('KM', 14, 2)
    ACC = R.alloc('ACC', 8, 2); CV = R.alloc('CV', 4, 2); TA = R.alloc('TA', 4, 2); SA = R.alloc('SA', 12, 2)
    assert CV == ACC + 8
    VWA, VSINK = R.alloc('VWA'), R.alloc('VSINK')
    a(f's_mul_i32 s{S_T0}, s{S_ROLE}, 28')
    a(f's_mul_i32 s{S_T0+1}, s{S_WAVE}, 7')
    a(f's_add_u32 s{S_T0}, s{S_T0}, s{S_T0+1}')
    a(f's_mul_i32 s{S_T0}, s{S_T0}, {7*2048}')
    a(f's_add_u32 s{S_T0}, s{S_T0}, {AF_OFF}')
    load_weights(a, 49, S_T0, VL16)
    TJ, TG, TX, TY, CQ, RP = MS, MS+1, MS+2, MS+3, MS+4, MS+5
    a(f'v_and_b32 v{TJ}, 15, v{VL}')
    a(f'v_lshrrev_b32 v{TG}, 4, v{VL}')
    a(f's_mul_i32 s{S_T0}, s{S_WAVE}, {14*128}')
    a(f's_add_u32 s{S_T0}, s{S_T0}, {A_MEML}')
    a(f'v_and_b32 v{TX}, 7, v{TJ}')
    a(f'v_lshlrev_b32 v{TX}, 4, v{TX}')
    a(f'v_lshlrev_b32 v{TY}, 7, v{TG}')
    a(f'v_add3_u32 v{VKM}, v{TX}, v{TY}, s{S_T0}')
    a(f'v_lshrrev_b32 v{TY}, 1, v{TG}')
    a(f'v_lshlrev_b32 v{TY}, 7, v{TY}')
    a(f'v_add3_u32 v{VKM2}, v{TX}, v{TY}, s{S_T0}')
    a(f'v_and_b32 v{TY}, 1, v{TG}')
    a(f'v_lshlrev_b32 v{TY}, 3, v{TY}')
    a(f'v_add_u32 v{VKM2}, v{VKM2}, v{TY}')
    a(f'v_add_u32 v{VKM2}, {12*128}, v{VKM2}')
    a(f's_mul_i32 s{S_T0}, s{S_WAVE}, 7168')
    a(f'v_lshlrev_b32 v{TX}, 4, v{TJ}')
    a(f'v_lshlrev_b32 v{TY}, 9, v{TG}')
    a(f'v_add3_u32 v{VXG}, v{TX}, v{TY}, s{S_T0}')
    a(f'v_lshrrev_b32 v{TY}, 1, v{TG}')
    a(f'v_lshlrev_b32 v{TY}, 9, v{TY}')
    a(f'v_add3_u32 v{VXG2}, v{TX}, v{TY}, s{S_T0}')
    a(f'v_and_b32 v{TY}, 1, v{TG}')
    a(f'v_lshlrev_b32 v{TY}, 3, v{TY}')
    a(f'v_add_u32 v{VXG2}, v{VXG2}, v{TY}')
    a(f'v_add_u32 v{VXG2}, {12*512}, v{VXG2}')
    a(f's_mul_i32 s{S_T0}, s{S_WAVE}, 3584')
    a(f's_add_u32 s{S_T0}, s{S_T0}, {A_TT}')
    a(f'v_lshrrev_b32 v{TX}, 1, v{TG}')
    a(f'v_lshlrev_b32 v{TX}, 5, v{TX}')
    a(f'v_lshl_add_u32 v{TX}, v{TJ}, 3, v{TX}')
    a(f'v_and_b32 v{TX}, 127, v{TX}')
    a(f'v_lshlrev_b32 v{TY}, 7, v{TG}')
    a(f'v_add3_u32 v{VTW}, v{TX}, v{TY}, s{S_T0}')
    a(f'v_and_b32 v{CQ}, 3, v{VL}')
    a(f'v_bfe_u32 v{RP}, v{VL}, 2, 2')
    def traddr(dst, cl_extra):
        a(f'v_and_b32 v{TX}, 1, v{TG}')
        a(f'v_lshlrev_b32 v{TX}, 3, v{TX}')
        a(f'v_add_u32 v{TX}, v{TX}, v{RP}')
        if cl_extra: a(f'v_add_u32 v{TX}, {cl_extra}, v{TX}')
        a(f'v_lshlrev_b32 v{TX}, 3, v{TX}')
        a(f'v_lshrrev_b32 v{TY}, 1, v{CQ}')
        a(f'v_lshl_add_u32 v{TX}, v{TY}, 5, v{TX}')
        a(f'v_and_b32 v{TX}, 127, v{TX}')
        a(f'v_lshl_add_u32 v{TX}, v{CQ}, 7, v{TX}')
        a(f'v_lshrrev_b32 v{TY}, 1, v{TG}')
        a(f'v_lshl_add_u32 v{TX}, v{TY}, 9, v{TX}')
        a(f'v_add_u32 v{dst}, s{S_T0}, v{TX}')
    traddr(VTR, 0); traddr(VTRB, 4)
    a(f'v_lshlrev_b32 v{TX}, 2, v{TG}')
    a(f'v_sub_u32 v{TX}, v{TJ}, v{TX}')
    for half in range(2):
        a(f'v_cmp_eq_u32 vcc, {2*half}, v{TX}')
        a(f'v_mov_b32 v{TY}, 0x3f80')
        a(f'v_mov_b32 v{CQ}, 0')
        a(f'v_cndmask_b32 v{IDN+half}, v{CQ}, v{TY}, vcc')
        a(f'v_cmp_eq_u32 vcc, {2*half+1}, v{TX}')
        a(f'v_mov_b32 v{TY}, 0x3f800000')
        a(f's_nop 0')
        a(f'v_cndmask_b32 v{CQ}, v{CQ}, v{TY}, vcc')
        a(f'v_or_b32 v{IDN+half}, v{IDN+half}, v{CQ}')
    a(f's_mul_i32 s{S_T0}, s{S_WAVE}, 1536')
    a(f's_add_u32 s{S_T0}, s{S_T0}, {A_SP}')
    a(f'v_and_b32 v{TX}, 1, v{TG}')
    a(f'v_mul_u32_u24 v{TX}, {4*192}, v{TX}')
    a(f'v_lshrrev_b32 v{TY}, 5, v{VL}')
    a(f'v_lshlrev_b32 v{CQ}, 6, v{TY}')
    a(f'v_lshl_add_u32 v{CQ}, v{TJ}, 2, v{CQ}')
    a(f'v_add3_u32 v{VSPE}, v{TX}, v{CQ}, s{S_T0}')
    a(f'v_mul_u32_u24 v{TY}, 192, v{TY}')
    a(f'v_lshl_add_u32 v{TY}, v{TJ}, 2, v{TY}')
    a(f'v_add3_u32 v{VSPF}, v{TX}, v{TY}, s{S_T0}')
    a(f'v_add_u32 v{VSPF}, 128, v{VSPF}')
    a(f'v_lshrrev_b32 v{TX}, 3, v{VL}')
    a(f'v_and_b32 v{TY}, 7, v{VL}')
    a(f'v_mul_u32_u24 v{CQ}, 192, v{TX}')
    a(f'v_lshl_add_u32 v{VSR}, v{TY}, 4, v{CQ}')
    a(f'v_add_u32 v{VSR}, {A_SP}, v{VSR}')
    a(f'v_lshrrev_b32 v{CQ}, 1, v{TY}')
    a(f'v_lshlrev_b32 v{RP}, 7, v{CQ}')
    a(f'v_lshl_add_u32 v{RP}, v{TX}, 4, v{RP}')
    a(f'v_and_b32 v{TJ}, 1, v{TY}')
    a(f'v_lshl_add_u32 v{RP}, v{TJ}, 3, v{RP}')
    a(f's_lshl_b32 s{S_T0}, s{S_ROLE}, 9')
    a(f'v_add_u32 v{VPX}, s{S_T0}, v{RP}')
    a(f'v_lshlrev_b32 v{RP}, 2, v{CQ}')
    a(f'v_lshl_add_u32 v{RP}, v{TX}, 4, v{RP}')
    a(f's_lshl_b32 s{S_T0}, s{S_ROLE}, 7')
    a(f's_add_u32 s{S_T0}, s{S_T0}, 8192')
    a(f'v_add_u32 v{VPM}, s{S_T0}, v{RP}')
    a(f'v_mul_u32_u24 v{CQ}, 192, v{TX}')
    a(f'v_lshl_add_u32 v{VL}, v{TY}, 2, v{CQ}')
    a(f'v_add_u32 v{VL}, {A_SP+128}, v{VL}')
    VSM = VL
    a(f's_mov_b32 s{S_STEP}, 0')
    a(f's_mov_b32 s{S_MEMF}, {MEMF_OFF}')
    a(f's_mov_b32 s{S_P}, {P_OFF}')
    a(f's_mov_b32 s{S_NXT}, {XNP_OFF}')
    a(f'v_lshlrev_b32 v{VWA}, 2, v{VL16}')
    a(f's_lshl_b32 s{S_T0}, s{S_ROLE}, 2')
    a(f's_add_u32 s{S_T0}, s{S_T0}, s{S_WAVE}')
    a(f's_mul_i32 s{S_T0}, s{S_T0}, 7168')
    a(f's_add_u32 s{S_W}, s{S_T0}, {UF_OFF + cfg.warm_ahead*UF_STEP}')
    def warm(i):
        if cfg.warm:
            if i == 0:
                a(f'buffer_load_dword v{VSINK}, v{VWA}, {WS}, s{S_W} offen sc1')
            else:
                a(f's_add_u32 s{S_T0}, s{S_W}, 4096')
                a(f'buffer_load_dword v{VSINK}, v{VWA}, {WS}, s{S_T0} offen sc1')
                a(f's_add_u32 s{S_W}, s{S_W}, {UF_STEP}')
    def kx_load():
        a(f's_add_u32 s{S_T0}, s{S_NXT}, 4096')
        for T in range(2):
            for sg in range(3):
                off = sg*2048 + T*256
                so = S_NXT if off < 4096 else S_T0
                a(f'buffer_load_dwordx4 v[{KX+14*T+4*sg}:{KX+14*T+4*sg+3}], v{VXG}, {WS}, s{so} offen offset:{off % 4096}')
            a(f'buffer_load_dwordx2 v[{KX+14*T+12}:{KX+14*T+13}], v{VXG2}, {WS}, s{S_NXT} offen offset:{T*256}')
        a(f's_add_u32 s{S_NXT}, s{S_NXT}, {XNP_STEP}')
    if cfg.fused: chain_wait(a, 'LA_ud', FL_UDONE, 224, MS)
    kx_load()
    a('LA_loop:')
    stamp(a, cfg, 0)
    poll_mem(a, VPA, ACC, 'LA_poll')
    stamp(a, cfg, 1)
    a(f'ds_write_b128 v{VPA}, v[{ACC}:{ACC+3}] offset:{A_MEML}')
    a(f'ds_write_b128 v{VPA+1}, v[{ACC+4}:{ACC+7}] offset:{A_MEML}')
    a('s_waitcnt lgkmcnt(0)')
    a('s_barrier')
    lg = LG(a)
    for kk in range(7):
        lg.op(f'ds_read_b128 v[{MS+4*kk}:{MS+4*kk+3}], v{VL16} offset:{A_MEML+kk*1024}', f'ms{kk}')
    for r in range(0, 8, 2): a(f'v_mov_b64 v[{ACC+r}:{ACC+r+1}], 0')
    stamp(a, cfg, 2)
    def acc(tt): return ACC + 4*(tt & 1)
    keys = [KM, KX, KX+14]
    def s_mfma1(sg, T):
        ta = TA if sg < 3 else CV+2
        c = '0' if sg == 0 else f'v[{SA+4*T}:{SA+4*T+3}]'
        if sg < 3:
            a(f'v_mfma_f32_16x16x32_bf16 v[{SA+4*T}:{SA+4*T+3}], v[{ta}:{ta+3}], v[{keys[T]+4*sg}:{keys[T]+4*sg+3}], {c}')
        else:
            a(f'v_mfma_f32_16x16x16_bf16 v[{SA+4*T}:{SA+4*T+3}], v[{ta}:{ta+1}], v[{keys[T]+12}:{keys[T]+13}], {c}')
    F = {}
    def add(tt, kk, fn): F.setdefault((tt, kk), []).append(fn)
    for sg in range(3):
        add(0, 2+sg, (lambda sg=sg: lg.op(f'ds_read_b128 v[{KM+4*sg}:{KM+4*sg+3}], v{VKM} offset:{sg*512}', 'km')))
    add(0, 5, lambda: lg.op(f'ds_read_b64 v[{KM+12}:{KM+13}], v{VKM2}', 'km'))
    add(1, 0, lambda: warm(0))
    add(1, 5, lambda: warm(1))
    for tt in range(1, 7):
        p = tt - 1; cv = CV + 2*(p & 1)
        add(tt, 2, (lambda p=p, cv=cv: a(f'v_cvt_pk_bf16_f32 v{cv}, v{acc(p)}, v{acc(p)+1}')))
        add(tt, 2, (lambda p=p, cv=cv: a(f'v_cvt_pk_bf16_f32 v{cv+1}, v{acc(p)+2}, v{acc(p)+3}')))
        add(tt, 3, (lambda p=p, cv=cv: lg.op(f'ds_write_b64 v{VTW}, v[{cv}:{cv+1}] offset:{p*512}', 'tw')))
        if tt < 6:
            add(tt, 3, (lambda p=p: a(f'v_mov_b64 v[{acc(p)}:{acc(p)+1}], 0')))
            add(tt, 4, (lambda p=p: a(f'v_mov_b64 v[{acc(p)+2}:{acc(p)+3}], 0')))
        if tt in (2, 4, 6):
            sg = tt//2 - 1; ta = TA
            add(tt, 4, (lambda sg=sg, ta=ta: lg.op(f'ds_read_b64_tr_b16 v[{ta}:{ta+1}], v{VTR} offset:{sg*1024}', f'tr{sg}')))
            add(tt, 5, (lambda sg=sg, ta=ta: lg.op(f'ds_read_b64_tr_b16 v[{ta+2}:{ta+3}], v{VTRB} offset:{sg*1024}', f'tr{sg}')))
        if tt in (3, 5):
            sg = tt//2 - 1
            add(tt, 4, (lambda sg=sg: (lg.wait(f'tr{sg}'), s_mfma1(sg, 0))))
            add(tt, 5, (lambda sg=sg: s_mfma1(sg, 1)))
            add(tt, 6, (lambda sg=sg: s_mfma1(sg, 2)))
    for tt in range(7):
        for kk in range(7):
            if tt == 0: lg.wait(f'ms{kk}')
            a(f'v_smfmac_f32_16x16x64_bf16 v[{acc(tt)}:{acc(tt)+3}], v[{MS+4*kk}:{MS+4*kk+3}], {wfrag(tt*7+kk)}, v{VIDX}')
            for fn in F.get((tt, kk), []): fn()
    stamp(a, cfg, 3)
    a('s_nop 7')
    a(f'v_cvt_pk_bf16_f32 v{CV}, v{acc(6)}, v{acc(6)+1}')
    a(f'v_cvt_pk_bf16_f32 v{CV+1}, v{acc(6)+2}, v{acc(6)+3}')
    a('s_nop 1')
    a(f'v_mfma_f32_16x16x16_bf16 v[{ACC+4}:{ACC+7}], v[{CV}:{CV+1}], v[{IDN}:{IDN+1}], 0')
    lg.wait('tr2')
    for T in range(3): s_mfma1(2, T)
    a(f'v_cvt_pk_bf16_f32 v{CV+2}, v{ACC+4}, v{ACC+5}')
    a(f'v_cvt_pk_bf16_f32 v{CV+3}, v{ACC+6}, v{ACC+7}')
    a('s_nop 1')
    for T in range(3): s_mfma1(3, T)
    a('s_nop 5')
    a(f'v_permlane32_swap_b32 v{SA}, v{SA+1}')
    a(f'v_permlane32_swap_b32 v{SA+2}, v{SA+3}')
    a(f'v_add_f32 v{SA}, v{SA}, v{SA+1}')
    a(f'v_add_f32 v{SA+2}, v{SA+2}, v{SA+3}')
    lg.op(f'ds_write_b32 v{VSPF}, v{SA}')
    lg.op(f'ds_write_b32 v{VSPF}, v{SA+2} offset:{2*192}')
    for r in range(4):
        a(f'v_permlane32_swap_b32 v{SA+4+r}, v{SA+8+r}')
    for r in range(4):
        a(f'v_add_f32 v{SA+4+r}, v{SA+4+r}, v{SA+8+r}')
        lg.op(f'ds_write_b32 v{VSPE}, v{SA+4+r} offset:{r*192}')
    lg.waitall()
    a('s_barrier')
    stamp(a, cfg, 4)
    a(f's_cmp_lg_u32 s{S_WAVE}, 0')
    a('s_cbranch_scc1 LA_next')
    X = MS; Mv = MS + 16; T0, T1 = MS + 20, MS + 21
    for w in range(4):
        a(f'ds_read_b128 v[{X+4*w}:{X+4*w+3}], v{VSR} offset:{w*1536}')
        a(f'ds_read_b32 v{Mv+w}, v{VSM} offset:{w*1536}')
    a('s_waitcnt lgkmcnt(4)')
    for r in range(4): a(f'v_add_f32 v{X+r}, v{X+r}, v{X+4+r}')
    a(f'v_add_f32 v{Mv}, v{Mv}, v{Mv+1}')
    a('s_waitcnt lgkmcnt(0)')
    for r in range(4): a(f'v_add_f32 v{X+8+r}, v{X+8+r}, v{X+12+r}')
    a(f'v_add_f32 v{Mv+2}, v{Mv+2}, v{Mv+3}')
    for r in range(4): a(f'v_add_f32 v{X+r}, v{X+r}, v{X+8+r}')
    a(f'v_add_f32 v{Mv}, v{Mv}, v{Mv+2}')
    a(f'v_max3_f32 v{T0}, v{X}, v{X+1}, v{X+2}')
    a(f'v_max3_f32 v{T0}, v{T0}, v{X+3}, v{Mv}')
    for ctl in ('quad_perm:[1,0,3,2]', 'quad_perm:[2,3,0,1]', 'row_half_mirror'):
        a('s_nop 1')
        a(f'v_max_f32_dpp v{T0}, v{T0}, v{T0} {ctl} row_mask:0xf bank_mask:0xf')
    for r in range(4): a(f'v_sub_f32 v{X+r}, v{X+r}, v{T0}')
    a(f'v_sub_f32 v{Mv}, v{Mv}, v{T0}')
    for r in range(4): a(f'v_exp_f32 v{X+r}, v{X+r}')
    a(f'v_exp_f32 v{Mv}, v{Mv}')
    a(f'v_add_f32 v{T0}, v{X}, v{X+1}')
    a(f'v_add_f32 v{T1}, v{X+2}, v{X+3}')
    a(f'v_add_f32 v{T0}, v{T0}, v{Mv}')
    a(f'v_add_f32 v{T0}, v{T0}, v{T1}')
    for ctl in ('quad_perm:[1,0,3,2]', 'quad_perm:[2,3,0,1]', 'row_half_mirror'):
        a('s_nop 1')
        a(f'v_add_f32_dpp v{T0}, v{T0}, v{T0} {ctl} row_mask:0xf bank_mask:0xf')
    a(f'v_rcp_f32 v{T0}, v{T0}')
    a('s_nop 0')
    for r in range(4): a(f'v_mul_f32 v{X+r}, v{X+r}, v{T0}')
    a(f'v_mul_f32 v{Mv}, v{Mv}, v{T0}')
    a(f'v_cvt_pk_bf16_f32 v{X+4}, v{X}, v{X+1}')
    a(f'v_cvt_pk_bf16_f32 v{X+5}, v{X+2}, v{X+3}')
    a(f'v_mov_b32_dpp v{T1}, v{Mv} quad_perm:[1,0,3,2] row_mask:0xf bank_mask:0xf')
    a(f'v_and_b32 v{X+4}, 0x7fff7fff, v{X+4}')
    a(f'v_and_b32 v{X+5}, 0x7fff7fff, v{X+5}')
    a(f'buffer_store_dwordx2 v[{X+4}:{X+5}], v{VPX}, {WS}, s{S_P} offen')
    a(f'v_cvt_pk_bf16_f32 v{X+6}, v{Mv}, v{T1}')
    a(f'v_and_b32 v{X+6}, 0x7fff7fff, v{X+6}')
    a(f's_mov_b32 s{S_EXEC}, 0x55555555')
    a(f's_mov_b32 s{S_EXEC+1}, 0x55555555')
    a(f's_mov_b64 exec, s[{S_EXEC}:{S_EXEC+1}]')
    a(f'buffer_store_dword v{X+6}, v{VPM}, {WS}, s{S_P} offen')
    a(f's_mov_b64 exec, -1')
    a('LA_next:')
    stamp(a, cfg, 5)
    kx_load()
    stamp_flush(a, cfg, TA)
    a(f's_add_u32 s{S_STEP}, s{S_STEP}, 1')
    a(f's_add_u32 s{S_MEMF}, s{S_MEMF}, {MEMF_STEP}')
    a(f's_add_u32 s{S_P}, s{S_P}, {P_STEP}')
    a(f's_cmp_lt_u32 s{S_STEP}, {cfg.nsteps}')
    a('s_cbranch_scc1 LA_loop')
    a('s_waitcnt vmcnt(0)')
    stamp_store(a, cfg, VL16, MS)
    a(f's_branch {L_exit}')

B_MEML, B_RED, B_WL = 0, 7168, 16384

def emit_B(a, cfg, L_exit):
    R = Regs(0, 120)
    R.next = 1
    a('; ================= B side =================')
    VL, VL16, VIDX, VPA = setup_common(a, R)
    VWL, VPX, VPM, VRR, VMO, VWO = (R.alloc(n) for n in ('VWL', 'VPX', 'VPM', 'VRR', 'VMO', 'VWO'))
    MS = R.alloc('MS', 28, 2)
    ACC = R.alloc('ACC', 8, 2); CV = R.alloc('CV', 4, 2)
    LW = R.alloc('LW', 16, 2); WB = R.alloc('WB', 16, 2); UB = R.alloc('UB', 32, 2)
    PX = MS; PM = MS + 8; PV = MS + 12; RD = MS + 20
    a(f's_sub_u32 s{S_J}, s{S_ROLE}, {NA}')
    for ti in range(7):
        hh, T = ti >> 1, ti & 1
        a(f's_lshl_b32 s{S_T0}, s{S_WAVE}, 2')
        a(f's_add_u32 s{S_T0}, s{S_T0}, {hh}')
        a(f's_mul_i32 s{S_T0}, s{S_T0}, 28')
        a(f's_lshl_b32 s{S_T0+1}, s{S_J}, 1')
        a(f's_add_u32 s{S_T0}, s{S_T0}, s{S_T0+1}')
        a(f's_add_u32 s{S_T0}, s{S_T0}, {T}')
        a(f's_mul_i32 s{S_T0}, s{S_T0}, {7*2048}')
        a(f's_add_u32 s{S_T0}, s{S_T0}, {BF_OFF}')
        for kk in range(7):
            for rh in range(2):
                off = kk*2048 + rh*1024
                if off % 4096 == 0 and off > 0: a(f's_add_u32 s{S_T0}, s{S_T0}, 4096')
                a(f'buffer_load_dwordx4 {wfrag_half(ti*7+kk, rh)}, v{VL16}, {WS}, s{S_T0} offen offset:{off % 4096}')
        a('s_waitcnt vmcnt(14)')
    a(f's_lshl_b32 s{S_T0}, s{S_WAVE}, 2')
    a(f's_add_u32 s{S_T0}, s{S_T0}, 3')
    a(f's_mul_i32 s{S_T0}, s{S_T0}, 28')
    a(f's_lshl_b32 s{S_T0+1}, s{S_J}, 1')
    a(f's_add_u32 s{S_T0}, s{S_T0}, s{S_T0+1}')
    a(f's_add_u32 s{S_T0}, s{S_T0}, 1')
    a(f's_mul_i32 s{S_T0}, s{S_T0}, {7*2048}')
    a(f's_add_u32 s{S_T0}, s{S_T0}, {BF_OFF}')
    a(f's_mul_i32 s{S_T0+1}, s{S_WAVE}, 14336')
    a(f's_add_u32 s{S_T0+1}, s{S_T0+1}, {B_WL}')
    a(f'v_add_u32 v{VWL}, s{S_T0+1}, v{VL16}')
    for d in range(14):
        a(f's_add_u32 m0, s{S_T0+1}, {d*1024}')
        a(f's_add_u32 s{S_T0+2}, s{S_T0}, {d*1024}')
        a(f'buffer_load_dwordx4 v{VL16}, {WS}, s{S_T0+2} offen lds')
    a('s_waitcnt vmcnt(0)')
    TX, TY, TZ = MS, MS+1, MS+2
    a(f's_lshl_b32 s{S_T0}, s{S_WAVE}, 11')
    a(f'v_add_u32 v{VPX}, s{S_T0}, v{VL16}')
    a(f'v_lshrrev_b32 v{TX}, 5, v{VL}')
    a(f'v_lshlrev_b32 v{TX}, 1, v{TX}')
    a(f'v_bfe_u32 v{TY}, v{VL}, 3, 1')
    a(f'v_add_u32 v{TX}, v{TX}, v{TY}')
    a(f'v_lshlrev_b32 v{TX}, 7, v{TX}')
    a(f'v_and_b32 v{TY}, 7, v{VL}')
    a(f'v_lshl_add_u32 v{TX}, v{TY}, 4, v{TX}')
    a(f's_lshl_b32 s{S_T0}, s{S_WAVE}, 9')
    a(f's_add_u32 s{S_T0}, s{S_T0}, 8192')
    a(f'v_add_u32 v{VPM}, s{S_T0}, v{TX}')
    a(f's_lshr_b32 s{S_T0}, s{S_WAVE}, 1')
    a(f's_lshl_b32 s{S_T0}, s{S_T0}, 10')
    a(f's_and_b32 s{S_T0+1}, s{S_WAVE}, 1')
    a(f's_lshl_b32 s{S_T0+1}, s{S_T0+1}, 8')
    a(f's_add_u32 s{S_T0}, s{S_T0}, s{S_T0+1}')
    a(f's_add_u32 s{S_T0}, s{S_T0}, {B_RED}')
    a(f'v_lshl_add_u32 v{VRR}, v{VL}, 2, s{S_T0}')
    a(f'v_lshrrev_b32 v{TX}, 2, v{VL}')
    a(f'v_lshrrev_b32 v{TY}, 3, v{TX}')
    a(f'v_lshlrev_b32 v{TY}, 7, v{TY}')
    a(f'v_and_b32 v{TZ}, 3, v{VL}')
    a(f'v_lshl_add_u32 v{TY}, v{TZ}, 4, v{TY}')
    a(f'v_bfe_u32 v{TZ}, v{TX}, 1, 2')
    a(f'v_lshl_add_u32 v{TY}, v{TZ}, 2, v{TY}')
    a(f's_lshl_b32 s{S_T0}, s{S_J}, 2')
    a(f's_lshr_b32 s{S_T0+1}, s{S_WAVE}, 1')
    a(f's_lshl_b32 s{S_T0+1}, s{S_T0+1}, 1')
    a(f's_add_u32 s{S_T0}, s{S_T0}, s{S_T0+1}')
    a(f's_lshl_b32 s{S_T0}, s{S_T0}, 7')
    a(f's_and_b32 s{S_T0+1}, s{S_WAVE}, 1')
    a(f's_lshl_b32 s{S_T0+1}, s{S_T0+1}, 6')
    a(f's_add_u32 s{S_T0}, s{S_T0}, s{S_T0+1}')
    a(f'v_add_u32 v{VMO}, s{S_T0}, v{TY}')
    a(f's_lshl_b32 s{S_T0}, s{S_J}, 14')
    a(f's_lshl_b32 s{S_T0+1}, s{S_WAVE}, 12')
    a(f's_add_u32 s{S_T0}, s{S_T0}, s{S_T0+1}')
    a(f'v_add_u32 v{VWO}, s{S_T0}, v{VL16}')
    a(f's_lshl_b32 s{S_T0}, s{S_WAVE}, 11')
    a(f's_add_u32 s{S_T0}, s{S_T0}, {B_RED}')
    a(f'v_add_u32 v{VL}, s{S_T0}, v{VL16}')
    VRW = VL
    a(f's_lshl_b32 s{S_T0}, s{S_WAVE}, 2')
    a(f's_mul_i32 s{S_T0}, s{S_T0}, 28')
    a(f's_lshl_b32 s{S_T0+1}, s{S_J}, 1')
    a(f's_add_u32 s{S_T0}, s{S_T0}, s{S_T0+1}')
    a(f's_lshl_b32 s{S_T0}, s{S_T0}, 10')
    a(f's_add_u32 s{S_NXT}, s{S_T0}, {UF_OFF}')
    def u_load1(hh, T):
        b = UB + 16*(hh >> 1) + 8*T + 4*(hh & 1)
        a(f's_add_u32 s{S_T0}, s{S_NXT}, {hh*28*1024}')
        a(f'buffer_load_dwordx4 v[{b}:{b+3}], v{VL16}, {WS}, s{S_T0} offen offset:{T*1024} sc1')
    def w_store1(T, pair):
        b = WB + 8*T + 4*pair
        a(f'buffer_store_dwordx4 v[{b}:{b+3}], v{VWO}, {WS}, s{S_W} offen offset:{(T*2+pair)*1024} sc1')
    a(f's_mov_b32 s{S_STEP}, 0')
    a(f's_mov_b32 s{S_MEMF}, {MEMF_OFF}')
    a(f's_mov_b32 s{S_P}, {P_OFF}')
    a(f's_mov_b32 s{S_W}, {W_OFF - W_STEP}')
    if cfg.fused: chain_wait(a, 'LB_ud', FL_UDONE, 224, MS)
    a('LB_loop:')
    stamp(a, cfg, 0)
    poll_mem(a, VPA, ACC, 'LB_poll')
    stamp(a, cfg, 1)
    a(f'ds_write_b128 v{VPA}, v[{ACC}:{ACC+3}] offset:{B_MEML}')
    a(f'ds_write_b128 v{VPA+1}, v[{ACC+4}:{ACC+7}] offset:{B_MEML}')
    a('s_waitcnt lgkmcnt(0)')
    a('s_barrier')
    lg = LG(a)
    for kk in range(7):
        lg.op(f'ds_read_b128 v[{MS+4*kk}:{MS+4*kk+3}], v{VL16} offset:{B_MEML+kk*1024}', f'ms{kk}')
    for r in range(0, 8, 2): a(f'v_mov_b64 v[{ACC+r}:{ACC+r+1}], 0')
    if cfg.wstore:
        a(f's_cmp_eq_u32 s{S_STEP}, 0')
        a('s_cbranch_scc1 LB_now')
        for T in range(2):
            for pair in range(2): w_store1(T, pair)
        a('LB_now:')
    def acc(t): return ACC + 4*(t & 1)
    def lwread(kk):
        b = LW + 8*(kk & 1)
        lg.op(f'ds_read_b128 v[{b}:{b+3}], v{VWL} offset:{kk*2048}', f'lw{kk}')
        lg.op(f'ds_read_b128 v[{b+4}:{b+7}], v{VWL} offset:{kk*2048+1024}', f'lw{kk}')
    def cvt(t, i):
        hh, T = t >> 1, t & 1
        pair, hp = hh >> 1, hh & 1
        b = WB + 8*T + 4*pair
        a(f'v_cvt_pk_bf16_f32 v{b+2*i+hp}, v{acc(t)+2*i}, v{acc(t)+2*i+1}')
    for t in range(8):
        for kk in range(7):
            if t == 0: lg.wait(f'ms{kk}')
            if t == 7:
                lg.wait(f'lw{kk}')
                w = f'v[{LW+8*(kk&1)}:{LW+8*(kk&1)+7}]'
            else:
                w = wfrag(t*7+kk)
            a(f'v_smfmac_f32_16x16x64_bf16 v[{acc(t)}:{acc(t)+3}], v[{MS+4*kk}:{MS+4*kk+3}], {w}, v{VIDX}')
            if t < 4 and kk in (1, 5): u_load1(t, 0 if kk == 1 else 1)
            if t == 4 and kk == 0: a(f's_add_u32 s{S_NXT}, s{S_NXT}, {UF_STEP}')
            if t == 6 and kk == 0: lwread(0)
            if t == 6 and kk == 1: lwread(1)
            if t >= 1 and kk == 2: cvt(t-1, 0); cvt(t-1, 1)
            if t >= 1 and t < 7 and kk == 3: a(f'v_mov_b64 v[{acc(t+1)}:{acc(t+1)+1}], 0')
            if t >= 1 and t < 7 and kk == 4: a(f'v_mov_b64 v[{acc(t+1)+2}:{acc(t+1)+3}], 0')
            if t == 7 and kk + 2 <= 6: lwread(kk+2)
    a('s_nop 7')
    cvt(7, 0); cvt(7, 1)
    stamp(a, cfg, 2)
    a(f's_cmp_ge_u32 s{S_STEP}, {cfg.nsteps}')
    a('s_cbranch_scc1 LB_fin')
    a(f's_mov_b32 s{S_SPIN}, 0')
    a('LB_pp:')
    a(f'buffer_load_dwordx4 v[{PX}:{PX+3}], v{VPX}, {WS}, s{S_P} offen sc1')
    a(f'buffer_load_dwordx4 v[{PX+4}:{PX+7}], v{VPX}, {WS}, s{S_P} offen offset:1024 sc1')
    a(f'buffer_load_dwordx4 v[{PM}:{PM+3}], v{VPM}, {WS}, s{S_P} offen sc1')
    a(f's_add_u32 s{S_SPIN}, s{S_SPIN}, 1')
    a(f's_cmp_gt_u32 s{S_SPIN}, {SPIN_MAX}')
    a('s_cbranch_scc1 LB_pp_out')
    a('s_waitcnt vmcnt(0)')
    a(f'v_or3_b32 v{RD}, v{PX}, v{PX+1}, v{PX+2}')
    a(f'v_or3_b32 v{RD+1}, v{PX+3}, v{PX+4}, v{PX+5}')
    a(f'v_or3_b32 v{RD+2}, v{PX+6}, v{PX+7}, v{PM}')
    a(f'v_or3_b32 v{RD}, v{RD}, v{PM+1}, v{PM+2}')
    a(f'v_or3_b32 v{RD+1}, v{RD+1}, v{RD+2}, v{PM+3}')
    a(f'v_or_b32 v{RD}, v{RD}, v{RD+1}')
    a(f'v_and_b32 v{RD}, 0x80008000, v{RD}')
    a(f'v_cmp_ne_u32 vcc, 0, v{RD}')
    a('s_cbranch_vccnz LB_pp')
    a('LB_pp_out:')
    a('s_waitcnt vmcnt(0)')
    stamp(a, cfg, 3)
    for r in range(0, 8, 2): a(f'v_mov_b64 v[{PV+r}:{PV+r+1}], 0')
    a('s_nop 1')
    for T in range(2):
        a(f'v_smfmac_f32_16x16x64_bf16 v[{PV+4*T}:{PV+4*T+3}], v[{PM}:{PM+3}], v[{WB+8*T}:{WB+8*T+7}], v{VIDX}')
    for hp in range(2):
        for T in range(2):
            a(f'v_smfmac_f32_16x16x64_bf16 v[{PV+4*T}:{PV+4*T+3}], v[{PX+4*hp}:{PX+4*hp+3}], v[{UB+16*hp+8*T}:{UB+16*hp+8*T+7}], v{VIDX}')
    a('s_nop 5')
    a(f'ds_write_b128 v{VRW}, v[{PV}:{PV+3}]')
    a('s_nop 1')
    a(f'ds_write_b128 v{VRW}, v[{PV+4}:{PV+7}] offset:1024')
    a('s_waitcnt lgkmcnt(0)')
    a('s_barrier')
    for w in range(4):
        for half in range(2):
            a(f'ds_read_b32 v{RD+2*w+half}, v{VRR} offset:{w*2048+half*512}')
    a('s_waitcnt lgkmcnt(4)')
    a(f'v_add_f32 v{RD}, v{RD}, v{RD+1}')
    a(f'v_add_f32 v{RD+2}, v{RD+2}, v{RD+3}')
    a('s_waitcnt lgkmcnt(0)')
    a(f'v_add_f32 v{RD+4}, v{RD+4}, v{RD+5}')
    a(f'v_add_f32 v{RD+6}, v{RD+6}, v{RD+7}')
    a(f'v_add_f32 v{RD}, v{RD}, v{RD+2}')
    a(f'v_add_f32 v{RD+4}, v{RD+4}, v{RD+6}')
    a(f'v_add_f32 v{RD}, v{RD}, v{RD+4}')
    a('s_nop 1')
    a(f'v_mov_b32_dpp v{RD+1}, v{RD} row_shl:4 row_mask:0xf bank_mask:0xf')
    a(f'v_cvt_pk_bf16_f32 v{RD}, v{RD}, v{RD+1}')
    a(f'v_min_u32 v{RD}, 0xfffffffe, v{RD}')
    a(f's_add_u32 s{S_T0}, s{S_MEMF}, {MEMF_STEP}')
    a(f's_mov_b32 s{S_EXEC}, 0x0f0f0f0f')
    a(f's_mov_b32 s{S_EXEC+1}, 0x0f0f0f0f')
    a(f's_mov_b64 exec, s[{S_EXEC}:{S_EXEC+1}]')
    a(f'buffer_store_dword v{RD}, v{VMO}, {WS}, s{S_T0} offen')
    if cfg.fused:
        a(f's_add_u32 s{S_T0}, s{S_T0}, {MEMG_OFF - MEMF_OFF}')
        a(f'buffer_store_dword v{RD}, v{VMO}, {WS}, s{S_T0} offen sc1')
    a(f's_mov_b64 exec, -1')
    if cfg.fused:
        a(f's_cmp_eq_u32 s{S_STEP}, 0')
        a('s_cbranch_scc1 LB_nws')
        a(f's_cmp_lg_u32 s{S_WAVE}, 0')
        a('s_cbranch_scc1 LB_nws')
        a(f's_sub_u32 s{S_T0}, s{S_STEP}, 1')
        chain_signal(a, FL_W, S_T0, RD+2)
        a('LB_nws:')
    stamp(a, cfg, 4)
    stamp(a, cfg, 5)
    stamp_flush(a, cfg, LW)
    a(f's_add_u32 s{S_STEP}, s{S_STEP}, 1')
    a(f's_add_u32 s{S_MEMF}, s{S_MEMF}, {MEMF_STEP}')
    a(f's_add_u32 s{S_P}, s{S_P}, {P_STEP}')
    a(f's_add_u32 s{S_W}, s{S_W}, {W_STEP}')
    a('s_branch LB_loop')
    a('LB_fin:')
    a(f's_add_u32 s{S_W}, s{S_W}, {W_STEP}')
    if cfg.wstore:
        for T in range(2):
            for pair in range(2): w_store1(T, pair)
    a('s_waitcnt vmcnt(0)')
    if cfg.fused:
        a('s_barrier')
        a(f's_cmp_lg_u32 s{S_WAVE}, 0')
        a('s_cbranch_scc1 LB_nws2')
        a(f's_mov_b32 s{S_T0}, {cfg.nsteps-1}')
        chain_signal(a, FL_W, S_T0, MS)
        a(f's_mov_b32 s{S_T0}, {cfg.nsteps}')
        chain_signal(a, FL_W, S_T0, MS)
        a('LB_nws2:')
        a('s_waitcnt vmcnt(0)')
    stamp_store(a, cfg, VL16, MS)
    a(f's_branch {L_exit}')

def gen_chain_body(cfg):
    a = Asm()
    prologue_common(a, 'L_exit')
    a(f's_cmp_ge_u32 s{S_ROLE}, {NA}')
    a('s_cbranch_scc1 LB_entry')
    emit_A(a, cfg, 'L_exit')
    a('LB_entry:')
    emit_B(a, cfg, 'L_exit')
    a('L_exit:')
    a('s_endpgm')
    return a.text(), (155648 if cfg.stamps else 73728)

def gen_chain_kernel(name, cfg):
    a = Asm()
    lds = 155648 if cfg.stamps else 73728
    a(header(name, 256, 256, lds))
    prologue_common(a, 'L_exit')
    a(f's_cmp_ge_u32 s{S_ROLE}, {NA}')
    a('s_cbranch_scc1 LB_entry')
    emit_A(a, cfg, 'L_exit')
    a('LB_entry:')
    emit_B(a, cfg, 'L_exit')
    a('L_exit:')
    a('s_endpgm')
    a(footer(name, nv=512, ns=102, accum=256, kernarg=112))
    return a.text(), lds

if __name__ == '__main__':
    cfg = Cfg(); cfg.stamps = len(sys.argv) > 1 and sys.argv[1] == 'stamps'
    txt, lds = gen_chain_kernel('chain_kernel', cfg)
    open('chain.s', 'w').write(txt)
    import subprocess
    r = subprocess.run(['clang', '-x', 'assembler', '-target', 'amdgcn-amd-amdhsa', '-mcpu=gfx950', '-c', 'chain.s', '-o', 'chain.o'], capture_output=True, text=True)
    print(r.returncode, r.stderr[:3000]); print(len(txt.splitlines()), 'lines, lds', lds)
```

```python
from roles import *

def emit_X(a, nrep, L='RX', sc='sc1'):
    sH, sREP = sT, sT+1
    a(f's_and_b32 s{sH}, s{sIDX}, 15')
    a(f's_lshr_b32 s{sSEG}, s{sIDX}, 4')
    VL, VL16 = 1, 2
    TK, ACC = 4, 36
    VKX, VKM, VSW, VSR, VQ = 92, 93, 94, 95, 96
    T0 = 100
    sMSK = 48
    a(f's_mul_i32 s{sT+2}, s{sH}, 28')
    a(f's_mul_i32 s{sT+3}, s{sW}, 7')
    a(f's_add_u32 s{sT+2}, s{sT+2}, s{sT+3}')
    a(f's_mul_i32 s{sT+2}, s{sT+2}, {7*2048}')
    a(f's_add_u32 s{sT+2}, s{sT+2}, {AF_OFF}')
    n = 0
    for f in range(49):
        for rh in range(2):
            off = f*2048 + rh*1024
            if off % 4096 == 0 and off > 0: a(f's_add_u32 s{sT+2}, s{sT+2}, 4096')
            a(f'buffer_load_dwordx4 {whalf(f, rh)}, v{VL16}, {WS}, s{sT+2} offen offset:{off % 4096}')
            n += 1
            if n % 32 == 0: a('s_waitcnt vmcnt(16)')
    RHO, G, KEY = T0, T0+1, T0+2
    a(f'v_and_b32 v{RHO}, 15, v{VL}')
    a(f'v_lshrrev_b32 v{G}, 4, v{VL}')
    key_of_rho(a, KEY, RHO, T0+3, None)
    a(f's_mul_i32 s{sT+2}, s{sW}, {14*512}')
    a(f'v_lshrrev_b32 v{T0+3}, 1, v{G}')
    a(f'v_lshlrev_b32 v{T0+4}, 9, v{T0+3}')
    a(f'v_lshl_add_u32 v{T0+4}, v{KEY}, 4, v{T0+4}')
    a(f'v_and_b32 v{T0+5}, 1, v{G}')
    a(f'v_lshl_add_u32 v{T0+4}, v{T0+5}, 3, v{T0+4}')
    a(f'v_add_u32 v{VKX}, s{sT+2}, v{T0+4}')
    a(f's_mul_i32 s{sT+2}, s{sW}, {14*128}')
    a(f'v_lshlrev_b32 v{T0+4}, 7, v{T0+3}')
    a(f'v_and_b32 v{T0+6}, 7, v{RHO}')
    a(f'v_lshl_add_u32 v{T0+4}, v{T0+6}, 4, v{T0+4}')
    a(f'v_lshl_add_u32 v{T0+4}, v{T0+5}, 3, v{T0+4}')
    a(f'v_add_u32 v{VKM}, s{sT+2}, v{T0+4}')
    a(f's_mul_i32 s{sT+2}, s{sW}, 6144')
    a(f'v_add_u32 v{VSW}, s{sT+2}, v{VL16}')
    a(f's_and_b32 s{sT+2}, s{sW}, 1')
    a(f's_lshl_b32 s{sT+2}, s{sT+2}, 10')
    a(f'v_add_u32 v{VSR}, s{sT+2}, v{VL16}')
    a(f's_and_b32 s{sT+2}, s{sW}, 1')
    a(f's_lshl_b32 s{sT+2}, s{sT+2}, 1')
    a(f'v_add_u32 v{VQ}, s{sT+2}, v{KEY}')
    a(f'v_lshrrev_b32 v{T0+3}, 1, v{G}')
    a(f'v_lshlrev_b32 v{T0+3}, 4, v{T0+3}')
    a(f'v_and_b32 v{T0+4}, 1, v{G}')
    a(f'v_lshl_add_u32 v{T0+3}, v{T0+4}, 2, v{T0+3}')
    for Tp in range(2):
        for r in range(4):
            k = (r & 1) + 8*(r >> 1) + 2*Tp
            a(f'v_add_u32 v{T0+4}, {k}, v{T0+3}')
            m = sMSK + 2*(Tp*4+r)
            a(f'v_cmp_le_u32 s[{m}:{m+1}], v{T0+4}, v{VQ}')
    a('s_waitcnt vmcnt(0)')
    a(f'{L}_loop:')
    vm = VM(a)
    sXQ, sXP, sMF = sT+2, sT+3, sT+4
    a(f's_mul_i32 s{sXQ}, s{sSEG}, {XNQ_STEP}')
    a(f's_add_u32 s{sXQ}, s{sXQ}, {XNQ_OFF}')
    a(f's_mul_i32 s{sXP}, s{sSEG}, {XNP_STEP}')
    a(f's_add_u32 s{sXP}, s{sXP}, {XNP_OFF}')
    a(f's_mul_i32 s{sMF}, s{sSEG}, {MEMF_STEP}')
    a(f's_add_u32 s{sMF}, s{sMF}, {MEMG_OFF}')
    def tkload(kb):
        b = TK + 8*(kb & 3)
        a(f's_add_u32 s{sT+5}, s{sXQ}, {kb*1024}')
        vm.op(f'buffer_load_dwordx4 v[{b}:{b+3}], v{VL16}, {WS}, s{sT+5} offen', f'k{kb}')
        a(f's_add_u32 s{sT+5}, s{sXQ}, {(14+kb)*1024}')
        vm.op(f'buffer_load_dwordx4 v[{b+4}:{b+7}], v{VL16}, {WS}, s{sT+5} offen', f'k{kb}')
    for kb in range(3): tkload(kb)
    for kb in range(14):
        vm.wait(f'k{kb}')
        b = TK + 8*(kb & 3)
        for i in range(7):
            for XY in range(2):
                d = ACC + (i*2+XY)*4
                c = '0' if kb == 0 else f'v[{d}:{d+3}]'
                a(f'v_mfma_f32_16x16x32_bf16 v[{d}:{d+3}], {whalf(i*7 + kb//2, kb & 1)}, v[{b+4*XY}:{b+4*XY+3}], {c}')
            if i == 2 and kb + 3 < 14: tkload(kb+3)
    a('s_nop 7')
    for XY in range(2):
        for i in range(7):
            s_ = ACC + (i*2+XY)*4
            d = TK + XY*14 + (i//2)*4 + (i & 1)*2
            a(f'v_cvt_pk_bf16_f32 v{d}, v{s_}, v{s_+1}')
            a(f'v_cvt_pk_bf16_f32 v{d+1}, v{s_+2}, v{s_+3}')
    KB, K16, SA, KM = ACC, ACC+16, ACC+32, T0
    def keyload(sg):
        kb_ = KB + 8*(sg & 1) if sg < 3 else K16
        step = 4 if sg < 3 else 2
        a(f's_add_u32 s{sT+5}, s{sXP}, {sg*2048}')
        for Tp in range(2):
            d = kb_ + Tp*step
            vm.op(f'buffer_load_dwordx2 v[{d}:{d+1}], v{VKX}, {WS}, s{sT+5} offen offset:{Tp*32}', f's{sg}')
            if sg < 3: vm.op(f'buffer_load_dwordx2 v[{d+2}:{d+3}], v{VKX}, {WS}, s{sT+5} offen offset:{Tp*32+1024}', f's{sg}')
    keyload(0); keyload(1); keyload(3)
    for sg in range(4):
        vm.wait(f's{sg}')
        kb_ = KB + 8*(sg & 1) if sg < 3 else K16
        step = 4 if sg < 3 else 2
        for kt in range(2):
            for XY in range(2):
                d = SA + (kt*2+XY)*4
                c = '0' if sg == 0 else f'v[{d}:{d+3}]'
                ka = kb_ + kt*step; tb = TK + XY*14 + sg*4
                if sg < 3: a(f'v_mfma_f32_16x16x32_bf16 v[{d}:{d+3}], v[{ka}:{ka+3}], v[{tb}:{tb+3}], {c}')
                else: a(f'v_mfma_f32_16x16x16_bf16 v[{d}:{d+3}], v[{ka}:{ka+1}], v[{tb}:{tb+1}], {c}')
        if sg == 0: keyload(2)
    a(f's_mov_b32 s47, 0')
    a(f'{L}_mp:')
    for sg in range(4):
        d = KM + 4*sg
        a(f'buffer_load_dwordx2 v[{d}:{d+1}], v{VKM}, {WS}, s{sMF} offen offset:{sg*512} sc1')
        if sg < 3: a(f'buffer_load_dwordx2 v[{d+2}:{d+3}], v{VKM}, {WS}, s{sMF} offen offset:{sg*512+256} sc1')
    a('s_waitcnt vmcnt(0)')
    vm.q = []
    TQ = KM + 14
    a(f'v_max3_u32 v{TQ}, v{KM}, v{KM+1}, v{KM+2}')
    for r in range(3, 13, 2): a(f'v_max3_u32 v{TQ}, v{TQ}, v{KM+r}, v{KM+r+1}')
    a(f'v_max_u32 v{TQ}, v{TQ}, v{KM+13}')
    a(f'v_cmp_eq_u32 vcc, -1, v{TQ}')
    a(f's_cbranch_vccz {L}_mok')
    a(f's_add_u32 s47, s47, 1')
    a(f's_cmp_gt_u32 s47, {SPIN_MAX}')
    a(f's_cbranch_scc1 {L}_mok')
    a('s_sleep 2')
    a(f's_branch {L}_mp')
    a(f'{L}_mok:')
    for sg in range(4):
        for XY in range(2):
            d = SA + (2*2+XY)*4
            c = '0' if sg == 0 else f'v[{d}:{d+3}]'
            ka = KM + 4*sg; tb = TK + XY*14 + sg*4
            if sg < 3: a(f'v_mfma_f32_16x16x32_bf16 v[{d}:{d+3}], v[{ka}:{ka+3}], v[{tb}:{tb+3}], {c}')
            else: a(f'v_mfma_f32_16x16x16_bf16 v[{d}:{d+3}], v[{ka}:{ka+1}], v[{tb}:{tb+1}], {c}')
    a('s_nop 7')
    for t in range(6):
        a(f'ds_write_b128 v{VSW}, v[{SA+4*t}:{SA+4*t+3}] offset:{t*1024}')
    a(f'v_xor_b32 v{VSW}, 0x8000, v{VSW}')
    a('s_waitcnt lgkmcnt(0)')
    a('s_barrier')
    a(f's_cmp_ge_u32 s{sW}, 2')
    a(f's_cbranch_scc1 {L}_next')
    R = ACC
    for w in range(4):
        for kt in range(3):
            b = R + w*12 + kt*4
            a(f'ds_read_b128 v[{b}:{b+3}], v{VSR} offset:{w*6144 + kt*2048}')
    a('s_waitcnt lgkmcnt(0)')
    for r in range(12):
        a(f'v_add_f32 v{R+r}, v{R+r}, v{R+12+r}')
        a(f'v_add_f32 v{R+24+r}, v{R+24+r}, v{R+36+r}')
    for r in range(12): a(f'v_add_f32 v{R+r}, v{R+r}, v{R+24+r}')
    NEG, MX, SM, TP = T0, T0+1, T0+2, T0+3
    a(f'v_mov_b32 v{NEG}, 0xff800000')
    for Tp in range(2):
        for r in range(4):
            m = sMSK + 2*(Tp*4+r)
            a(f'v_cndmask_b32 v{R+Tp*4+r}, v{NEG}, v{R+Tp*4+r}, s[{m}:{m+1}]')
    a(f'v_max3_f32 v{MX}, v{R}, v{R+1}, v{R+2}')
    for r in range(3, 11, 2): a(f'v_max3_f32 v{MX}, v{MX}, v{R+r}, v{R+r+1}')
    a(f'v_max_f32 v{MX}, v{MX}, v{R+11}')
    rowmax4(a, MX, TP)
    for r in range(12): a(f'v_sub_f32 v{R+r}, v{R+r}, v{MX}')
    for r in range(12): a(f'v_exp_f32 v{R+r}, v{R+r}')
    a('s_nop 0')
    a(f'v_add_f32 v{SM}, v{R+8}, v{R+9}')
    a(f'v_add_f32 v{TP}, v{R+10}, v{R+11}')
    a(f'v_add_f32 v{SM}, v{SM}, v{TP}')
    a(f'v_mov_b32 v{TP}, 0')
    a(f'v_cmp_gt_u32 vcc, 32, v{VL}')
    a('s_nop 1')
    a(f'v_cndmask_b32 v{SM}, v{TP}, v{SM}, vcc')
    for r in range(8): a(f'v_add_f32 v{SM}, v{SM}, v{R+r}')
    rowsum4(a, SM, TP)
    a(f'v_rcp_f32 v{SM}, v{SM}')
    a('s_nop 0')
    for r in range(12): a(f'v_mul_f32 v{R+r}, v{R+r}, v{SM}')
    O = R + 12
    for i in range(6): a(f'v_cvt_pk_bf16_f32 v{O+i}, v{R+2*i}, v{R+2*i+1}')
    a(f's_mul_i32 s{sT+5}, s{sSEG}, {PT_STEP}')
    a(f's_add_u32 s{sT+5}, s{sT+5}, {PT_OFF}')
    a(f's_lshl_b32 s{sT+6}, s{sH}, 1')
    a(f's_add_u32 s{sT+6}, s{sT+6}, s{sW}')
    a(f's_lshl_b32 s{sT+6}, s{sT+6}, 10')
    a(f's_add_u32 s{sT+6}, s{sT+6}, s{sT+5}')
    a(f'buffer_store_dwordx4 v[{O}:{O+3}], v{VL16}, {WS}, s{sT+6} offen {sc}')
    a(f's_lshr_b32 s{sT+6}, s{sH}, 1')
    a(f's_lshl_b32 s{sT+6}, s{sT+6}, 1')
    a(f's_add_u32 s{sT+6}, s{sT+6}, s{sW}')
    a(f's_lshl_b32 s{sT+6}, s{sT+6}, 10')
    a(f's_add_u32 s{sT+6}, s{sT+6}, s{sT+5}')
    a(f's_add_u32 s{sT+6}, s{sT+6}, {PTX_STEP}')
    a(f's_and_b32 s{sT+7}, s{sH}, 1')
    a(f's_lshl_b32 s{sT+7}, s{sT+7}, 2')
    a(f's_add_u32 s{sT+6}, s{sT+6}, s{sT+7}')
    a(f'buffer_store_dword v{O+4}, v{VL16}, {WS}, s{sT+6} offen {sc}')
    a(f'buffer_store_dword v{O+5}, v{VL16}, {WS}, s{sT+6} offen offset:8 {sc}')
    a(f'{L}_next:')
    signal_cnt(a, L+'_sig', FL_PT, sSEG, T0)
    a(f'v_xor_b32 v{VSR}, 0x8000, v{VSR}')
    a(f's_add_u32 s{sSEG}, s{sSEG}, {nrep}')
    a(f's_cmp_lt_u32 s{sSEG}, 64')
    a(f's_cbranch_scc1 {L}_loop')
    a('s_branch L_exit')

def emit_V(a, nrep, L='RV', sc='sc1'):
    XS_ = 8
    a(f's_load_dwordx2 s[{XS_}:{XS_+1}], s[0:1], {KA_X}')
    sJ = sT
    divmod_small(a, sSEG, sJ, sIDX, 14)
    a('s_waitcnt lgkmcnt(0)')
    srd_fin(a, XS_, 1835008)
    a(f'{L}_loop:')
    wait_cnt(a, L+'_wp', FL_PT, sSEG, 16, 4)
    wait_cnt(a, L+'_ww', FL_W, sSEG, 14, 4)
    VL, VL16 = 1, 2
    UB, WB, PXB, PMB, ACC = 4, 36, 52, 84, 100
    T0 = 116
    vm = VM(a)
    ld = 'sc1' if sc else ''
    a(f's_mul_i32 s{sT+1}, s{sSEG}, {UF_STEP}')
    a(f's_lshl_b32 s{sT+2}, s{sW}, 2')
    a(f's_mul_i32 s{sT+2}, s{sT+2}, 28')
    a(f's_lshl_b32 s{sT+3}, s{sJ}, 1')
    a(f's_add_u32 s{sT+2}, s{sT+2}, s{sT+3}')
    a(f's_lshl_b32 s{sT+2}, s{sT+2}, 10')
    a(f's_add_u32 s{sT+1}, s{sT+1}, s{sT+2}')
    a(f's_add_u32 s{sT+1}, s{sT+1}, {UF_OFF}')
    for hh in range(4):
        a(f's_add_u32 s{sT+2}, s{sT+1}, {hh*28*1024}')
        for T in range(2):
            b = UB + (hh*2+T)*4
            vm.op(f'buffer_load_dwordx4 v[{b}:{b+3}], v{VL16}, {WS}, s{sT+2} offen offset:{T*1024} {ld}', 'u')
    a(f's_mul_i32 s{sT+1}, s{sSEG}, {W_STEP}')
    a(f's_lshl_b32 s{sT+2}, s{sJ}, 14')
    a(f's_add_u32 s{sT+1}, s{sT+1}, s{sT+2}')
    a(f's_lshl_b32 s{sT+2}, s{sW}, 12')
    a(f's_add_u32 s{sT+1}, s{sT+1}, s{sT+2}')
    a(f's_add_u32 s{sT+1}, s{sT+1}, {W_OFF}')
    for T in range(2):
        for pair in range(2):
            b = WB + (T*2+pair)*4
            vm.op(f'buffer_load_dwordx4 v[{b}:{b+3}], v{VL16}, {WS}, s{sT+1} offen offset:{(T*2+pair)*1024} {ld}', 'u')
    a(f's_mul_i32 s{sT+1}, s{sSEG}, {PT_STEP}')
    a(f's_add_u32 s{sT+1}, s{sT+1}, {PT_OFF}')
    a(f's_lshl_b32 s{sT+2}, s{sW}, 13')
    a(f's_add_u32 s{sT+2}, s{sT+2}, s{sT+1}')
    a(f's_add_u32 s{sT+3}, s{sT+2}, 4096')
    for hh in range(4):
        for XY in range(2):
            b = PXB + (hh*2+XY)*4; off = (hh*2+XY)*1024
            vm.op(f'buffer_load_dwordx4 v[{b}:{b+3}], v{VL16}, {WS}, s{sT+2 if off < 4096 else sT+3} offen offset:{off % 4096} {ld}', 'u')
    a(f's_lshl_b32 s{sT+2}, s{sW}, 12')
    a(f's_add_u32 s{sT+2}, s{sT+2}, s{sT+1}')
    a(f's_add_u32 s{sT+2}, s{sT+2}, {PTX_STEP}')
    for pair in range(2):
        for XY in range(2):
            b = PMB + (pair*2+XY)*4
            vm.op(f'buffer_load_dwordx4 v[{b}:{b+3}], v{VL16}, {WS}, s{sT+2} offen offset:{(pair*2+XY)*1024} {ld}', 'u')
    VROW, VX, VH, VST = T0, T0+1, T0+2, T0+3
    a(f'v_and_b32 v{T0+4}, 15, v{VL}')
    key_of_rho(a, VROW, T0+4, T0+5, None)
    a(f's_and_b32 s{sT+4}, s{sW}, 1')
    a(f's_lshl_b32 s{sT+4}, s{sT+4}, 1')
    a(f'v_add_u32 v{VROW}, s{sT+4}, v{VROW}')
    a(f's_lshr_b32 s{sT+5}, s{sW}, 1')
    a(f's_lshl_b32 s{sT+6}, s{sJ}, 1')
    a(f's_add_u32 s{sT+6}, s{sT+6}, s{sT+5}')
    a(f'v_lshrrev_b32 v{T0+4}, 4, v{VL}')
    a(f'v_mul_u32_u24 v{VX}, 896, v{VROW}')
    a(f'v_lshl_add_u32 v{VX}, v{T0+4}, 3, v{VX}')
    a(f's_lshl_b32 s{sT+7}, s{sT+6}, 5')
    a(f's_mul_i32 s{sT+8}, s{sSEG}, {32*896}')
    a(f's_add_u32 s{sT+7}, s{sT+7}, s{sT+8}')
    XV = T0+6
    vm.op(f'buffer_load_dwordx2 v[{XV}:{XV+1}], v{VX}, s[{XS_}:{XS_+3}], s{sT+7} offen', 'x')
    a(f'v_lshrrev_b32 v{T0+5}, 1, v{T0+4}')
    a(f'v_lshlrev_b32 v{VH}, 9, v{T0+5}')
    a(f'v_lshl_add_u32 v{VH}, v{VROW}, 4, v{VH}')
    a(f'v_and_b32 v{T0+5}, 1, v{T0+4}')
    a(f'v_lshl_add_u32 v{VH}, v{T0+5}, 3, v{VH}')
    vm.wait('u')
    for T in range(2):
        for XY in range(2):
            d = ACC + (T*2+XY)*4
            first = True
            for hh in range(4):
                ua = UB + (hh*2+T)*4; pb = PXB + (hh*2+XY)*4
                a(f'v_mfma_f32_16x16x32_bf16 v[{d}:{d+3}], v[{ua}:{ua+3}], v[{pb}:{pb+3}], {"0" if first else f"v[{d}:{d+3}]"}')
                first = False
            for pair in range(2):
                wa = WB + (T*2+pair)*4; pb = PMB + (pair*2+XY)*4
                a(f'v_mfma_f32_16x16x32_bf16 v[{d}:{d+3}], v[{wa}:{wa+3}], v[{pb}:{pb+3}], v[{d}:{d+3}]')
    a('s_nop 7')
    a(f's_lshl_b32 s{sT+9}, s{sW}, 12')
    a(f'v_add_u32 v4, s{sT+9}, v{VL16}')
    for t in range(4):
        a(f'ds_write_b128 v4, v[{ACC+4*t}:{ACC+4*t+3}] offset:{t*1024}')
    a('s_waitcnt lgkmcnt(0)')
    a('s_barrier')
    a(f's_lshl_b32 s{sT+9}, s{sW}, 10')
    a(f'v_add_u32 v4, s{sT+9}, v{VL16}')
    for w in range(4):
        a(f'ds_read_b128 v[{8+4*w}:{8+4*w+3}], v4 offset:{w*4096}')
    a('s_waitcnt lgkmcnt(0)')
    for r in range(4):
        a(f'v_add_f32 v{8+r}, v{8+r}, v{12+r}')
        a(f'v_add_f32 v{16+r}, v{16+r}, v{20+r}')
    for r in range(4): a(f'v_add_f32 v{8+r}, v{8+r}, v{16+r}')
    vm.wait('x')
    a(f'v_lshlrev_b32 v24, 16, v{XV}')
    a(f'v_and_b32 v25, 0xffff0000, v{XV}')
    a(f'v_lshlrev_b32 v26, 16, v{XV+1}')
    a(f'v_and_b32 v27, 0xffff0000, v{XV+1}')
    for r in range(4): a(f'v_add_f32 v{8+r}, v{8+r}, v{24+r}')
    a('v_cvt_pk_bf16_f32 v28, v8, v9')
    a('v_cvt_pk_bf16_f32 v29, v10, v11')
    a(f's_mul_i32 s{sT+9}, s{sSEG}, {HF_STEP}')
    a(f's_lshl_b32 s{sT+10}, s{sT+6}, 10')
    a(f's_add_u32 s{sT+9}, s{sT+9}, s{sT+10}')
    a(f's_add_u32 s{sT+9}, s{sT+9}, {HF_OFF}')
    a(f'buffer_store_dwordx2 v[28:29], v{VH}, {WS}, s{sT+9} offen {sc}')
    a('v_lshlrev_b32 v24, 16, v28')
    a('v_and_b32 v25, 0xffff0000, v28')
    a('v_lshlrev_b32 v26, 16, v29')
    a('v_and_b32 v27, 0xffff0000, v29')
    a('v_add_f32 v30, v24, v25')
    a('v_add_f32 v31, v26, v27')
    a('v_add_f32 v30, v30, v31')
    a('v_mul_f32 v31, v24, v24')
    for r in range(1, 4): a(f'v_fmac_f32 v31, v{24+r}, v{24+r}')
    rowsum4(a, 30, 32); rowsum4(a, 31, 32)
    a(f'v_lshlrev_b32 v32, 8, v{VROW}')
    a(f's_mul_i32 s{sT+9}, s{sSEG}, {ST_STEP}')
    a(f's_lshl_b32 s{sT+10}, s{sT+6}, 3')
    a(f's_add_u32 s{sT+9}, s{sT+9}, s{sT+10}')
    a(f's_add_u32 s{sT+9}, s{sT+9}, {ST_OFF}')
    a('v_cmp_gt_u32 vcc, 16, v1')
    a(f's_and_saveexec_b64 s[{sT+12}:{sT+13}], vcc')
    a(f'buffer_store_dwordx2 v[30:31], v32, {WS}, s{sT+9} offen {sc}')
    a(f's_mov_b64 exec, s[{sT+12}:{sT+13}]')
    signal_cnt(a, L+'_sig', FL_H, sSEG, 4)
    a(f's_add_u32 s{sSEG}, s{sSEG}, {nrep}')
    a(f's_cmp_lt_u32 s{sSEG}, 64')
    a(f's_cbranch_scc1 {L}_loop')
    a('s_branch L_exit')


def emit_F1(a, nrep, L='RF', sc='sc1'):
    WG_, WU_ = 8, 12
    a(f's_load_dwordx2 s[{WG_}:{WG_+1}], s[0:1], {KA_WG}')
    a(f's_load_dwordx2 s[{WU_}:{WU_+1}], s[0:1], {KA_WU}')
    sFG = sT
    divmod_small(a, sSEG, sFG, sIDX, 14)
    a('s_waitcnt lgkmcnt(0)')
    srd_fin(a, WG_, 1605632); srd_fin(a, WU_, 1605632)
    VL, VL16 = 1, 2
    ld = 'sc1' if sc else ''
    RAW = 8
    VG, VW, VR = 3, 4, 5
    a(f'v_lshrrev_b32 v{VG}, 2, v{VL}')
    a(f'v_mul_u32_u24 v{VG}, 3584, v{VG}')
    a(f'v_and_b32 v6, 3, v{VL}')
    a(f'v_lshl_add_u32 v{VG}, v6, 4, v{VG}')
    a(f's_mul_i32 s{sT+1}, s{sW}, 28672')
    a(f'v_add_u32 v{VW}, s{sT+1}, v{VL16}')
    a(f'v_lshrrev_b32 v6, 4, v{VL}')
    a(f'v_lshlrev_b32 v6, 3, v6')
    a(f'v_bfe_u32 v7, v{VL}, 2, 2')
    a(f'v_add_u32 v6, v6, v7')
    a(f'v_lshlrev_b32 v6, 6, v6')
    a(f'v_and_b32 v7, 3, v{VL}')
    a(f'v_lshl_add_u32 v6, v7, 3, v6')
    a(f'v_add_u32 v{VR}, s{sT+1}, v6')
    a(f's_lshl_b32 s{sT+2}, s{sFG}, 8')
    a(f's_lshl_b32 s{sT+3}, s{sW}, 6')
    a(f's_add_u32 s{sT+2}, s{sT+2}, s{sT+3}')
    for m, srdm in enumerate((WG_, WU_)):
        for kb in range(14):
            for half in range(2):
                a(f's_add_u32 s{sT+3}, s{sT+2}, {(32*kb + 16*half)*3584}')
                b = RAW + (kb*2+half)*4
                a(f'buffer_load_dwordx4 v[{b}:{b+3}], v{VG}, s[{srdm}:{srdm+3}], s{sT+3} offen')
        a('s_waitcnt vmcnt(0)')
        for kb in range(14):
            for half in range(2):
                b = RAW + (kb*2+half)*4
                a(f'ds_write_b128 v{VW}, v[{b}:{b+3}] offset:{kb*2048 + half*1024}')
        a('s_waitcnt lgkmcnt(0)')
        for tt in range(2):
            for kb in range(14):
                d = ((m*2+tt)*14+kb)*4
                a(f'ds_read_b64_tr_b16 a[{d}:{d+1}], v{VR} offset:{kb*2048 + tt*32}')
                a(f'ds_read_b64_tr_b16 a[{d+2}:{d+3}], v{VR} offset:{kb*2048 + tt*32 + 256}')
            a('s_waitcnt lgkmcnt(0)')
    TK, STG, ACC, CS, STAT, OUT = 4, 36, 64, 96, 112, 116
    ONE = 8
    for r in range(4): a(f'v_mov_b32 v{ONE+r}, 0x3f803f80')
    a('s_nop 1')
    for t in range(4):
        for kb in range(14):
            d = CS + 4*t; wb = (t*14+kb)*4
            a(f'v_mfma_f32_16x16x32_bf16 v[{d}:{d+3}], a[{wb}:{wb+3}], v[{ONE}:{ONE+3}], {"0" if kb == 0 else f"v[{d}:{d+3}]"}')
    a('s_barrier')
    VLW, VLR, VHB, VST = 124, 125, 126, 127
    SR = 128
    T0 = 160
    a(f's_mul_i32 s{sT+1}, s{sW}, 7168')
    a(f'v_add_u32 v{VLW}, s{sT+1}, v{VL16}')
    a(f'v_mov_b32 v{VLR}, v{VL16}')
    a(f'v_lshrrev_b32 v{T0}, 4, v{VL}')
    a(f'v_and_b32 v{T0+1}, 15, v{VL}')
    a(f'v_lshlrev_b32 v{VHB}, 9, v{T0}')
    a(f'v_lshl_add_u32 v{VHB}, v{T0+1}, 4, v{VHB}')
    a(f'v_lshlrev_b32 v{VST}, 8, v{T0+1}')
    a(f'v_lshl_add_u32 v{VST}, v{T0}, 3, v{VST}')
    sFD = 64
    for i in range(7):
        a(f's_mul_i32 s{sT+1}, s{sW}, 7')
        a(f's_add_u32 s{sT+1}, s{sT+1}, {i}')
        a(f's_cmp_ge_u32 s{sT+1}, 14')
        a(f's_cselect_b32 s{sT+2}, 1, 0')
        a(f's_mul_i32 s{sT+3}, s{sT+2}, 14')
        a(f's_sub_u32 s{sT+1}, s{sT+1}, s{sT+3}')
        a(f's_lshl_b32 s{sT+1}, s{sT+1}, 11')
        a(f's_lshl_b32 s{sT+2}, s{sT+2}, 8')
        a(f's_add_u32 s{sFD+i}, s{sT+1}, s{sT+2}')
    def stage_loads():
        a(f's_mul_i32 s{sT+4}, s{sSEG}, {HF_STEP}')
        a(f's_add_u32 s{sT+4}, s{sT+4}, {HF_OFF}')
        for i in range(7):
            a(f's_add_u32 s{sT+5}, s{sT+4}, s{sFD+i}')
            a(f'buffer_load_dwordx4 v[{STG+4*i}:{STG+4*i+3}], v{VHB}, {WS}, s{sT+5} offen {ld}')
    def stat_loads():
        a(f's_mul_i32 s{sT+4}, s{sSEG}, {ST_STEP}')
        a(f's_add_u32 s{sT+4}, s{sT+4}, {ST_OFF}')
        a(f's_add_u32 s{sT+5}, s{sT+4}, 4096')
        for T in range(2):
            for i in range(7):
                b = SR + (T*7+i)*2
                a(f'buffer_load_dwordx2 v[{b}:{b+1}], v{VST}, {WS}, s{sT+4 if T == 0 else sT+5} offen offset:{i*32} {ld}')
    def stage_write():
        for i in range(7):
            a(f'ds_write_b128 v{VLW}, v[{STG+4*i}:{STG+4*i+3}] offset:{i*1024}')
        a(f'v_xor_b32 v{VLW}, 0x8000, v{VLW}')
    a(f'{L}_loop:')
    sCUR = sT+6
    wait_cnt(a, L+'_wh', FL_H, sSEG, 14, T0)
    stat_loads()
    stage_loads()
    a('s_waitcnt vmcnt(0)')
    stage_write()
    a('s_waitcnt lgkmcnt(0)')
    a('s_barrier')
    a(f's_mov_b32 s{sCUR}, s{sSEG}')
    lg = LG(a)
    def tkread(kb):
        b = TK + 8*(kb & 3)
        lg.op(f'ds_read_b128 v[{b}:{b+3}], v{VLR} offset:{kb*1024}', f'k{kb}')
        lg.op(f'ds_read_b128 v[{b+4}:{b+7}], v{VLR} offset:{(14+kb)*1024}', f'k{kb}')
    for kb in range(3): tkread(kb)
    for kb in range(14):
        lg.wait(f'k{kb}')
        b = TK + 8*(kb & 3)
        for t in range(4):
            for T in range(2):
                d = ACC + (t*2+T)*4
                c = '0' if kb == 0 else f'v[{d}:{d+3}]'
                wb = (t*14+kb)*4
                a(f'v_mfma_f32_16x16x32_bf16 v[{d}:{d+3}], a[{wb}:{wb+3}], v[{b+4*T}:{b+4*T+3}], {c}')
            if t == 1 and kb + 3 < 14: tkread(kb+3)
    a(f'v_xor_b32 v{VLR}, 0x8000, v{VLR}')
    for T in range(2):
        b = SR + T*14
        for i in range(1, 7):
            a(f'v_add_f32 v{b}, v{b}, v{b+2*i}')
            a(f'v_add_f32 v{b+1}, v{b+1}, v{b+2*i+1}')
        rowsum4(a, b, T0); rowsum4(a, b+1, T0)
        a(f'v_mul_f32 v{b}, {hex(f32(1/448))}, v{b}')
        a(f'v_mul_f32 v{b+1}, {hex(f32(1/448))}, v{b+1}')
        a(f'v_fma_f32 v{b+1}, -v{b}, v{b}, v{b+1}')
        a(f'v_max_f32 v{b+1}, 0, v{b+1}')
        a(f'v_add_f32 v{b+1}, {hex(f32(1e-5))}, v{b+1}')
        a(f'v_rsq_f32 v{STAT+2*T}, v{b+1}')
        a('s_nop 0')
        a(f'v_mul_f32 v{STAT+2*T+1}, v{STAT+2*T}, v{b}')
    a(f's_mul_i32 s{sT+7}, s{sCUR}, {ACT_STEP}')
    a(f's_lshl_b32 s{sT+8}, s{sFG}, 2')
    a(f's_add_u32 s{sT+8}, s{sT+8}, s{sW}')
    a(f's_lshl_b32 s{sT+8}, s{sT+8}, 10')
    a(f's_add_u32 s{sT+7}, s{sT+7}, s{sT+8}')
    a(f's_add_u32 s{sT+7}, s{sT+7}, {ACT_OFF}')
    E = T0+2
    for T in range(2):
        R_, RM = STAT+2*T, STAT+2*T+1
        for tt in range(2):
            g = ACC + (tt*2+T)*4; u = ACC + ((2+tt)*2+T)*4
            for r in range(4):
                a(f'v_mul_f32 v{E+r}, v{RM}, v{CS+4*tt+r}')
                a(f'v_fma_f32 v{g+r}, v{R_}, v{g+r}, -v{E+r}')
                a(f'v_mul_f32 v{E+r}, v{RM}, v{CS+4*(2+tt)+r}')
                a(f'v_fma_f32 v{u+r}, v{R_}, v{u+r}, -v{E+r}')
            for r in range(4): a(f'v_mul_f32 v{E+r}, {hex(f32(-LOG2E))}, v{g+r}')
            for r in range(4): a(f'v_exp_f32 v{E+r}, v{E+r}')
            a('s_nop 0')
            for r in range(4): a(f'v_add_f32 v{E+r}, 1.0, v{E+r}')
            for r in range(4): a(f'v_rcp_f32 v{E+r}, v{E+r}')
            for r in range(4): a(f'v_mul_f32 v{g+r}, v{g+r}, v{u+r}')
            for r in range(4): a(f'v_mul_f32 v{g+r}, v{g+r}, v{E+r}')
            o = T0 + 8 + 4*T + 2*tt
            a(f'v_cvt_pk_bf16_f32 v{o}, v{g}, v{g+1}')
            a(f'v_cvt_pk_bf16_f32 v{o+1}, v{g+2}, v{g+3}')
        o = T0 + 8 + 4*T
        if T == 1: a(f's_add_u32 s{sT+7}, s{sT+7}, {56*1024}')
        a(f'buffer_store_dwordx4 v[{o}:{o+3}], v{VL16}, {WS}, s{sT+7} offen {sc}')
    signal_cnt(a, L+'_sig', FL_ACT, sCUR, T0)
    a(f's_add_u32 s{sSEG}, s{sSEG}, {nrep}')
    a(f's_cmp_lt_u32 s{sSEG}, 64')
    a(f's_cbranch_scc1 {L}_loop')
    a('s_branch L_exit')

def emit_F2(a, nrep, L='RG', sc='sc1'):
    WD_, OUT_ = 8, 12
    a(f's_load_dwordx2 s[{WD_}:{WD_+1}], s[0:1], {KA_WD}')
    a(f's_load_dwordx2 s[{OUT_}:{OUT_+1}], s[0:1], {KA_OUT}')
    sCG = sT
    divmod_small(a, sSEG, sCG, sIDX, 7)
    a('s_waitcnt lgkmcnt(0)')
    srd_fin(a, WD_, 1605632); srd_fin(a, OUT_, 1835008)
    VL, VL16 = 1, 2
    ld = 'sc1' if sc else ''
    RAW = 8
    VG, VW, VR = 3, 4, 5
    a(f'v_lshrrev_b32 v{VG}, 3, v{VL}')
    a(f'v_mul_u32_u24 v{VG}, 896, v{VG}')
    a(f'v_and_b32 v6, 7, v{VL}')
    a(f'v_lshl_add_u32 v{VG}, v6, 4, v{VG}')
    a(f's_mul_i32 s{sT+1}, s{sW}, 28672')
    a(f'v_add_u32 v{VW}, s{sT+1}, v{VL16}')
    a(f'v_lshrrev_b32 v6, 4, v{VL}')
    a(f'v_lshlrev_b32 v6, 2, v6')
    a(f'v_bfe_u32 v7, v{VL}, 2, 2')
    a(f'v_add_u32 v6, v6, v7')
    a(f'v_lshlrev_b32 v6, 7, v6')
    a(f'v_and_b32 v7, 3, v{VL}')
    a(f'v_lshl_add_u32 v6, v7, 3, v6')
    a(f'v_add_u32 v{VR}, s{sT+1}, v6')
    a(f's_mul_i32 s{sT+2}, s{sW}, {14*32*896}')
    a(f's_lshl_b32 s{sT+3}, s{sCG}, 7')
    a(f's_add_u32 s{sT+2}, s{sT+2}, s{sT+3}')
    for bt in range(2):
        for k7 in range(7):
            kf = bt*7 + k7
            for q4 in range(4):
                a(f's_add_u32 s{sT+3}, s{sT+2}, {(32*kf + 8*q4)*896}')
                b = RAW + (k7*4+q4)*4
                a(f'buffer_load_dwordx4 v[{b}:{b+3}], v{VG}, s[{WD_}:{WD_+3}], s{sT+3} offen')
        a('s_waitcnt vmcnt(0)')
        for k7 in range(7):
            for q4 in range(4):
                b = RAW + (k7*4+q4)*4
                a(f'ds_write_b128 v{VW}, v[{b}:{b+3}] offset:{k7*4096 + q4*1024}')
        a('s_waitcnt lgkmcnt(0)')
        for i in range(4):
            for k7 in range(7):
                d = (i*14 + bt*7 + k7)*4
                a(f'ds_read_b64_tr_b16 a[{d}:{d+1}], v{VR} offset:{k7*4096 + i*32}')
                a(f'ds_read_b64_tr_b16 a[{d+2}:{d+3}], v{VR} offset:{k7*4096 + i*32 + 2048}')
            a('s_waitcnt lgkmcnt(0)')
    a('s_barrier')
    TK, ACC, T0 = 4, 36, 72
    VRW, VRR, VHO, VOO = 68, 69, 70, 71
    a(f's_lshl_b32 s{sT+1}, s{sW}, 13')
    a(f'v_add_u32 v{VRW}, s{sT+1}, v{VL16}')
    a(f's_lshl_b32 s{sT+1}, s{sW}, 11')
    a(f'v_add_u32 v{VRR}, s{sT+1}, v{VL16}')
    a(f'v_and_b32 v{T0}, 15, v{VL}')
    a(f'v_lshrrev_b32 v{T0+1}, 4, v{VL}')
    a(f'v_lshrrev_b32 v{T0+2}, 1, v{T0+1}')
    a(f'v_lshlrev_b32 v{VHO}, 9, v{T0+2}')
    a(f'v_lshl_add_u32 v{VHO}, v{T0}, 4, v{VHO}')
    a(f'v_and_b32 v{T0+2}, 1, v{T0+1}')
    a(f'v_lshl_add_u32 v{VHO}, v{T0+2}, 3, v{VHO}')
    a(f'v_mul_u32_u24 v{VOO}, 896, v{T0}')
    a(f'v_lshl_add_u32 v{VOO}, v{T0+1}, 3, v{VOO}')
    sCT = sT+1
    a(f's_lshl_b32 s{sCT}, s{sCG}, 2')
    a(f's_add_u32 s{sCT}, s{sCT}, s{sW}')
    a(f'{L}_loop:')
    wait_cnt(a, L+'_wa', FL_ACT, sSEG, 14, T0)
    vm = VM(a)
    sAC = sT+2
    a(f's_mul_i32 s{sAC}, s{sSEG}, {ACT_STEP}')
    a(f's_mul_i32 s{sT+3}, s{sW}, {14*1024}')
    a(f's_add_u32 s{sAC}, s{sAC}, s{sT+3}')
    a(f's_add_u32 s{sAC}, s{sAC}, {ACT_OFF}')
    def tkload(kf):
        b = TK + 8*(kf & 3)
        a(f's_add_u32 s{sT+3}, s{sAC}, {kf*1024}')
        vm.op(f'buffer_load_dwordx4 v[{b}:{b+3}], v{VL16}, {WS}, s{sT+3} offen {ld}', f'k{kf}')
        a(f's_add_u32 s{sT+3}, s{sAC}, {(56+kf)*1024}')
        vm.op(f'buffer_load_dwordx4 v[{b+4}:{b+7}], v{VL16}, {WS}, s{sT+3} offen {ld}', f'k{kf}')
    for kf in range(3): tkload(kf)
    HV = T0 + 4
    a(f's_mul_i32 s{sT+4}, s{sSEG}, {HF_STEP}')
    a(f's_lshl_b32 s{sT+5}, s{sCT}, 10')
    a(f's_add_u32 s{sT+4}, s{sT+4}, s{sT+5}')
    a(f's_add_u32 s{sT+4}, s{sT+4}, {HF_OFF}')
    for T in range(2):
        vm.op(f'buffer_load_dwordx2 v[{HV+2*T}:{HV+2*T+1}], v{VHO}, {WS}, s{sT+4} offen offset:{T*256} {ld}', 'h')
    for kf in range(14):
        vm.wait(f'k{kf}')
        b = TK + 8*(kf & 3)
        for i in range(4):
            for T in range(2):
                d = ACC + (i*2+T)*4
                c = '0' if kf == 0 else f'v[{d}:{d+3}]'
                wb = (i*14+kf)*4
                a(f'v_mfma_f32_16x16x32_bf16 v[{d}:{d+3}], a[{wb}:{wb+3}], v[{b+4*T}:{b+4*T+3}], {c}')
            if i == 1 and kf + 3 < 14: tkload(kf+3)
    a('s_nop 7')
    for t in range(8):
        a(f'ds_write_b128 v{VRW}, v[{ACC+4*t}:{ACC+4*t+3}] offset:{t*1024}')
    a(f'v_xor_b32 v{VRW}, 0x8000, v{VRW}')
    a('s_waitcnt lgkmcnt(0)')
    a('s_barrier')
    for T in range(2):
        for w in range(4):
            b = ACC + (T*4+w)*4
            a(f'ds_read_b128 v[{b}:{b+3}], v{VRR} offset:{w*8192 + T*1024}')
    a(f'v_xor_b32 v{VRR}, 0x8000, v{VRR}')
    a('s_waitcnt lgkmcnt(0)')
    vm.waitall()
    a(f's_mul_i32 s{sT+4}, s{sSEG}, {32*896}')
    a(f's_lshl_b32 s{sT+5}, s{sCT}, 5')
    a(f's_add_u32 s{sT+4}, s{sT+4}, s{sT+5}')
    X = T0 + 8
    for T in range(2):
        b = ACC + T*16
        for r in range(4):
            a(f'v_add_f32 v{b+r}, v{b+r}, v{b+4+r}')
            a(f'v_add_f32 v{b+8+r}, v{b+8+r}, v{b+12+r}')
        for r in range(4): a(f'v_add_f32 v{b+r}, v{b+r}, v{b+8+r}')
        a(f'v_lshlrev_b32 v{X}, 16, v{HV+2*T}')
        a(f'v_and_b32 v{X+1}, 0xffff0000, v{HV+2*T}')
        a(f'v_lshlrev_b32 v{X+2}, 16, v{HV+2*T+1}')
        a(f'v_and_b32 v{X+3}, 0xffff0000, v{HV+2*T+1}')
        for r in range(4): a(f'v_add_f32 v{b+r}, v{b+r}, v{X+r}')
        a(f'v_cvt_pk_bf16_f32 v{X+4+2*T}, v{b}, v{b+1}')
        a(f'v_cvt_pk_bf16_f32 v{X+5+2*T}, v{b+2}, v{b+3}')
        if T == 1: a(f's_add_u32 s{sT+4}, s{sT+4}, {16*896}')
        a(f'buffer_store_dwordx2 v[{X+4+2*T}:{X+5+2*T}], v{VOO}, s[{OUT_}:{OUT_+3}], s{sT+4} offen')
    a(f's_add_u32 s{sSEG}, s{sSEG}, {nrep}')
    a(f's_cmp_lt_u32 s{sSEG}, 64')
    a(f's_cbranch_scc1 {L}_loop')
    a('s_waitcnt vmcnt(0)')
    a('s_branch L_exit')
```

```python
S, DM, H, DH, M, SEG, NSEG, FF = 2048, 448, 16, 256, 8, 32, 64, 1792
FRAG = 2048
AF_OFF = 0
AF_SZ = 16*28*7*FRAG
BF_OFF = AF_OFF + AF_SZ
UF_OFF = BF_OFF + AF_SZ
UF_STEP = 16*28*1024
UF_SZ = 64*UF_STEP
XNP_OFF = UF_OFF + UF_SZ
XNP_STEP = 56*32*16
XNP_SZ = 64*XNP_STEP
MEMF_OFF = XNP_OFF + XNP_SZ
MEMF_STEP = 7168
MEMF_SZ = 64*MEMF_STEP
P_OFF = MEMF_OFF + MEMF_SZ
P_STEP = 10240
P_SZ = 64*P_STEP
W_OFF = P_OFF + P_SZ
W_STEP = 14*16384
W_SZ = 64*W_STEP
XNQ_OFF = W_OFF + W_SZ
XNQ_STEP = 28672
XNQ_SZ = 64*XNQ_STEP
PT_OFF = XNQ_OFF + XNQ_SZ
PTX_STEP = 16*2*1024
PTM_STEP = 8*2*1024
PT_STEP = PTX_STEP + PTM_STEP
PT_SZ = 64*PT_STEP
HF_OFF = PT_OFF + PT_SZ
HF_STEP = 28672
HF_SZ = 64*HF_STEP
ACT_OFF = HF_OFF + HF_SZ
ACT_STEP = 2*56*1024
ACT_SZ = 64*ACT_STEP
ST_OFF = ACT_OFF + ACT_SZ
ST_STEP = 32*32*8
ST_SZ = 64*ST_STEP
MEMG_OFF = ST_OFF + ST_SZ
MEMG_SZ = MEMF_SZ
FLAG_OFF = MEMG_OFF + MEMG_SZ
FLAG_SZ = 1 << 16
FL_UDONE = FLAG_OFF
FL_PT = FLAG_OFF + 128
FL_W = FL_PT + 64*128
FL_H = FL_W + 64*128
FL_ACT = FL_H + 64*128
FL_UF = FL_ACT + 64*128
FL_XCD = FL_UF + 64*128
TS_OFF = FLAG_OFF + FLAG_SZ
TS_SZ = 1 << 20
END_OFF = TS_OFF + TS_SZ
WS_BYTES = 268435456
LOG2E = 1.4426950408889634
KA_X, KA_MEM0, KA_WQ, KA_WK, KA_WV, KA_WO, KA_WG, KA_WU, KA_WD, KA_OUT, KA_DBG, KA_WS = 0, 8, 16, 24, 32, 40, 64, 72, 80, 88, 96, 104
if __name__ == '__main__':
    for k, v in list(globals().items()):
        if k.isupper() and isinstance(v, int): print(k, v, hex(v))
```

```python
from common import *

def emit_prep(a, L='PR'):
    WSR, W1, W2, XS_, M0_ = 4, 8, 12, 16, 20
    WS = f's[{WSR}:{WSR+3}]'
    sW, sM, sH, sKK, sT = 24, 25, 26, 27, 28
    a(f'''
s_cmp_ge_u32 s2, 256
s_cbranch_scc1 {L}_exit
s_load_dwordx2 s[{WSR}:{WSR+1}], s[0:1], {KA_WS}
v_lshrrev_b32 v1, 6, v0
s_nop 0
v_readfirstlane_b32 s{sW}, v1
v_and_b32 v1, 63, v0              ; lane
s_cmp_ge_u32 s2, 224
s_cbranch_scc1 {L}_ln
; ---------------- P2: A' / B fragments
s_cmp_ge_u32 s2, 112
s_cselect_b32 s{sM}, 1, 0
s_mul_i32 s{sT}, s{sM}, 112
s_sub_u32 s{sT}, s2, s{sT}
s_mul_i32 s{sH}, s{sT}, 9363
s_lshr_b32 s{sH}, s{sH}, 16
s_mul_i32 s{sKK}, s{sH}, 7
s_sub_u32 s{sKK}, s{sT}, s{sKK}
s_cmp_eq_u32 s{sM}, 0
s_cbranch_scc0 {L}_ptrB
s_load_dwordx2 s[{W1}:{W1+1}], s[0:1], {KA_WQ}
s_load_dwordx2 s[{W2}:{W2+1}], s[0:1], {KA_WK}
s_branch {L}_ptr
{L}_ptrB:
s_load_dwordx2 s[{W1}:{W1+1}], s[0:1], {KA_WV}
s_load_dwordx2 s[{W2}:{W2+1}], s[0:1], {KA_WO}
{L}_ptr:
s_waitcnt lgkmcnt(0)''')
    srd_fin(a, WSR, WS_BYTES); srd_fin(a, W1, 3670016); srd_fin(a, W2, 3670016)
    VL, VL16, VA, VB, VT, VT2, VTR, VTRB = 1, 2, 3, 4, 5, 6, 7, 8
    AOP, BOP, RAW, ACC = 16, 144, 208, 240
    a(f'v_lshlrev_b32 v{VL16}, 4, v{VL}')
    a(f'v_and_b32 v{VT}, 15, v{VL}')
    key_of_rho(a, VA, VT, VT2, None)
    a(f'v_lshlrev_b32 v{VA}, 13, v{VA}')
    a(f'v_lshrrev_b32 v{VT2}, 4, v{VL}')
    a(f'v_lshl_add_u32 v{VA}, v{VT2}, 4, v{VA}')
    a(f's_lshl_b32 s{sT}, s{sKK}, 19')
    a(f's_lshl_b32 s{sT+1}, s{sH}, 9')
    a(f's_add_u32 s{sT}, s{sT}, s{sT+1}')
    for rh in range(2):
        for XY in range(2):
            a(f's_add_u32 s{sT+2}, s{sT}, {(32*rh+2*XY)*8192}')
            for ks in range(8):
                b = AOP + ((rh*2+XY)*8+ks)*4
                a(f'buffer_load_dwordx4 v[{b}:{b+3}], v{VA}, s[{W1}:{W1+3}], s{sT+2} offen offset:{ks*64}')
    a(f's_mul_i32 s{sT+3}, s{sH}, 28')
    a(f's_mul_i32 s{sT+4}, s{sW}, 7')
    a(f's_add_u32 s{sT+3}, s{sT+3}, s{sT+4}')
    a(f's_mul_i32 s{sT+3}, s{sT+3}, 7')
    a(f's_add_u32 s{sT+3}, s{sT+3}, s{sKK}')
    a(f's_lshl_b32 s{sT+3}, s{sT+3}, 11')
    a(f's_mul_i32 s{sT+5}, s{sM}, {BF_OFF}')
    a(f's_add_u32 s{sT+3}, s{sT+3}, s{sT+5}')
    sOUT = sT+3
    def mfmas(bop):
        for t in range(4):
            for ks in range(8):
                c = '0' if ks == 0 else f'v[{ACC+4*t}:{ACC+4*t+3}]'
                ab = AOP + (t*8+ks)*4
                a(f'v_mfma_f32_16x16x32_bf16 v[{ACC+4*t}:{ACC+4*t+3}], v[{ab}:{ab+3}], v[{bop+4*ks}:{bop+4*ks+3}], {c}')
    def epilogue(scale):
        a('s_nop 7')
        if scale:
            a(f'v_mov_b32 v{VT}, {hex(f32(LOG2E/16))}')
            for r in range(16): a(f'v_mul_f32 v{ACC+r}, v{ACC+r}, v{VT}')
        for rh in range(2):
            x, y = ACC + 8*rh, ACC + 8*rh + 4
            o = RAW + 4*rh if False else 12
            a(f'v_cvt_pk_bf16_f32 v12, v{x}, v{x+1}')
            a(f'v_cvt_pk_bf16_f32 v13, v{x+2}, v{x+3}')
            a(f'v_cvt_pk_bf16_f32 v14, v{y}, v{y+1}')
            a(f'v_cvt_pk_bf16_f32 v15, v{y+2}, v{y+3}')
            a(f'buffer_store_dwordx4 v[12:15], v{VL16}, {WS}, s{sOUT} offen offset:{rh*1024}')
            a('s_nop 2')
        a(f's_add_u32 s{sOUT}, s{sOUT}, {7*2048}')
    a(f's_cmp_eq_u32 s{sM}, 0')
    a(f's_cbranch_scc0 {L}_matB')
    a(f'v_and_b32 v{VT}, 15, v{VL}')
    a(f'v_lshlrev_b32 v{VB}, 13, v{VT}')
    a(f'v_lshrrev_b32 v{VT2}, 4, v{VL}')
    a(f'v_lshl_add_u32 v{VB}, v{VT2}, 4, v{VB}')
    a(f's_mul_i32 s{sT+4}, s{sW}, {7*16*8192}')
    a(f's_lshl_b32 s{sT+5}, s{sH}, 9')
    a(f's_add_u32 s{sT+4}, s{sT+4}, s{sT+5}')
    def bload(buf):
        for ks in range(8):
            b = BOP + 32*buf + 4*ks
            a(f'buffer_load_dwordx4 v[{b}:{b+3}], v{VB}, s[{W2}:{W2+3}], s{sT+4} offen offset:{ks*64}')
        a(f's_add_u32 s{sT+4}, s{sT+4}, {16*8192}')
    bload(0)
    for cti in range(7):
        if cti < 6:
            bload((cti+1) & 1)
            a('s_waitcnt vmcnt(8)')
        else:
            a('s_waitcnt vmcnt(0)')
        mfmas(BOP + 32*(cti & 1))
        epilogue(True)
    a(f's_branch {L}_exit')
    a(f'{L}_matB:')
    a(f'v_lshrrev_b32 v{VT}, 1, v{VL}')
    a(f'v_mul_u32_u24 v{VB}, 896, v{VT}')
    a(f'v_and_b32 v{VT}, 1, v{VL}')
    a(f'v_lshl_add_u32 v{VB}, v{VT}, 4, v{VB}')
    a(f's_mul_i32 s{sT+4}, s{sH}, 229376')
    a(f's_mul_i32 s{sT+5}, s{sW}, {7*32}')
    a(f's_add_u32 s{sT+4}, s{sT+4}, s{sT+5}')
    a(f's_lshl_b32 s{sT+5}, s{sW}, 13')
    a(f'v_add_u32 v{VT2}, s{sT+5}, v{VL16}')
    VLW = 9
    a(f'v_mov_b32 v{VLW}, v{VT2}')
    a(f'v_lshrrev_b32 v{VT}, 4, v{VL}')
    a(f'v_lshlrev_b32 v{VT}, 3, v{VT}')
    a(f'v_bfe_u32 v{VT2}, v{VL}, 2, 2')
    a(f'v_add_u32 v{VT}, v{VT}, v{VT2}')
    a(f'v_lshlrev_b32 v{VT}, 5, v{VT}')
    a(f'v_and_b32 v{VT2}, 3, v{VL}')
    a(f'v_lshl_add_u32 v{VT}, v{VT2}, 3, v{VT}')
    a(f'v_add_u32 v{VTR}, s{sT+5}, v{VT}')
    def rawload():
        for ks in range(8):
            a(f's_add_u32 s{sT+6}, s{sT+4}, {ks*28672}')
            a(f'buffer_load_dwordx4 v[{RAW+4*ks}:{RAW+4*ks+3}], v{VB}, s[{W2}:{W2+3}], s{sT+6} offen')
        a(f's_add_u32 s{sT+4}, s{sT+4}, 32')
    rawload()
    for cti in range(7):
        a('s_waitcnt vmcnt(0)')
        for ks in range(8):
            a(f'ds_write_b128 v{VLW}, v[{RAW+4*ks}:{RAW+4*ks+3}] offset:{ks*1024}')
        a('s_waitcnt lgkmcnt(0)')
        if cti < 6: rawload()
        for ks in range(8):
            b = BOP + 4*ks
            a(f'ds_read_b64_tr_b16 v[{b}:{b+1}], v{VTR} offset:{ks*1024}')
            a(f'ds_read_b64_tr_b16 v[{b+2}:{b+3}], v{VTR} offset:{ks*1024+128}')
        a('s_waitcnt lgkmcnt(0)')
        mfmas(BOP)
        epilogue(False)
    a(f's_branch {L}_exit')
    a(f'{L}_ln:')
    a(f's_load_dwordx2 s[{XS_}:{XS_+1}], s[0:1], {KA_X}')
    a(f's_load_dwordx2 s[{M0_}:{M0_+1}], s[0:1], {KA_MEM0}')
    a('s_waitcnt lgkmcnt(0)')
    srd_fin(a, WSR, WS_BYTES); srd_fin(a, XS_, 1835008); srd_fin(a, M0_, 7168)
    sQ, sS, sXY = 26, 27, 25
    a(f's_sub_u32 s{sQ}, s2, 224')
    a(f's_lshr_b32 s{sS}, s{sW}, 1')
    a(f's_lshl_b32 s{sT}, s{sQ}, 1')
    a(f's_add_u32 s{sS}, s{sS}, s{sT}')
    a(f's_and_b32 s{sXY}, s{sW}, 1')
    VKEY, VG, VXA, VQ, VPO, VS, VM, VR = 2, 3, 4, 5, 6, 7, 8, 9
    RAWX, FX, TMP = 16, 72, 184
    a(f'v_and_b32 v{TMP}, 15, v{VL}')
    key_of_rho(a, VKEY, TMP, TMP+1, None)
    a(f's_lshl_b32 s{sT}, s{sXY}, 1')
    a(f'v_add_u32 v{VKEY}, s{sT}, v{VKEY}')
    a(f'v_lshrrev_b32 v{VG}, 4, v{VL}')
    a(f'v_mul_u32_u24 v{VXA}, 896, v{VKEY}')
    a(f'v_lshrrev_b32 v{TMP}, 1, v{VG}')
    a(f'v_lshl_add_u32 v{VXA}, v{TMP}, 5, v{VXA}')
    a(f'v_and_b32 v{TMP+1}, 1, v{VG}')
    a(f'v_lshl_add_u32 v{VXA}, v{TMP+1}, 3, v{VXA}')
    a(f's_mul_i32 s{sT}, s{sS}, {32*896}')
    for kb in range(14):
        for p in range(2):
            b = RAWX + (kb*2+p)*2
            a(f'buffer_load_dwordx2 v[{b}:{b+1}], v{VXA}, s[{XS_}:{XS_+3}], s{sT} offen offset:{(32*kb+8*p)*2}')
    a(f'v_lshlrev_b32 v{VPO}, 10, v{TMP}')
    a(f'v_lshl_add_u32 v{VPO}, v{VKEY}, 4, v{VPO}')
    a(f'v_lshl_add_u32 v{VPO}, v{TMP+1}, 3, v{VPO}')
    a(f'v_lshlrev_b32 v{VQ}, 4, v{VL}')
    a('s_waitcnt vmcnt(0)')
    for i in range(56):
        a(f'v_lshlrev_b32 v{FX+2*i}, 16, v{RAWX+i}')
        a(f'v_and_b32 v{FX+2*i+1}, 0xffff0000, v{RAWX+i}')
    a(f'v_mov_b32 v{VS}, 0')
    for i in range(0, 112, 2):
        a(f'v_add_f32 v{TMP}, v{FX+i}, v{FX+i+1}')
        a(f'v_add_f32 v{VS}, v{VS}, v{TMP}')
    rowsum4(a, VS, TMP)
    a(f'v_mul_f32 v{VM}, {hex(f32(1/448))}, v{VS}')
    a(f'v_mov_b32 v{VS}, 0')
    for i in range(112):
        a(f'v_sub_f32 v{FX+i}, v{FX+i}, v{VM}')
        a(f'v_fmac_f32 v{VS}, v{FX+i}, v{FX+i}')
    rowsum4(a, VS, TMP)
    a(f'v_mov_b32 v{TMP}, {hex(f32(1e-5))}')
    a(f'v_fmac_f32 v{TMP}, {hex(f32(1/448))}, v{VS}')
    a(f'v_rsq_f32 v{VR}, v{TMP}')
    a('s_nop 0')
    for i in range(112): a(f'v_mul_f32 v{FX+i}, v{FX+i}, v{VR}')
    a(f's_lshl_b32 s{sT}, s{sS}, 1')
    a(f's_add_u32 s{sT}, s{sT}, s{sXY}')
    a(f's_mul_i32 s{sT}, s{sT}, {14*1024}')
    a(f's_add_u32 s{sT}, s{sT}, {XNQ_OFF}')
    a(f's_mul_i32 s{sT+1}, s{sS}, {XNP_STEP}')
    a(f's_add_u32 s{sT+1}, s{sT+1}, {XNP_OFF}')
    for kb in range(14):
        x = FX + kb*8; y = x + 4
        q = TMP + 4*(kb & 1); pp = TMP + 8 + 4*(kb & 1)
        a(f'v_cvt_pk_bf16_f32 v{q}, v{x}, v{x+1}')
        a(f'v_cvt_pk_bf16_f32 v{q+1}, v{y}, v{y+1}')
        a(f'v_cvt_pk_bf16_f32 v{q+2}, v{x+2}, v{x+3}')
        a(f'v_cvt_pk_bf16_f32 v{q+3}, v{y+2}, v{y+3}')
        a(f'v_mov_b32 v{pp}, v{q}')
        a(f'v_mov_b32 v{pp+1}, v{q+2}')
        a(f'v_mov_b32 v{pp+2}, v{q+1}')
        a(f'v_mov_b32 v{pp+3}, v{q+3}')
        if kb*1024 >= 4096 and (kb*1024) % 4096 == 0: a(f's_add_u32 s{sT}, s{sT}, 4096')
        a(f'buffer_store_dwordx4 v[{q}:{q+3}], v{VQ}, {WS}, s{sT} offen offset:{(kb*1024) % 4096}')
        a(f's_add_u32 s{sT+2}, s{sT+1}, {4*kb*512}')
        a(f'buffer_store_dwordx2 v[{pp}:{pp+1}], v{VPO}, {WS}, s{sT+2} offen')
        a(f'buffer_store_dwordx2 v[{pp+2}:{pp+3}], v{VPO}, {WS}, s{sT+2} offen offset:512')
        if kb & 1: a('s_waitcnt vmcnt(0)')
    fill0 = MEMF_OFF + MEMF_STEP; filln = P_OFF + P_SZ - fill0
    per = (filln + 31) // 32; per = (per + 4095) // 4096 * 4096
    a(f'v_lshlrev_b32 v{TMP}, 4, v0')
    for r in range(4): a(f'v_mov_b32 v{TMP+4+r}, -1')
    a(f's_mul_i32 s{sT}, s{sQ}, {per}')
    a(f's_add_u32 s{sT}, s{sT}, {fill0}')
    a(f's_mov_b32 s{sT+1}, {P_OFF + P_SZ}')
    for it in range(per // 4096):
        a(f's_cmp_ge_u32 s{sT}, s{sT+1}')
        a(f's_cbranch_scc1 {L}_filled')
        a(f'buffer_store_dwordx4 v[{TMP+4}:{TMP+7}], v{TMP}, {WS}, s{sT} offen')
        a(f's_add_u32 s{sT}, s{sT}, 4096')
    a(f'{L}_filled:')
    assert filln % 4096 == 0 or True
    a(f's_mul_i32 s{sT}, s{sQ}, 14336')
    a(f's_add_u32 s{sT}, s{sT}, {MEMG_OFF + MEMF_STEP}')
    a(f's_mov_b32 s{sT+1}, {MEMG_OFF + MEMG_SZ}')
    for it in range(4):
        a(f's_cmp_ge_u32 s{sT}, s{sT+1}')
        a(f's_cbranch_scc1 {L}_filled2')
        a(f'v_add_u32 v{TMP+1}, s{sT}, v{TMP}')
        a(f's_add_u32 s{sT+2}, s{sT}, {14336 - it*4096}')
        a(f's_min_u32 s{sT+2}, s{sT+2}, s{sT+1}')
        a(f'v_cmp_gt_u32 vcc, s{sT+2}, v{TMP+1}')
        a(f's_and_saveexec_b64 s[{sT+4}:{sT+5}], vcc')
        a(f's_cbranch_execz {L}_f2s{it}')
        a(f'buffer_store_dwordx4 v[{TMP+4}:{TMP+7}], v{TMP+1}, {WS}, 0 offen')
        a(f'{L}_f2s{it}:')
        a(f's_mov_b64 exec, s[{sT+4}:{sT+5}]')
        a(f's_add_u32 s{sT}, s{sT}, 4096')
    a(f'{L}_filled2:')
    for r in range(4): a(f'v_mov_b32 v{TMP+8+r}, 0')
    a(f's_lshl_b32 s{sT}, s{sQ}, 11')
    a(f's_add_u32 s{sT}, s{sT}, {FLAG_OFF}')
    a(f'v_cmp_gt_u32 vcc, 2048, v{TMP}')
    a(f's_and_saveexec_b64 s[{sT+4}:{sT+5}], vcc')
    a(f's_cbranch_execz {L}_flz')
    a(f'buffer_store_dwordx4 v[{TMP+8}:{TMP+11}], v{TMP}, {WS}, s{sT} offen')
    a(f'{L}_flz:')
    a(f's_mov_b64 exec, s[{sT+4}:{sT+5}]')
    a(f's_cmp_lg_u32 s{sQ}, 0')
    a(f's_cbranch_scc1 {L}_exit')
    for rnd in range(2):
        a(f'v_add_u32 v{TMP+1}, {256*rnd}, v0')
        a(f'v_and_b32 v{TMP+2}, 7, v{TMP+1}')
        a(f'v_mul_u32_u24 v{TMP+2}, 896, v{TMP+2}')
        a(f'v_lshrrev_b32 v{TMP+3}, 3, v{TMP+1}')
        a(f'v_lshl_add_u32 v{TMP+2}, v{TMP+3}, 4, v{TMP+2}')
        a(f'v_lshlrev_b32 v{TMP+1}, 4, v{TMP+1}')
        a(f'v_cmp_gt_u32 vcc, 7168, v{TMP+1}')
        a(f's_and_saveexec_b64 s[{sT+2}:{sT+3}], vcc')
        a(f's_cbranch_execz {L}_m0skip{rnd}')
        a(f'buffer_load_dwordx4 v[{TMP+4}:{TMP+7}], v{TMP+2}, s[{M0_}:{M0_+3}], 0 offen')
        a('s_waitcnt vmcnt(0)')
        a(f's_mov_b32 s{sT}, {MEMF_OFF}')
        a(f'buffer_store_dwordx4 v[{TMP+4}:{TMP+7}], v{TMP+1}, {WS}, s{sT} offen')
        a(f's_mov_b32 s{sT}, {MEMG_OFF}')
        a(f'buffer_store_dwordx4 v[{TMP+4}:{TMP+7}], v{TMP+1}, {WS}, s{sT} offen')
        a(f'{L}_m0skip{rnd}:')
        a(f's_mov_b64 exec, s[{sT+2}:{sT+3}]')
    a(f'{L}_exit:')
    a('s_endpgm')

if __name__ == '__main__':
    a = Asm(); emit_prep(a)
    txt = assemble_file([('prep_kernel', 256, 256, 32768)], [('prep_kernel', a.text(), 256, 256)])
    open('prep.s', 'w').write(txt)
    import subprocess
    r = subprocess.run(['clang', '-x', 'assembler', '-target', 'amdgcn-amd-amdhsa', '-mcpu=gfx950', '-c', 'prep.s', '-o', 'prep.o'], capture_output=True, text=True)
    print(r.returncode, r.stderr[:3000], len(txt.splitlines()))
    print((P_OFF+P_SZ-MEMF_OFF-MEMF_STEP), (P_OFF+P_SZ-MEMF_OFF-MEMF_STEP) % 4096, (MEMF_OFF+MEMF_STEP) % 16)
```

```python
from common import *

WSR = 4
WS = f's[{WSR}:{WSR+3}]'
sW, sSEG, sSTR, sT = 24, 25, 26, 28

class LG:
    def __init__(self, a): self.a = a; self.q = []
    def op(self, text, tag=None): self.a(text); self.q.append(tag)
    def wait(self, tag):
        idx = max(i for i, t in enumerate(self.q) if t == tag)
        n = len(self.q) - 1 - idx
        self.a(f's_waitcnt lgkmcnt({min(n, 15)})')
        self.q = self.q[idx+1:] if n <= 15 else self.q[len(self.q)-15:]
    def waitall(self): self.a('s_waitcnt lgkmcnt(0)'); self.q = []
class VM:
    def __init__(self, a): self.a = a; self.q = []
    def op(self, text, tag=None): self.a(text); self.q.append(tag)
    def wait(self, tag):
        idxs = [i for i, t in enumerate(self.q) if t == tag]
        if not idxs: return
        idx = max(idxs); n = len(self.q) - 1 - idx
        self.a(f's_waitcnt vmcnt({min(n, 63)})')
        self.q = self.q[idx+1:]
    def waitall(self): self.a('s_waitcnt vmcnt(0)'); self.q = []


SPIN_MAX = 5000
sIDX = 22
class Fz:
    exit = 'L_exit'
def wait_cnt(a, L, base, sseg, target, vt):
    a(f's_cmp_lg_u32 s{sW}, 0')
    a(f's_cbranch_scc1 {L}_w')
    if sseg is None:
        a(f'v_mov_b32 v{vt}, {base}')
    else:
        a(f's_lshl_b32 s46, s{sseg}, 7')
        a(f's_add_u32 s46, s46, {base}')
        a(f'v_mov_b32 v{vt}, s46')
    a(f's_mov_b32 s47, 0')
    a(f'{L}_p:')
    a(f'buffer_load_dword v{vt+1}, v{vt}, {WS}, 0 offen sc1')
    a('s_waitcnt vmcnt(0)')
    a(f'v_readfirstlane_b32 s46, v{vt+1}')
    a(f's_add_u32 s47, s47, 1')
    a('s_nop 1')
    a(f's_cmp_ge_u32 s46, {target}')
    a(f's_cbranch_scc1 {L}_w')
    a(f's_cmp_gt_u32 s47, {SPIN_MAX}')
    a(f's_cbranch_scc1 {L}_w')
    a('s_sleep 4')
    a(f's_branch {L}_p')
    a(f'{L}_w:')
    a('s_barrier')
def signal_cnt(a, L, base, sseg, vt):
    a('s_waitcnt vmcnt(0)')
    a('s_barrier')
    a(f's_cmp_lg_u32 s{sW}, 0')
    a(f's_cbranch_scc1 {L}_s')
    if sseg is None:
        a(f'v_mov_b32 v{vt}, {base}')
    else:
        a(f's_lshl_b32 s46, s{sseg}, 7')
        a(f's_add_u32 s46, s46, {base}')
        a(f'v_mov_b32 v{vt}, s46')
    a(f'v_mov_b32 v{vt+1}, 1')
    a('s_mov_b64 exec, 1')
    a(f'buffer_atomic_add v{vt+1}, v{vt}, {WS}, 0 offen')
    a('s_mov_b64 exec, -1')
    a(f'{L}_s:')

def role_prologue(a, L, ngrid):
    a(f'''
s_cmp_ge_u32 s2, {ngrid}
s_cbranch_scc1 {L}_exit
s_load_dwordx2 s[{WSR}:{WSR+1}], s[0:1], {KA_WS}
v_lshrrev_b32 v1, 6, v0
s_nop 0
v_readfirstlane_b32 s{sW}, v1
v_and_b32 v1, 63, v0
v_lshlrev_b32 v2, 4, v1
s_waitcnt lgkmcnt(0)''')
    srd_fin(a, WSR, WS_BYTES)

def divmod_small(a, sq, sr_, sx, d):
    m = (65536 + d - 1) // d
    for x in range(1024): assert (x*m) >> 16 == x // d, (x, d)
    a(f's_mul_i32 s{sq}, s{sx}, {m}')
    a(f's_lshr_b32 s{sq}, s{sq}, 16')
    a(f's_mul_i32 s{sr_}, s{sq}, {d}')
    a(f's_sub_u32 s{sr_}, s{sx}, s{sr_}')

def emit_U(a, nrep, L='RU', sc='', fz=None):
    if fz is None: role_prologue(a, L, 28*nrep)
    sCG, sREP = sT, sT+1
    divmod_small(a, sREP, sCG, 2 if fz is None else sIDX, 28)
    a(f's_mov_b32 s{sSEG}, s{sREP}')
    VL, VL16 = 1, 2
    TK, STG, ACC, OUT = 4, 36, 64, 96
    VLW, VLR = 104, 105
    sTIX = sT+2
    a(f's_lshl_b32 s{sTIX}, s{sCG}, 4')
    a(f's_lshl_b32 s{sT+3}, s{sW}, 2')
    a(f's_add_u32 s{sTIX}, s{sTIX}, s{sT+3}')
    a(f's_mul_i32 s{sT+3}, s{sTIX}, 14336')
    a(f's_add_u32 s{sT+3}, s{sT+3}, {BF_OFF}')
    n = 0
    for i in range(4):
        for kb in range(14):
            off = (i*14+kb)*1024
            if off % 4096 == 0 and off > 0: a(f's_add_u32 s{sT+3}, s{sT+3}, 4096')
            b = (i*14+kb)*4
            a(f'buffer_load_dwordx4 a[{b}:{b+3}], v{VL16}, {WS}, s{sT+3} offen offset:{off % 4096}')
            n += 1
            if n % 32 == 0: a('s_waitcnt vmcnt(16)')
    a(f's_mul_i32 s{sT+3}, s{sW}, 7168')
    a(f'v_add_u32 v{VLW}, s{sT+3}, v{VL16}')
    a(f'v_mov_b32 v{VLR}, v{VL16}')
    sSRC = sT+4
    def stage_loads():
        a(f's_mul_i32 s{sSRC}, s{sSEG}, {XNQ_STEP}')
        a(f's_mul_i32 s{sT+5}, s{sW}, 7168')
        a(f's_add_u32 s{sSRC}, s{sSRC}, s{sT+5}')
        a(f's_add_u32 s{sSRC}, s{sSRC}, {XNQ_OFF}')
        a(f's_add_u32 s{sT+5}, s{sSRC}, 4096')
        for i in range(7):
            so = sSRC if i < 4 else sT+5
            a(f'buffer_load_dwordx4 v[{STG+4*i}:{STG+4*i+3}], v{VL16}, {WS}, s{so} offen offset:{(i*1024) % 4096}')
    def stage_write():
        for i in range(7):
            a(f'ds_write_b128 v{VLW}, v[{STG+4*i}:{STG+4*i+3}] offset:{i*1024}')
        a(f'v_xor_b32 v{VLW}, 0x8000, v{VLW}')
    stage_loads()
    a('s_waitcnt vmcnt(0)')
    stage_write()
    a('s_waitcnt lgkmcnt(0)')
    a('s_barrier')
    a(f'{L}_loop:')
    sCUR = sT+6
    a(f's_mov_b32 s{sCUR}, s{sSEG}')
    a(f's_add_u32 s{sSEG}, s{sSEG}, {nrep}')
    a(f's_cmp_ge_u32 s{sSEG}, 64')
    a(f's_cbranch_scc1 {L}_nopf')
    stage_loads()
    a(f'{L}_nopf:')
    lg = LG(a)
    def tkread(kb):
        b = TK + 8*(kb & 3)
        lg.op(f'ds_read_b128 v[{b}:{b+3}], v{VLR} offset:{kb*1024}', f'k{kb}')
        lg.op(f'ds_read_b128 v[{b+4}:{b+7}], v{VLR} offset:{(14+kb)*1024}', f'k{kb}')
    for kb in range(3): tkread(kb)
    for kb in range(14):
        lg.wait(f'k{kb}')
        b = TK + 8*(kb & 3)
        for i in range(4):
            for XY in range(2):
                d = ACC + (i*2+XY)*4
                c = '0' if kb == 0 else f'v[{d}:{d+3}]'
                wb = (i*14+kb)*4
                a(f'v_mfma_f32_16x16x32_bf16 v[{d}:{d+3}], v[{b+4*XY}:{b+4*XY+3}], a[{wb}:{wb+3}], {c}')
            if i == 1 and kb + 3 < 14: tkread(kb+3)
    a(f'v_xor_b32 v{VLR}, 0x8000, v{VLR}')
    a(f's_mul_i32 s{sT+7}, s{sCUR}, {UF_STEP}')
    a(f's_lshl_b32 s{sT+8}, s{sTIX}, 10')
    a(f's_add_u32 s{sT+7}, s{sT+7}, s{sT+8}')
    a(f's_add_u32 s{sT+7}, s{sT+7}, {UF_OFF}')
    a('s_nop 7')
    for i in range(4):
        x, y = ACC + i*8, ACC + i*8 + 4
        o = OUT + 4*(i & 1)
        a(f'v_cvt_pk_bf16_f32 v{o}, v{x}, v{x+1}')
        a(f'v_cvt_pk_bf16_f32 v{o+1}, v{x+2}, v{x+3}')
        a(f'v_cvt_pk_bf16_f32 v{o+2}, v{y}, v{y+1}')
        a(f'v_cvt_pk_bf16_f32 v{o+3}, v{y+2}, v{y+3}')
        a(f'buffer_store_dwordx4 v[{o}:{o+3}], v{VL16}, {WS}, s{sT+7} offen offset:{i*1024} {sc}')
        if i == 1: a('s_nop 2')
    a(f's_cmp_ge_u32 s{sSEG}, 64')
    a(f's_cbranch_scc1 {L}_done')
    a('s_waitcnt vmcnt(4)')
    stage_write()
    a('s_waitcnt lgkmcnt(0)')
    a('s_barrier')
    a(f's_branch {L}_loop')
    a(f'{L}_done:')
    if fz is not None:
        signal_cnt(a, L+'_sig', FL_UDONE, None, 4)
        return
    a('s_waitcnt vmcnt(0)')
    a(f'{L}_exit:')
    a('s_endpgm')


def wbase(f): return ('a', 8*f) if f < 32 else ('v', 120+8*(f-32))
def whalf(f, rh):
    t, b = wbase(f); b += 4*rh; return f'{t}[{b}:{b+3}]'

def emit_X(a, nrep, L='RX', sc=''):
    role_prologue(a, L, 16*nrep)
    sH, sREP = sT, sT+1
    a(f's_and_b32 s{sH}, s2, 15')
    a(f's_lshr_b32 s{sSEG}, s2, 4')
    VL, VL16 = 1, 2
    TK, ACC = 4, 36
    VKX, VKM, VSW, VSR, VQ = 92, 93, 94, 95, 96
    T0 = 100
    sMSK = 48
    a(f's_mul_i32 s{sT+2}, s{sH}, 28')
    a(f's_mul_i32 s{sT+3}, s{sW}, 7')
    a(f's_add_u32 s{sT+2}, s{sT+2}, s{sT+3}')
    a(f's_mul_i32 s{sT+2}, s{sT+2}, {7*2048}')
    a(f's_add_u32 s{sT+2}, s{sT+2}, {AF_OFF}')
    n = 0
    for f in range(49):
        for rh in range(2):
            off = f*2048 + rh*1024
            if off % 4096 == 0 and off > 0: a(f's_add_u32 s{sT+2}, s{sT+2}, 4096')
            a(f'buffer_load_dwordx4 {whalf(f, rh)}, v{VL16}, {WS}, s{sT+2} offen offset:{off % 4096}')
            n += 1
            if n % 32 == 0: a('s_waitcnt vmcnt(16)')
    RHO, G, KEY = T0, T0+1, T0+2
    a(f'v_and_b32 v{RHO}, 15, v{VL}')
    a(f'v_lshrrev_b32 v{G}, 4, v{VL}')
    key_of_rho(a, KEY, RHO, T0+3, None)
    a(f's_mul_i32 s{sT+2}, s{sW}, {14*512}')
    a(f'v_lshrrev_b32 v{T0+3}, 1, v{G}')
    a(f'v_lshlrev_b32 v{T0+4}, 9, v{T0+3}')
    a(f'v_lshl_add_u32 v{T0+4}, v{KEY}, 4, v{T0+4}')
    a(f'v_and_b32 v{T0+5}, 1, v{G}')
    a(f'v_lshl_add_u32 v{T0+4}, v{T0+5}, 3, v{T0+4}')
    a(f'v_add_u32 v{VKX}, s{sT+2}, v{T0+4}')
    a(f's_mul_i32 s{sT+2}, s{sW}, {14*128}')
    a(f'v_lshlrev_b32 v{T0+4}, 7, v{T0+3}')
    a(f'v_and_b32 v{T0+6}, 7, v{RHO}')
    a(f'v_lshl_add_u32 v{T0+4}, v{T0+6}, 4, v{T0+4}')
    a(f'v_lshl_add_u32 v{T0+4}, v{T0+5}, 3, v{T0+4}')
    a(f'v_add_u32 v{VKM}, s{sT+2}, v{T0+4}')
    a(f's_mul_i32 s{sT+2}, s{sW}, 6144')
    a(f'v_add_u32 v{VSW}, s{sT+2}, v{VL16}')
    a(f's_and_b32 s{sT+2}, s{sW}, 1')
    a(f's_lshl_b32 s{sT+2}, s{sT+2}, 10')
    a(f'v_add_u32 v{VSR}, s{sT+2}, v{VL16}')
    a(f's_and_b32 s{sT+2}, s{sW}, 1')
    a(f's_lshl_b32 s{sT+2}, s{sT+2}, 1')
    a(f'v_add_u32 v{VQ}, s{sT+2}, v{KEY}')
    a(f'v_lshrrev_b32 v{T0+3}, 1, v{G}')
    a(f'v_lshlrev_b32 v{T0+3}, 4, v{T0+3}')
    a(f'v_and_b32 v{T0+4}, 1, v{G}')
    a(f'v_lshl_add_u32 v{T0+3}, v{T0+4}, 2, v{T0+3}')
    for Tp in range(2):
        for r in range(4):
            k = (r & 1) + 8*(r >> 1) + 2*Tp
            a(f'v_add_u32 v{T0+4}, {k}, v{T0+3}')
            m = sMSK + 2*(Tp*4+r)
            a(f'v_cmp_le_u32 s[{m}:{m+1}], v{T0+4}, v{VQ}')
    a('s_waitcnt vmcnt(0)')
    a(f'{L}_loop:')
    vm = VM(a)
    sXQ, sXP, sMF = sT+2, sT+3, sT+4
    a(f's_mul_i32 s{sXQ}, s{sSEG}, {XNQ_STEP}')
    a(f's_add_u32 s{sXQ}, s{sXQ}, {XNQ_OFF}')
    a(f's_mul_i32 s{sXP}, s{sSEG}, {XNP_STEP}')
    a(f's_add_u32 s{sXP}, s{sXP}, {XNP_OFF}')
    a(f's_mul_i32 s{sMF}, s{sSEG}, {MEMF_STEP}')
    a(f's_add_u32 s{sMF}, s{sMF}, {MEMF_OFF}')
    def tkload(kb):
        b = TK + 8*(kb & 3)
        a(f's_add_u32 s{sT+5}, s{sXQ}, {kb*1024}')
        vm.op(f'buffer_load_dwordx4 v[{b}:{b+3}], v{VL16}, {WS}, s{sT+5} offen', f'k{kb}')
        a(f's_add_u32 s{sT+5}, s{sXQ}, {(14+kb)*1024}')
        vm.op(f'buffer_load_dwordx4 v[{b+4}:{b+7}], v{VL16}, {WS}, s{sT+5} offen', f'k{kb}')
    for kb in range(3): tkload(kb)
    for kb in range(14):
        vm.wait(f'k{kb}')
        b = TK + 8*(kb & 3)
        for i in range(7):
            for XY in range(2):
                d = ACC + (i*2+XY)*4
                c = '0' if kb == 0 else f'v[{d}:{d+3}]'
                a(f'v_mfma_f32_16x16x32_bf16 v[{d}:{d+3}], {whalf(i*7 + kb//2, kb & 1)}, v[{b+4*XY}:{b+4*XY+3}], {c}')
            if i == 2 and kb + 3 < 14: tkload(kb+3)
    a('s_nop 7')
    for XY in range(2):
        for i in range(7):
            s_ = ACC + (i*2+XY)*4
            d = TK + XY*14 + (i//2)*4 + (i & 1)*2
            a(f'v_cvt_pk_bf16_f32 v{d}, v{s_}, v{s_+1}')
            a(f'v_cvt_pk_bf16_f32 v{d+1}, v{s_+2}, v{s_+3}')
    KB, K16, SA = ACC, ACC+24, ACC+32
    def keyload(sg):
        kb_ = KB + 12*(sg & 1) if sg < 3 else K16
        step = 4 if sg < 3 else 2
        a(f's_add_u32 s{sT+5}, s{sXP}, {sg*2048}')
        for Tp in range(2):
            d = kb_ + Tp*step
            vm.op(f'buffer_load_dwordx2 v[{d}:{d+1}], v{VKX}, {WS}, s{sT+5} offen offset:{Tp*32}', f's{sg}')
            if sg < 3: vm.op(f'buffer_load_dwordx2 v[{d+2}:{d+3}], v{VKX}, {WS}, s{sT+5} offen offset:{Tp*32+1024}', f's{sg}')
        d = kb_ + 2*step
        vm.op(f'buffer_load_dwordx2 v[{d}:{d+1}], v{VKM}, {WS}, s{sMF} offen offset:{sg*512} {"sc1" if sc else ""}', f's{sg}')
        if sg < 3: vm.op(f'buffer_load_dwordx2 v[{d+2}:{d+3}], v{VKM}, {WS}, s{sMF} offen offset:{sg*512+256} {"sc1" if sc else ""}', f's{sg}')
    keyload(0); keyload(1); keyload(3)
    for sg in range(4):
        vm.wait(f's{sg}')
        kb_ = KB + 12*(sg & 1) if sg < 3 else K16
        step = 4 if sg < 3 else 2
        for kt in range(3):
            for XY in range(2):
                d = SA + (kt*2+XY)*4
                c = '0' if sg == 0 else f'v[{d}:{d+3}]'
                ka = kb_ + kt*step; tb = TK + XY*14 + sg*4
                if sg < 3: a(f'v_mfma_f32_16x16x32_bf16 v[{d}:{d+3}], v[{ka}:{ka+3}], v[{tb}:{tb+3}], {c}')
                else: a(f'v_mfma_f32_16x16x16_bf16 v[{d}:{d+3}], v[{ka}:{ka+1}], v[{tb}:{tb+1}], {c}')
        if sg == 0: keyload(2)
    a('s_nop 7')
    for t in range(6):
        a(f'ds_write_b128 v{VSW}, v[{SA+4*t}:{SA+4*t+3}] offset:{t*1024}')
    a(f'v_xor_b32 v{VSW}, 0x8000, v{VSW}')
    a('s_waitcnt lgkmcnt(0)')
    a('s_barrier')
    a(f's_cmp_ge_u32 s{sW}, 2')
    a(f's_cbranch_scc1 {L}_next')
    R = ACC
    for w in range(4):
        for kt in range(3):
            b = R + w*12 + kt*4
            a(f'ds_read_b128 v[{b}:{b+3}], v{VSR} offset:{w*6144 + kt*2048}')
    a('s_waitcnt lgkmcnt(0)')
    for r in range(12):
        a(f'v_add_f32 v{R+r}, v{R+r}, v{R+12+r}')
        a(f'v_add_f32 v{R+24+r}, v{R+24+r}, v{R+36+r}')
    for r in range(12): a(f'v_add_f32 v{R+r}, v{R+r}, v{R+24+r}')
    NEG, MX, SM, TP = T0, T0+1, T0+2, T0+3
    a(f'v_mov_b32 v{NEG}, 0xff800000')
    for Tp in range(2):
        for r in range(4):
            m = sMSK + 2*(Tp*4+r)
            a(f'v_cndmask_b32 v{R+Tp*4+r}, v{NEG}, v{R+Tp*4+r}, s[{m}:{m+1}]')
    a(f'v_max3_f32 v{MX}, v{R}, v{R+1}, v{R+2}')
    for r in range(3, 11, 2): a(f'v_max3_f32 v{MX}, v{MX}, v{R+r}, v{R+r+1}')
    a(f'v_max_f32 v{MX}, v{MX}, v{R+11}')
    rowmax4(a, MX, TP)
    for r in range(12): a(f'v_sub_f32 v{R+r}, v{R+r}, v{MX}')
    for r in range(12): a(f'v_exp_f32 v{R+r}, v{R+r}')
    a('s_nop 0')
    a(f'v_add_f32 v{SM}, v{R+8}, v{R+9}')
    a(f'v_add_f32 v{TP}, v{R+10}, v{R+11}')
    a(f'v_add_f32 v{SM}, v{SM}, v{TP}')
    a(f'v_mov_b32 v{TP}, 0')
    a(f'v_cmp_gt_u32 vcc, 32, v{VL}')
    a('s_nop 1')
    a(f'v_cndmask_b32 v{SM}, v{TP}, v{SM}, vcc')
    for r in range(8): a(f'v_add_f32 v{SM}, v{SM}, v{R+r}')
    rowsum4(a, SM, TP)
    a(f'v_rcp_f32 v{SM}, v{SM}')
    a('s_nop 0')
    for r in range(12): a(f'v_mul_f32 v{R+r}, v{R+r}, v{SM}')
    O = R + 12
    for i in range(6): a(f'v_cvt_pk_bf16_f32 v{O+i}, v{R+2*i}, v{R+2*i+1}')
    a(f's_mul_i32 s{sT+5}, s{sSEG}, {PT_STEP}')
    a(f's_add_u32 s{sT+5}, s{sT+5}, {PT_OFF}')
    a(f's_lshl_b32 s{sT+6}, s{sH}, 1')
    a(f's_add_u32 s{sT+6}, s{sT+6}, s{sW}')
    a(f's_lshl_b32 s{sT+6}, s{sT+6}, 10')
    a(f's_add_u32 s{sT+6}, s{sT+6}, s{sT+5}')
    a(f'buffer_store_dwordx4 v[{O}:{O+3}], v{VL16}, {WS}, s{sT+6} offen {sc}')
    a(f's_lshr_b32 s{sT+6}, s{sH}, 1')
    a(f's_lshl_b32 s{sT+6}, s{sT+6}, 1')
    a(f's_add_u32 s{sT+6}, s{sT+6}, s{sW}')
    a(f's_lshl_b32 s{sT+6}, s{sT+6}, 10')
    a(f's_add_u32 s{sT+6}, s{sT+6}, s{sT+5}')
    a(f's_add_u32 s{sT+6}, s{sT+6}, {PTX_STEP}')
    a(f's_and_b32 s{sT+7}, s{sH}, 1')
    a(f's_lshl_b32 s{sT+7}, s{sT+7}, 2')
    a(f's_add_u32 s{sT+6}, s{sT+6}, s{sT+7}')
    a(f'buffer_store_dword v{O+4}, v{VL16}, {WS}, s{sT+6} offen {sc}')
    a(f'buffer_store_dword v{O+5}, v{VL16}, {WS}, s{sT+6} offen offset:8 {sc}')
    a(f'{L}_next:')
    a(f'v_xor_b32 v{VSR}, 0x8000, v{VSR}')
    a(f's_add_u32 s{sSEG}, s{sSEG}, {nrep}')
    a(f's_cmp_lt_u32 s{sSEG}, 64')
    a(f's_cbranch_scc1 {L}_loop')
    a('s_waitcnt vmcnt(0)')
    a(f'{L}_exit:')
    a('s_endpgm')

def emit_V(a, L='RV', sc=''):
    role_prologue(a, L, 64*14)
    XS_ = 8
    a(f's_load_dwordx2 s[{XS_}:{XS_+1}], s[0:1], {KA_X}')
    sJ = sT
    divmod_small(a, sSEG, sJ, 2, 14)
    a('s_waitcnt lgkmcnt(0)')
    srd_fin(a, XS_, 1835008)
    VL, VL16 = 1, 2
    UB, WB, PXB, PMB, ACC = 4, 36, 52, 84, 100
    T0 = 116
    vm = VM(a)
    ld = 'sc1' if sc else ''
    a(f's_mul_i32 s{sT+1}, s{sSEG}, {UF_STEP}')
    a(f's_lshl_b32 s{sT+2}, s{sW}, 2')
    a(f's_mul_i32 s{sT+2}, s{sT+2}, 28')
    a(f's_lshl_b32 s{sT+3}, s{sJ}, 1')
    a(f's_add_u32 s{sT+2}, s{sT+2}, s{sT+3}')
    a(f's_lshl_b32 s{sT+2}, s{sT+2}, 10')
    a(f's_add_u32 s{sT+1}, s{sT+1}, s{sT+2}')
    a(f's_add_u32 s{sT+1}, s{sT+1}, {UF_OFF}')
    for hh in range(4):
        a(f's_add_u32 s{sT+2}, s{sT+1}, {hh*28*1024}')
        for T in range(2):
            b = UB + (hh*2+T)*4
            vm.op(f'buffer_load_dwordx4 v[{b}:{b+3}], v{VL16}, {WS}, s{sT+2} offen offset:{T*1024} {ld}', 'u')
    a(f's_mul_i32 s{sT+1}, s{sSEG}, {W_STEP}')
    a(f's_lshl_b32 s{sT+2}, s{sJ}, 14')
    a(f's_add_u32 s{sT+1}, s{sT+1}, s{sT+2}')
    a(f's_lshl_b32 s{sT+2}, s{sW}, 12')
    a(f's_add_u32 s{sT+1}, s{sT+1}, s{sT+2}')
    a(f's_add_u32 s{sT+1}, s{sT+1}, {W_OFF}')
    for T in range(2):
        for pair in range(2):
            b = WB + (T*2+pair)*4
            vm.op(f'buffer_load_dwordx4 v[{b}:{b+3}], v{VL16}, {WS}, s{sT+1} offen offset:{(T*2+pair)*1024} {ld}', 'u')
    a(f's_mul_i32 s{sT+1}, s{sSEG}, {PT_STEP}')
    a(f's_add_u32 s{sT+1}, s{sT+1}, {PT_OFF}')
    a(f's_lshl_b32 s{sT+2}, s{sW}, 13')
    a(f's_add_u32 s{sT+2}, s{sT+2}, s{sT+1}')
    a(f's_add_u32 s{sT+3}, s{sT+2}, 4096')
    for hh in range(4):
        for XY in range(2):
            b = PXB + (hh*2+XY)*4; off = (hh*2+XY)*1024
            vm.op(f'buffer_load_dwordx4 v[{b}:{b+3}], v{VL16}, {WS}, s{sT+2 if off < 4096 else sT+3} offen offset:{off % 4096} {ld}', 'u')
    a(f's_lshl_b32 s{sT+2}, s{sW}, 12')
    a(f's_add_u32 s{sT+2}, s{sT+2}, s{sT+1}')
    a(f's_add_u32 s{sT+2}, s{sT+2}, {PTX_STEP}')
    for pair in range(2):
        for XY in range(2):
            b = PMB + (pair*2+XY)*4
            vm.op(f'buffer_load_dwordx4 v[{b}:{b+3}], v{VL16}, {WS}, s{sT+2} offen offset:{(pair*2+XY)*1024} {ld}', 'u')
    VROW, VX, VH, VST = T0, T0+1, T0+2, T0+3
    a(f'v_and_b32 v{T0+4}, 15, v{VL}')
    key_of_rho(a, VROW, T0+4, T0+5, None)
    a(f's_and_b32 s{sT+4}, s{sW}, 1')
    a(f's_lshl_b32 s{sT+4}, s{sT+4}, 1')
    a(f'v_add_u32 v{VROW}, s{sT+4}, v{VROW}')
    a(f's_lshr_b32 s{sT+5}, s{sW}, 1')
    a(f's_lshl_b32 s{sT+6}, s{sJ}, 1')
    a(f's_add_u32 s{sT+6}, s{sT+6}, s{sT+5}')
    a(f'v_lshrrev_b32 v{T0+4}, 4, v{VL}')
    a(f'v_mul_u32_u24 v{VX}, 896, v{VROW}')
    a(f'v_lshl_add_u32 v{VX}, v{T0+4}, 3, v{VX}')
    a(f's_lshl_b32 s{sT+7}, s{sT+6}, 5')
    a(f's_mul_i32 s{sT+8}, s{sSEG}, {32*896}')
    a(f's_add_u32 s{sT+7}, s{sT+7}, s{sT+8}')
    XV = T0+6
    vm.op(f'buffer_load_dwordx2 v[{XV}:{XV+1}], v{VX}, s[{XS_}:{XS_+3}], s{sT+7} offen', 'x')
    a(f'v_lshrrev_b32 v{T0+5}, 1, v{T0+4}')
    a(f'v_lshlrev_b32 v{VH}, 9, v{T0+5}')
    a(f'v_lshl_add_u32 v{VH}, v{VROW}, 4, v{VH}')
    a(f'v_and_b32 v{T0+5}, 1, v{T0+4}')
    a(f'v_lshl_add_u32 v{VH}, v{T0+5}, 3, v{VH}')
    vm.wait('u')
    for T in range(2):
        for XY in range(2):
            d = ACC + (T*2+XY)*4
            first = True
            for hh in range(4):
                ua = UB + (hh*2+T)*4; pb = PXB + (hh*2+XY)*4
                a(f'v_mfma_f32_16x16x32_bf16 v[{d}:{d+3}], v[{ua}:{ua+3}], v[{pb}:{pb+3}], {"0" if first else f"v[{d}:{d+3}]"}')
                first = False
            for pair in range(2):
                wa = WB + (T*2+pair)*4; pb = PMB + (pair*2+XY)*4
                a(f'v_mfma_f32_16x16x32_bf16 v[{d}:{d+3}], v[{wa}:{wa+3}], v[{pb}:{pb+3}], v[{d}:{d+3}]')
    a('s_nop 7')
    a(f's_lshl_b32 s{sT+9}, s{sW}, 12')
    a(f'v_add_u32 v4, s{sT+9}, v{VL16}')
    for t in range(4):
        a(f'ds_write_b128 v4, v[{ACC+4*t}:{ACC+4*t+3}] offset:{t*1024}')
    a('s_waitcnt lgkmcnt(0)')
    a('s_barrier')
    a(f's_lshl_b32 s{sT+9}, s{sW}, 10')
    a(f'v_add_u32 v4, s{sT+9}, v{VL16}')
    for w in range(4):
        a(f'ds_read_b128 v[{8+4*w}:{8+4*w+3}], v4 offset:{w*4096}')
    a('s_waitcnt lgkmcnt(0)')
    for r in range(4):
        a(f'v_add_f32 v{8+r}, v{8+r}, v{12+r}')
        a(f'v_add_f32 v{16+r}, v{16+r}, v{20+r}')
    for r in range(4): a(f'v_add_f32 v{8+r}, v{8+r}, v{16+r}')
    vm.wait('x')
    a(f'v_lshlrev_b32 v24, 16, v{XV}')
    a(f'v_and_b32 v25, 0xffff0000, v{XV}')
    a(f'v_lshlrev_b32 v26, 16, v{XV+1}')
    a(f'v_and_b32 v27, 0xffff0000, v{XV+1}')
    for r in range(4): a(f'v_add_f32 v{8+r}, v{8+r}, v{24+r}')
    a('v_cvt_pk_bf16_f32 v28, v8, v9')
    a('v_cvt_pk_bf16_f32 v29, v10, v11')
    a(f's_mul_i32 s{sT+9}, s{sSEG}, {HF_STEP}')
    a(f's_lshl_b32 s{sT+10}, s{sT+6}, 10')
    a(f's_add_u32 s{sT+9}, s{sT+9}, s{sT+10}')
    a(f's_add_u32 s{sT+9}, s{sT+9}, {HF_OFF}')
    a(f'buffer_store_dwordx2 v[28:29], v{VH}, {WS}, s{sT+9} offen {sc}')
    a('v_lshlrev_b32 v24, 16, v28')
    a('v_and_b32 v25, 0xffff0000, v28')
    a('v_lshlrev_b32 v26, 16, v29')
    a('v_and_b32 v27, 0xffff0000, v29')
    a('v_add_f32 v30, v24, v25')
    a('v_add_f32 v31, v26, v27')
    a('v_add_f32 v30, v30, v31')
    a('v_mul_f32 v31, v24, v24')
    for r in range(1, 4): a(f'v_fmac_f32 v31, v{24+r}, v{24+r}')
    rowsum4(a, 30, 32); rowsum4(a, 31, 32)
    a(f'v_lshlrev_b32 v32, 8, v{VROW}')
    a(f's_mul_i32 s{sT+9}, s{sSEG}, {ST_STEP}')
    a(f's_lshl_b32 s{sT+10}, s{sT+6}, 3')
    a(f's_add_u32 s{sT+9}, s{sT+9}, s{sT+10}')
    a(f's_add_u32 s{sT+9}, s{sT+9}, {ST_OFF}')
    a('v_cmp_gt_u32 vcc, 16, v1')
    a(f's_and_saveexec_b64 s[{sT+12}:{sT+13}], vcc')
    a(f'buffer_store_dwordx2 v[30:31], v32, {WS}, s{sT+9} offen {sc}')
    a(f's_mov_b64 exec, s[{sT+12}:{sT+13}]')
    a('s_waitcnt vmcnt(0)')
    a(f'{L}_exit:')
    a('s_endpgm')


def emit_F1(a, nrep, L='RF', sc=''):
    role_prologue(a, L, 14*nrep)
    WG_, WU_ = 8, 12
    a(f's_load_dwordx2 s[{WG_}:{WG_+1}], s[0:1], {KA_WG}')
    a(f's_load_dwordx2 s[{WU_}:{WU_+1}], s[0:1], {KA_WU}')
    sFG = sT
    divmod_small(a, sSEG, sFG, 2, 14)
    a('s_waitcnt lgkmcnt(0)')
    srd_fin(a, WG_, 1605632); srd_fin(a, WU_, 1605632)
    VL, VL16 = 1, 2
    ld = 'sc1' if sc else ''
    RAW = 8
    VG, VW, VR = 3, 4, 5
    a(f'v_lshrrev_b32 v{VG}, 2, v{VL}')
    a(f'v_mul_u32_u24 v{VG}, 3584, v{VG}')
    a(f'v_and_b32 v6, 3, v{VL}')
    a(f'v_lshl_add_u32 v{VG}, v6, 4, v{VG}')
    a(f's_mul_i32 s{sT+1}, s{sW}, 28672')
    a(f'v_add_u32 v{VW}, s{sT+1}, v{VL16}')
    a(f'v_lshrrev_b32 v6, 4, v{VL}')
    a(f'v_lshlrev_b32 v6, 3, v6')
    a(f'v_bfe_u32 v7, v{VL}, 2, 2')
    a(f'v_add_u32 v6, v6, v7')
    a(f'v_lshlrev_b32 v6, 6, v6')
    a(f'v_and_b32 v7, 3, v{VL}')
    a(f'v_lshl_add_u32 v6, v7, 3, v6')
    a(f'v_add_u32 v{VR}, s{sT+1}, v6')
    a(f's_lshl_b32 s{sT+2}, s{sFG}, 8')
    a(f's_lshl_b32 s{sT+3}, s{sW}, 6')
    a(f's_add_u32 s{sT+2}, s{sT+2}, s{sT+3}')
    for m, srdm in enumerate((WG_, WU_)):
        for kb in range(14):
            for half in range(2):
                a(f's_add_u32 s{sT+3}, s{sT+2}, {(32*kb + 16*half)*3584}')
                b = RAW + (kb*2+half)*4
                a(f'buffer_load_dwordx4 v[{b}:{b+3}], v{VG}, s[{srdm}:{srdm+3}], s{sT+3} offen')
        a('s_waitcnt vmcnt(0)')
        for kb in range(14):
            for half in range(2):
                b = RAW + (kb*2+half)*4
                a(f'ds_write_b128 v{VW}, v[{b}:{b+3}] offset:{kb*2048 + half*1024}')
        a('s_waitcnt lgkmcnt(0)')
        for tt in range(2):
            for kb in range(14):
                d = ((m*2+tt)*14+kb)*4
                a(f'ds_read_b64_tr_b16 a[{d}:{d+1}], v{VR} offset:{kb*2048 + tt*32}')
                a(f'ds_read_b64_tr_b16 a[{d+2}:{d+3}], v{VR} offset:{kb*2048 + tt*32 + 256}')
            a('s_waitcnt lgkmcnt(0)')
    TK, STG, ACC, CS, STAT, OUT = 4, 36, 64, 96, 112, 116
    ONE = 8
    for r in range(4): a(f'v_mov_b32 v{ONE+r}, 0x3f803f80')
    a('s_nop 1')
    for t in range(4):
        for kb in range(14):
            d = CS + 4*t; wb = (t*14+kb)*4
            a(f'v_mfma_f32_16x16x32_bf16 v[{d}:{d+3}], a[{wb}:{wb+3}], v[{ONE}:{ONE+3}], {"0" if kb == 0 else f"v[{d}:{d+3}]"}')
    a('s_barrier')
    VLW, VLR, VHB, VST = 124, 125, 126, 127
    SR = 128
    T0 = 160
    a(f's_mul_i32 s{sT+1}, s{sW}, 7168')
    a(f'v_add_u32 v{VLW}, s{sT+1}, v{VL16}')
    a(f'v_mov_b32 v{VLR}, v{VL16}')
    a(f'v_lshrrev_b32 v{T0}, 4, v{VL}')
    a(f'v_and_b32 v{T0+1}, 15, v{VL}')
    a(f'v_lshlrev_b32 v{VHB}, 9, v{T0}')
    a(f'v_lshl_add_u32 v{VHB}, v{T0+1}, 4, v{VHB}')
    a(f'v_lshlrev_b32 v{VST}, 8, v{T0+1}')
    a(f'v_lshl_add_u32 v{VST}, v{T0}, 3, v{VST}')
    sFD = 64
    for i in range(7):
        a(f's_mul_i32 s{sT+1}, s{sW}, 7')
        a(f's_add_u32 s{sT+1}, s{sT+1}, {i}')
        a(f's_cmp_ge_u32 s{sT+1}, 14')
        a(f's_cselect_b32 s{sT+2}, 1, 0')
        a(f's_mul_i32 s{sT+3}, s{sT+2}, 14')
        a(f's_sub_u32 s{sT+1}, s{sT+1}, s{sT+3}')
        a(f's_lshl_b32 s{sT+1}, s{sT+1}, 11')
        a(f's_lshl_b32 s{sT+2}, s{sT+2}, 8')
        a(f's_add_u32 s{sFD+i}, s{sT+1}, s{sT+2}')
    def stage_loads():
        a(f's_mul_i32 s{sT+4}, s{sSEG}, {HF_STEP}')
        a(f's_add_u32 s{sT+4}, s{sT+4}, {HF_OFF}')
        for i in range(7):
            a(f's_add_u32 s{sT+5}, s{sT+4}, s{sFD+i}')
            a(f'buffer_load_dwordx4 v[{STG+4*i}:{STG+4*i+3}], v{VHB}, {WS}, s{sT+5} offen {ld}')
    def stat_loads():
        a(f's_mul_i32 s{sT+4}, s{sSEG}, {ST_STEP}')
        a(f's_add_u32 s{sT+4}, s{sT+4}, {ST_OFF}')
        a(f's_add_u32 s{sT+5}, s{sT+4}, 4096')
        for T in range(2):
            for i in range(7):
                b = SR + (T*7+i)*2
                a(f'buffer_load_dwordx2 v[{b}:{b+1}], v{VST}, {WS}, s{sT+4 if T == 0 else sT+5} offen offset:{i*32} {ld}')
    def stage_write():
        for i in range(7):
            a(f'ds_write_b128 v{VLW}, v[{STG+4*i}:{STG+4*i+3}] offset:{i*1024}')
        a(f'v_xor_b32 v{VLW}, 0x8000, v{VLW}')
    stage_loads()
    a('s_waitcnt vmcnt(0)')
    stage_write()
    a('s_waitcnt lgkmcnt(0)')
    a('s_barrier')
    a(f'{L}_loop:')
    sCUR = sT+6
    stat_loads()
    a(f's_mov_b32 s{sCUR}, s{sSEG}')
    a(f's_add_u32 s{sSEG}, s{sSEG}, {nrep}')
    a(f's_cmp_ge_u32 s{sSEG}, 64')
    a(f's_cbranch_scc1 {L}_nopf')
    stage_loads()
    a(f'{L}_nopf:')
    lg = LG(a)
    def tkread(kb):
        b = TK + 8*(kb & 3)
        lg.op(f'ds_read_b128 v[{b}:{b+3}], v{VLR} offset:{kb*1024}', f'k{kb}')
        lg.op(f'ds_read_b128 v[{b+4}:{b+7}], v{VLR} offset:{(14+kb)*1024}', f'k{kb}')
    for kb in range(3): tkread(kb)
    for kb in range(14):
        lg.wait(f'k{kb}')
        b = TK + 8*(kb & 3)
        for t in range(4):
            for T in range(2):
                d = ACC + (t*2+T)*4
                c = '0' if kb == 0 else f'v[{d}:{d+3}]'
                wb = (t*14+kb)*4
                a(f'v_mfma_f32_16x16x32_bf16 v[{d}:{d+3}], a[{wb}:{wb+3}], v[{b+4*T}:{b+4*T+3}], {c}')
            if t == 1 and kb + 3 < 14: tkread(kb+3)
    a(f'v_xor_b32 v{VLR}, 0x8000, v{VLR}')
    a('s_waitcnt vmcnt(7)')
    a(f's_cmp_lt_u32 s{sSEG}, 64')
    a(f's_cbranch_scc1 {L}_st')
    a('s_waitcnt vmcnt(0)')
    a(f'{L}_st:')
    for T in range(2):
        b = SR + T*14
        for i in range(1, 7):
            a(f'v_add_f32 v{b}, v{b}, v{b+2*i}')
            a(f'v_add_f32 v{b+1}, v{b+1}, v{b+2*i+1}')
        rowsum4(a, b, T0); rowsum4(a, b+1, T0)
        a(f'v_mul_f32 v{b}, {hex(f32(1/448))}, v{b}')
        a(f'v_mul_f32 v{b+1}, {hex(f32(1/448))}, v{b+1}')
        a(f'v_fma_f32 v{b+1}, -v{b}, v{b}, v{b+1}')
        a(f'v_max_f32 v{b+1}, 0, v{b+1}')
        a(f'v_add_f32 v{b+1}, {hex(f32(1e-5))}, v{b+1}')
        a(f'v_rsq_f32 v{STAT+2*T}, v{b+1}')
        a('s_nop 0')
        a(f'v_mul_f32 v{STAT+2*T+1}, v{STAT+2*T}, v{b}')
    a(f's_mul_i32 s{sT+7}, s{sCUR}, {ACT_STEP}')
    a(f's_lshl_b32 s{sT+8}, s{sFG}, 2')
    a(f's_add_u32 s{sT+8}, s{sT+8}, s{sW}')
    a(f's_lshl_b32 s{sT+8}, s{sT+8}, 10')
    a(f's_add_u32 s{sT+7}, s{sT+7}, s{sT+8}')
    a(f's_add_u32 s{sT+7}, s{sT+7}, {ACT_OFF}')
    E = T0+2
    for T in range(2):
        R_, RM = STAT+2*T, STAT+2*T+1
        for tt in range(2):
            g = ACC + (tt*2+T)*4; u = ACC + ((2+tt)*2+T)*4
            for r in range(4):
                a(f'v_mul_f32 v{E+r}, v{RM}, v{CS+4*tt+r}')
                a(f'v_fma_f32 v{g+r}, v{R_}, v{g+r}, -v{E+r}')
                a(f'v_mul_f32 v{E+r}, v{RM}, v{CS+4*(2+tt)+r}')
                a(f'v_fma_f32 v{u+r}, v{R_}, v{u+r}, -v{E+r}')
            for r in range(4): a(f'v_mul_f32 v{E+r}, {hex(f32(-LOG2E))}, v{g+r}')
            for r in range(4): a(f'v_exp_f32 v{E+r}, v{E+r}')
            a('s_nop 0')
            for r in range(4): a(f'v_add_f32 v{E+r}, 1.0, v{E+r}')
            for r in range(4): a(f'v_rcp_f32 v{E+r}, v{E+r}')
            for r in range(4): a(f'v_mul_f32 v{g+r}, v{g+r}, v{u+r}')
            for r in range(4): a(f'v_mul_f32 v{g+r}, v{g+r}, v{E+r}')
            o = T0 + 8 + 4*T + 2*tt
            a(f'v_cvt_pk_bf16_f32 v{o}, v{g}, v{g+1}')
            a(f'v_cvt_pk_bf16_f32 v{o+1}, v{g+2}, v{g+3}')
        o = T0 + 8 + 4*T
        if T == 1: a(f's_add_u32 s{sT+7}, s{sT+7}, {56*1024}')
        a(f'buffer_store_dwordx4 v[{o}:{o+3}], v{VL16}, {WS}, s{sT+7} offen {sc}')
    a(f's_cmp_ge_u32 s{sSEG}, 64')
    a(f's_cbranch_scc1 {L}_done')
    a('s_waitcnt vmcnt(2)')
    stage_write()
    a('s_waitcnt lgkmcnt(0)')
    a('s_barrier')
    a(f's_branch {L}_loop')
    a(f'{L}_done:')
    a('s_waitcnt vmcnt(0)')
    a(f'{L}_exit:')
    a('s_endpgm')

def emit_F2(a, nrep, L='RG', sc=''):
    role_prologue(a, L, 7*nrep)
    WD_, OUT_ = 8, 12
    a(f's_load_dwordx2 s[{WD_}:{WD_+1}], s[0:1], {KA_WD}')
    a(f's_load_dwordx2 s[{OUT_}:{OUT_+1}], s[0:1], {KA_OUT}')
    sCG = sT
    divmod_small(a, sSEG, sCG, 2, 7)
    a('s_waitcnt lgkmcnt(0)')
    srd_fin(a, WD_, 1605632); srd_fin(a, OUT_, 1835008)
    VL, VL16 = 1, 2
    ld = 'sc1' if sc else ''
    RAW = 8
    VG, VW, VR = 3, 4, 5
    a(f'v_lshrrev_b32 v{VG}, 3, v{VL}')
    a(f'v_mul_u32_u24 v{VG}, 896, v{VG}')
    a(f'v_and_b32 v6, 7, v{VL}')
    a(f'v_lshl_add_u32 v{VG}, v6, 4, v{VG}')
    a(f's_mul_i32 s{sT+1}, s{sW}, 28672')
    a(f'v_add_u32 v{VW}, s{sT+1}, v{VL16}')
    a(f'v_lshrrev_b32 v6, 4, v{VL}')
    a(f'v_lshlrev_b32 v6, 2, v6')
    a(f'v_bfe_u32 v7, v{VL}, 2, 2')
    a(f'v_add_u32 v6, v6, v7')
    a(f'v_lshlrev_b32 v6, 7, v6')
    a(f'v_and_b32 v7, 3, v{VL}')
    a(f'v_lshl_add_u32 v6, v7, 3, v6')
    a(f'v_add_u32 v{VR}, s{sT+1}, v6')
    a(f's_mul_i32 s{sT+2}, s{sW}, {14*32*896}')
    a(f's_lshl_b32 s{sT+3}, s{sCG}, 7')
    a(f's_add_u32 s{sT+2}, s{sT+2}, s{sT+3}')
    for bt in range(2):
        for k7 in range(7):
            kf = bt*7 + k7
            for q4 in range(4):
                a(f's_add_u32 s{sT+3}, s{sT+2}, {(32*kf + 8*q4)*896}')
                b = RAW + (k7*4+q4)*4
                a(f'buffer_load_dwordx4 v[{b}:{b+3}], v{VG}, s[{WD_}:{WD_+3}], s{sT+3} offen')
        a('s_waitcnt vmcnt(0)')
        for k7 in range(7):
            for q4 in range(4):
                b = RAW + (k7*4+q4)*4
                a(f'ds_write_b128 v{VW}, v[{b}:{b+3}] offset:{k7*4096 + q4*1024}')
        a('s_waitcnt lgkmcnt(0)')
        for i in range(4):
            for k7 in range(7):
                d = (i*14 + bt*7 + k7)*4
                a(f'ds_read_b64_tr_b16 a[{d}:{d+1}], v{VR} offset:{k7*4096 + i*32}')
                a(f'ds_read_b64_tr_b16 a[{d+2}:{d+3}], v{VR} offset:{k7*4096 + i*32 + 2048}')
            a('s_waitcnt lgkmcnt(0)')
    a('s_barrier')
    TK, ACC, T0 = 4, 36, 72
    VRW, VRR, VHO, VOO = 68, 69, 70, 71
    a(f's_lshl_b32 s{sT+1}, s{sW}, 13')
    a(f'v_add_u32 v{VRW}, s{sT+1}, v{VL16}')
    a(f's_lshl_b32 s{sT+1}, s{sW}, 11')
    a(f'v_add_u32 v{VRR}, s{sT+1}, v{VL16}')
    a(f'v_and_b32 v{T0}, 15, v{VL}')
    a(f'v_lshrrev_b32 v{T0+1}, 4, v{VL}')
    a(f'v_lshrrev_b32 v{T0+2}, 1, v{T0+1}')
    a(f'v_lshlrev_b32 v{VHO}, 9, v{T0+2}')
    a(f'v_lshl_add_u32 v{VHO}, v{T0}, 4, v{VHO}')
    a(f'v_and_b32 v{T0+2}, 1, v{T0+1}')
    a(f'v_lshl_add_u32 v{VHO}, v{T0+2}, 3, v{VHO}')
    a(f'v_mul_u32_u24 v{VOO}, 896, v{T0}')
    a(f'v_lshl_add_u32 v{VOO}, v{T0+1}, 3, v{VOO}')
    sCT = sT+1
    a(f's_lshl_b32 s{sCT}, s{sCG}, 2')
    a(f's_add_u32 s{sCT}, s{sCT}, s{sW}')
    a(f'{L}_loop:')
    vm = VM(a)
    sAC = sT+2
    a(f's_mul_i32 s{sAC}, s{sSEG}, {ACT_STEP}')
    a(f's_mul_i32 s{sT+3}, s{sW}, {14*1024}')
    a(f's_add_u32 s{sAC}, s{sAC}, s{sT+3}')
    a(f's_add_u32 s{sAC}, s{sAC}, {ACT_OFF}')
    def tkload(kf):
        b = TK + 8*(kf & 3)
        a(f's_add_u32 s{sT+3}, s{sAC}, {kf*1024}')
        vm.op(f'buffer_load_dwordx4 v[{b}:{b+3}], v{VL16}, {WS}, s{sT+3} offen {ld}', f'k{kf}')
        a(f's_add_u32 s{sT+3}, s{sAC}, {(56+kf)*1024}')
        vm.op(f'buffer_load_dwordx4 v[{b+4}:{b+7}], v{VL16}, {WS}, s{sT+3} offen {ld}', f'k{kf}')
    for kf in range(3): tkload(kf)
    HV = T0 + 4
    a(f's_mul_i32 s{sT+4}, s{sSEG}, {HF_STEP}')
    a(f's_lshl_b32 s{sT+5}, s{sCT}, 10')
    a(f's_add_u32 s{sT+4}, s{sT+4}, s{sT+5}')
    a(f's_add_u32 s{sT+4}, s{sT+4}, {HF_OFF}')
    for T in range(2):
        vm.op(f'buffer_load_dwordx2 v[{HV+2*T}:{HV+2*T+1}], v{VHO}, {WS}, s{sT+4} offen offset:{T*256} {ld}', 'h')
    for kf in range(14):
        vm.wait(f'k{kf}')
        b = TK + 8*(kf & 3)
        for i in range(4):
            for T in range(2):
                d = ACC + (i*2+T)*4
                c = '0' if kf == 0 else f'v[{d}:{d+3}]'
                wb = (i*14+kf)*4
                a(f'v_mfma_f32_16x16x32_bf16 v[{d}:{d+3}], a[{wb}:{wb+3}], v[{b+4*T}:{b+4*T+3}], {c}')
            if i == 1 and kf + 3 < 14: tkload(kf+3)
    a('s_nop 7')
    for t in range(8):
        a(f'ds_write_b128 v{VRW}, v[{ACC+4*t}:{ACC+4*t+3}] offset:{t*1024}')
    a(f'v_xor_b32 v{VRW}, 0x8000, v{VRW}')
    a('s_waitcnt lgkmcnt(0)')
    a('s_barrier')
    for T in range(2):
        for w in range(4):
            b = ACC + (T*4+w)*4
            a(f'ds_read_b128 v[{b}:{b+3}], v{VRR} offset:{w*8192 + T*1024}')
    a(f'v_xor_b32 v{VRR}, 0x8000, v{VRR}')
    a('s_waitcnt lgkmcnt(0)')
    vm.waitall()
    a(f's_mul_i32 s{sT+4}, s{sSEG}, {32*896}')
    a(f's_lshl_b32 s{sT+5}, s{sCT}, 5')
    a(f's_add_u32 s{sT+4}, s{sT+4}, s{sT+5}')
    X = T0 + 8
    for T in range(2):
        b = ACC + T*16
        for r in range(4):
            a(f'v_add_f32 v{b+r}, v{b+r}, v{b+4+r}')
            a(f'v_add_f32 v{b+8+r}, v{b+8+r}, v{b+12+r}')
        for r in range(4): a(f'v_add_f32 v{b+r}, v{b+r}, v{b+8+r}')
        a(f'v_lshlrev_b32 v{X}, 16, v{HV+2*T}')
        a(f'v_and_b32 v{X+1}, 0xffff0000, v{HV+2*T}')
        a(f'v_lshlrev_b32 v{X+2}, 16, v{HV+2*T+1}')
        a(f'v_and_b32 v{X+3}, 0xffff0000, v{HV+2*T+1}')
        for r in range(4): a(f'v_add_f32 v{b+r}, v{b+r}, v{X+r}')
        a(f'v_cvt_pk_bf16_f32 v{X+4+2*T}, v{b}, v{b+1}')
        a(f'v_cvt_pk_bf16_f32 v{X+5+2*T}, v{b+2}, v{b+3}')
        if T == 1: a(f's_add_u32 s{sT+4}, s{sT+4}, {16*896}')
        a(f'buffer_store_dwordx2 v[{X+4+2*T}:{X+5+2*T}], v{VOO}, s[{OUT_}:{OUT_+3}], s{sT+4} offen')
    a(f's_add_u32 s{sSEG}, s{sSEG}, {nrep}')
    a(f's_cmp_lt_u32 s{sSEG}, 64')
    a(f's_cbranch_scc1 {L}_loop')
    a('s_waitcnt vmcnt(0)')
    a(f'{L}_exit:')
    a('s_endpgm')

if __name__ == '__main__':
    import subprocess
    for name, fn in [('u_kernel', lambda a: emit_U(a, 9))]:
        a = Asm(); fn(a)
        txt = assemble_file([(name, 252, 256, 65536)], [(name, a.text(), 512, 256)])
        open('r.s', 'w').write(txt)
        r = subprocess.run(['clang', '-x', 'assembler', '-target', 'amdgcn-amd-amdhsa', '-mcpu=gfx950', '-c', 'r.s', '-o', 'r.o'], capture_output=True, text=True)
        print(name, r.returncode, r.stderr[:3000], len(txt.splitlines()))
```

```python
from common import *
import prep, roles, froles, chain
from chain import S_WS, S_DBG, S_ROLE, S_WAVE, S_T0, S_SPIN, S_EXEC, NCHAIN, NA, SPIN_MAX
KN = 'sequential_preLN__memory_aug_recurrent_mem_tr__swiglu_ffn__prompt'
NX, NV, NF1, NF2 = 6, 3, 3, 6
def fused_prologue(a):
    T = S_T0
    a(f'''
s_cmp_ge_u32 s2, 256
s_cbranch_scc1 L_exit
s_load_dwordx2 s[{S_DBG}:{S_DBG+1}], s[0:1], {KA_DBG}
s_load_dwordx2 s[{S_WS}:{S_WS+1}], s[0:1], {KA_WS}
s_getreg_b32 s{T}, hwreg(HW_REG_XCC_ID)
s_and_b32 s{T}, s{T}, 15
v_lshrrev_b32 v1, 6, v0
s_nop 0
v_readfirstlane_b32 s{S_WAVE}, v1
s_waitcnt lgkmcnt(0)
s_and_b32 s{S_WS+1}, s{S_WS+1}, 0xffff
s_mov_b32 s{S_WS+2}, {WS_BYTES}
s_mov_b32 s{S_WS+3}, 0x20000
s_and_b32 s{S_DBG+1}, s{S_DBG+1}, 0xffff
s_mov_b32 s{S_DBG+2}, 256
s_mov_b32 s{S_DBG+3}, 0x20000
s_cmp_lg_u32 s{S_WAVE}, 0
s_cbranch_scc1 Lel_wait
s_lshl_b32 s{T+1}, s{T}, 2
v_mov_b32 v2, s{T+1}
v_mov_b32 v3, 1
s_mov_b64 s[{S_EXEC}:{S_EXEC+1}], exec
s_mov_b64 exec, 1
buffer_atomic_add v3, v2, s[{S_DBG}:{S_DBG+3}], 0 offen sc0
s_waitcnt vmcnt(0)
v_readfirstlane_b32 s{T+2}, v3
s_nop 3
s_cmp_lg_u32 s{T+2}, {NCHAIN-1}
s_cbranch_scc1 Lel_poll
s_add_u32 s{T+3}, s{T}, 1
v_mov_b32 v4, s{T+3}
v_mov_b32 v5, 0
v_mov_b32 v2, 32
buffer_atomic_cmpswap v[4:5], v2, s[{S_DBG}:{S_DBG+3}], 0 offen sc0
s_waitcnt vmcnt(0)
Lel_poll:
s_mov_b32 s{S_SPIN}, 0
v_mov_b32 v2, 32
Lel_spin:
buffer_load_dword v3, v2, s[{S_DBG}:{S_DBG+3}], 0 offen sc1
s_waitcnt vmcnt(0)
v_readfirstlane_b32 s{T+3}, v3
s_add_u32 s{S_SPIN}, s{S_SPIN}, 1
s_cmp_gt_u32 s{S_SPIN}, {SPIN_MAX}
s_cbranch_scc1 Lel_none
s_cmp_eq_u32 s{T+3}, 0
s_cbranch_scc1 Lel_spin
s_add_u32 s{T+1}, s{T}, 1
s_cmp_eq_u32 s{T+3}, s{T+1}
s_cbranch_scc0 Lel_worker
s_cmp_lt_u32 s{T+2}, {NCHAIN}
s_cbranch_scc1 Lel_pub
s_branch Lel_none
Lel_worker:
v_mov_b32 v2, 36
v_mov_b32 v3, 1
buffer_atomic_add v3, v2, s[{S_DBG}:{S_DBG+3}], 0 offen sc0
s_waitcnt vmcnt(0)
v_readfirstlane_b32 s{T+2}, v3
s_nop 3
s_cmp_ge_u32 s{T+2}, 224
s_cbranch_scc1 Lel_none
s_add_u32 s{T+2}, s{T+2}, 64
s_branch Lel_pub
Lel_none:
s_mov_b32 s{T+2}, 1000
Lel_pub:
v_mov_b32 v3, s{T+2}
v_mov_b32 v2, 0
ds_write_b32 v2, v3
s_waitcnt lgkmcnt(0)
s_mov_b64 exec, s[{S_EXEC}:{S_EXEC+1}]
Lel_wait:
s_barrier
v_mov_b32 v2, 0
ds_read_b32 v3, v2
s_waitcnt lgkmcnt(0)
v_readfirstlane_b32 s{S_ROLE}, v3
s_nop 3
s_barrier
s_cmp_ge_u32 s{S_ROLE}, 1000
s_cbranch_scc1 L_exit
''')

def build_main(cfg):
    a = Asm()
    fused_prologue(a)
    a(f's_cmp_ge_u32 s{S_ROLE}, 64')
    a('s_cbranch_scc1 L_worker')
    a(f's_cmp_ge_u32 s{S_ROLE}, {NA}')
    a('s_cbranch_scc1 LB_entry')
    chain.emit_A(a, cfg, 'L_exit')
    a('LB_entry:')
    chain.emit_B(a, cfg, 'L_exit')
    a('L_worker:')
    a(f's_sub_u32 s{roles.sIDX}, s{S_ROLE}, 64')
    a(f's_mov_b32 s{roles.sW}, s{S_WAVE}')
    a('v_and_b32 v1, 63, v0')
    a('v_lshlrev_b32 v2, 4, v1')
    roles.emit_U(a, 8, 'RU', 'sc1', fz=True)
    a('s_barrier')
    I = roles.sIDX
    b1, b2, b3, b4 = 16*NX, 16*NX + 14*NV, 16*NX + 14*NV + 14*NF1, 16*NX + 14*NV + 14*NF1 + 7*NF2
    assert b4 <= 224
    a(f's_cmp_lt_u32 s{I}, {b1}'); a('s_cbranch_scc1 L_X')
    a(f's_cmp_lt_u32 s{I}, {b2}'); a('s_cbranch_scc1 L_V')
    a(f's_cmp_lt_u32 s{I}, {b3}'); a('s_cbranch_scc1 L_F1')
    a(f's_cmp_lt_u32 s{I}, {b4}'); a('s_cbranch_scc1 L_F2')
    a('s_branch L_exit')
    a('L_X:'); froles.emit_X(a, NX)
    a('L_V:'); a(f's_sub_u32 s{I}, s{I}, {b1}'); froles.emit_V(a, NV)
    a('L_F1:'); a(f's_sub_u32 s{I}, s{I}, {b2}'); froles.emit_F1(a, NF1)
    a('L_F2:'); a(f's_sub_u32 s{I}, s{I}, {b3}'); froles.emit_F2(a, NF2)
    a('L_exit:')
    a('s_waitcnt vmcnt(0)')
    a('s_endpgm')
    return a.text()

def build(stamps=False, **kw):
    cfg = chain.Cfg(); cfg.stamps = stamps; cfg.fused = True
    for k, v in kw.items(): setattr(cfg, k, v)
    a = Asm(); prep.emit_prep(a)
    bodies = [('prep_kernel', a.text(), 256, 256), ('main_kernel', build_main(cfg), 512, 256)]
    L = [('prep_kernel', 256, 256, 32768), ('main_kernel', 256, 256, 155648 if stamps else 114688)]
    return assemble_file(L, bodies), L

def write(path, txt):
    hdr = open(f'cdna_kernels/{KN}.s.ref').read().split('\n')
    keep = [l for l in hdr if l.startswith(';') and '@launch' not in l and 'Override launch' not in l and 'grid=ceil' not in l][:17]
    out = '\n'.join(keep) + '\n' + txt
    open(path, 'w').write(out); print(path, len(out), 'bytes')
if __name__ == '__main__':
    txt, L = build()
    write(f'cdna_kernels/{KN}.s', txt)
```

```python
from chain import *

A_MEML, A_TT, A_SP = 0, 14336, 28672
sOFFK = 64

def emit_A2(a, cfg, L_exit):
    R = Regs(0, 120)
    a('; ================= A side (v2) =================')
    VPX = R.alloc('VPX')
    VL16, VIDX = R.alloc('VL16'), R.alloc('VIDX')
    VPA = R.alloc('VPA', 2)
    VMR, VKM, VKM2, VXG, VXG2 = (R.alloc(n) for n in ('VMR', 'VKM', 'VKM2', 'VXG', 'VXG2'))
    VTW, VTR, VTRB, VSPE, VSPF, VSINK = (R.alloc(n) for n in ('VTW', 'VTR', 'VTRB', 'VSPE', 'VSPF', 'VSINK'))
    VSINK2 = VSINK
    S_XW = 71
    IDN = R.alloc('IDN', 2, 2)
    ACC = R.alloc('ACC', 28, 2); MS = R.alloc('MS', 20, 2); SA = R.alloc('SA', 12, 2); TA = R.alloc('TA', 4, 2)
    CV = R.alloc('CV', 4, 2); KX = R.alloc('KX', 28, 2); KM4 = R.alloc('KM4', 4, 2); KM16 = R.alloc('KM16', 2, 2)
    VL = ACC + 27
    a(f'v_and_b32 v{VL}, 63, v0')
    a(f'v_lshlrev_b32 v{VL16}, 4, v{VL}')
    a(f'v_and_b32 v{VIDX}, 8, v{VL}')
    a(f'v_cmp_ne_u32 vcc, 0, v{VIDX}')
    a(f'v_mov_b32 v{VIDX}, 0x4444')
    a(f'v_mov_b32 v{VPA}, 0xeeee')
    a(f'v_cndmask_b32 v{VIDX}, v{VIDX}, v{VPA}, vcc')
    for k in range(7):
        a(f's_lshl_b32 s{S_T0}, s{S_WAVE}, 1')
        a(f's_add_u32 s{S_T0}, s{S_T0}, {k}')
        a(f's_cmp_ge_u32 s{S_T0}, 7')
        a(f's_cselect_b32 s{S_T0+1}, 7, 0')
        a(f's_sub_u32 s{S_T0}, s{S_T0}, s{S_T0+1}')
        a(f's_lshl_b32 s{sOFFK+k}, s{S_T0}, 11')
    a(f's_lshr_b32 s{S_T0}, s{sOFFK}, 1')
    a(f'v_add_u32 v{VPA}, s{S_T0}, v{VL16}')
    a(f's_lshr_b32 s{S_T0}, s{sOFFK+1}, 1')
    a(f'v_add_u32 v{VPA+1}, s{S_T0}, v{VL16}')
    a(f's_lshl_b32 s{S_T0}, s{S_WAVE}, 11')
    a(f'v_add_u32 v{VMR}, s{S_T0}, v{VL16}')
    a(f's_mul_i32 s{S_T0}, s{S_ROLE}, 28')
    a(f's_mul_i32 s{S_T0+1}, s{S_WAVE}, 7')
    a(f's_add_u32 s{S_T0}, s{S_T0}, s{S_T0+1}')
    a(f's_mul_i32 s{S_T0}, s{S_T0}, {7*2048}')
    a(f's_add_u32 s{S_T0}, s{S_T0}, {AF_OFF}')
    n = 0
    for tt in range(7):
        for k in range(7):
            a(f's_add_u32 s{S_T0+1}, s{S_T0}, s{sOFFK+k}')
            for rh in range(2):
                a(f'buffer_load_dwordx4 {wfrag_half(tt*7+k, rh)}, v{VL16}, {WS}, s{S_T0+1} offen offset:{rh*1024}')
                n += 1
                if n % 32 == 0: a('s_waitcnt vmcnt(16)')
        a(f's_add_u32 s{S_T0}, s{S_T0}, {7*2048}')
    TJ, TG, TX, TY, CQ, RP = MS, MS+1, MS+2, MS+3, MS+4, MS+5
    a(f'v_and_b32 v{TJ}, 15, v{VL}')
    a(f'v_lshrrev_b32 v{TG}, 4, v{VL}')
    a(f's_mul_i32 s{S_T0}, s{S_WAVE}, {14*128}')
    a(f'v_and_b32 v{TX}, 7, v{TJ}')
    a(f'v_lshlrev_b32 v{TX}, 4, v{TX}')
    a(f'v_lshlrev_b32 v{TY}, 7, v{TG}')
    a(f'v_add3_u32 v{VKM}, v{TX}, v{TY}, s{S_T0}')
    a(f'v_lshrrev_b32 v{TY}, 1, v{TG}')
    a(f'v_lshlrev_b32 v{TY}, 7, v{TY}')
    a(f'v_add3_u32 v{VKM2}, v{TX}, v{TY}, s{S_T0}')
    a(f'v_and_b32 v{TY}, 1, v{TG}')
    a(f'v_lshlrev_b32 v{TY}, 3, v{TY}')
    a(f'v_add_u32 v{VKM2}, v{VKM2}, v{TY}')
    a(f'v_add_u32 v{VKM2}, {12*128}, v{VKM2}')
    a(f's_mul_i32 s{S_T0}, s{S_WAVE}, 7168')
    a(f'v_lshlrev_b32 v{TX}, 4, v{TJ}')
    a(f'v_lshlrev_b32 v{TY}, 9, v{TG}')
    a(f'v_add3_u32 v{VXG}, v{TX}, v{TY}, s{S_T0}')
    a(f'v_lshrrev_b32 v{TY}, 1, v{TG}')
    a(f'v_lshlrev_b32 v{TY}, 9, v{TY}')
    a(f'v_add3_u32 v{VXG2}, v{TX}, v{TY}, s{S_T0}')
    a(f'v_and_b32 v{TY}, 1, v{TG}')
    a(f'v_lshlrev_b32 v{TY}, 3, v{TY}')
    a(f'v_add_u32 v{VXG2}, v{VXG2}, v{TY}')
    a(f'v_add_u32 v{VXG2}, {12*512}, v{VXG2}')
    a(f's_mul_i32 s{S_T0}, s{S_WAVE}, 3584')
    a(f's_add_u32 s{S_T0}, s{S_T0}, {A_TT}')
    a(f'v_lshrrev_b32 v{TX}, 1, v{TG}')
    a(f'v_lshlrev_b32 v{TX}, 5, v{TX}')
    a(f'v_lshl_add_u32 v{TX}, v{TJ}, 3, v{TX}')
    a(f'v_and_b32 v{TX}, 127, v{TX}')
    a(f'v_lshlrev_b32 v{TY}, 7, v{TG}')
    a(f'v_add3_u32 v{VTW}, v{TX}, v{TY}, s{S_T0}')
    a(f'v_and_b32 v{CQ}, 3, v{VL}')
    a(f'v_bfe_u32 v{RP}, v{VL}, 2, 2')
    def traddr(dst, cl_extra):
        a(f'v_and_b32 v{TX}, 1, v{TG}')
        a(f'v_lshlrev_b32 v{TX}, 3, v{TX}')
        a(f'v_add_u32 v{TX}, v{TX}, v{RP}')
        if cl_extra: a(f'v_add_u32 v{TX}, {cl_extra}, v{TX}')
        a(f'v_lshlrev_b32 v{TX}, 3, v{TX}')
        a(f'v_lshrrev_b32 v{TY}, 1, v{CQ}')
        a(f'v_lshl_add_u32 v{TX}, v{TY}, 5, v{TX}')
        a(f'v_and_b32 v{TX}, 127, v{TX}')
        a(f'v_lshl_add_u32 v{TX}, v{CQ}, 7, v{TX}')
        a(f'v_lshrrev_b32 v{TY}, 1, v{TG}')
        a(f'v_lshl_add_u32 v{TX}, v{TY}, 9, v{TX}')
        a(f'v_add_u32 v{dst}, s{S_T0}, v{TX}')
    traddr(VTR, 0); traddr(VTRB, 4)
    a(f'v_lshlrev_b32 v{TX}, 2, v{TG}')
    a(f'v_sub_u32 v{TX}, v{TJ}, v{TX}')
    for half in range(2):
        a(f'v_cmp_eq_u32 vcc, {2*half}, v{TX}')
        a(f'v_mov_b32 v{TY}, 0x3f80')
        a(f'v_mov_b32 v{CQ}, 0')
        a(f'v_cndmask_b32 v{IDN+half}, v{CQ}, v{TY}, vcc')
        a(f'v_cmp_eq_u32 vcc, {2*half+1}, v{TX}')
        a(f'v_mov_b32 v{TY}, 0x3f800000')
        a(f's_nop 0')
        a(f'v_cndmask_b32 v{CQ}, v{CQ}, v{TY}, vcc')
        a(f'v_or_b32 v{IDN+half}, v{IDN+half}, v{CQ}')
    a(f's_lshl_b32 s{S_T0}, s{S_WAVE}, 11')
    a(f's_add_u32 s{S_T0}, s{S_T0}, {A_SP}')
    a(f'v_and_b32 v{TX}, 1, v{TG}')
    a(f'v_lshlrev_b32 v{TX}, 10, v{TX}')
    a(f'v_lshrrev_b32 v{TY}, 5, v{VL}')
    a(f'v_lshl_add_u32 v{CQ}, v{TY}, 4, v{TJ}')
    a(f'v_lshrrev_b32 v{RP}, 2, v{CQ}')
    a(f'v_lshl_add_u32 v{TX}, v{RP}, 5, v{TX}')
    a(f'v_and_b32 v{RP}, 3, v{CQ}')
    a(f'v_lshl_add_u32 v{RP}, v{RP}, 2, v{TX}')
    a(f'v_add_u32 v{VSPE}, s{S_T0}, v{RP}')
    a(f'v_and_b32 v{TX}, 1, v{TG}')
    a(f'v_lshlrev_b32 v{TX}, 2, v{TX}')
    a(f'v_add_u32 v{TX}, v{TX}, v{TY}')
    a(f'v_lshlrev_b32 v{TX}, 8, v{TX}')
    a(f'v_and_b32 v{RP}, 7, v{TJ}')
    a(f'v_lshl_add_u32 v{TX}, v{RP}, 5, v{TX}')
    a(f'v_lshrrev_b32 v{RP}, 3, v{TJ}')
    a(f'v_lshl_add_u32 v{TX}, v{RP}, 2, v{TX}')
    a(f'v_add_u32 v{TX}, 16, v{TX}')
    a(f'v_add_u32 v{VSPF}, s{S_T0}, v{TX}')
    a(f'v_lshrrev_b32 v{TX}, 3, v{VL}')
    a(f'v_and_b32 v{TY}, 7, v{VL}')
    a(f'v_lshrrev_b32 v{CQ}, 1, v{TY}')
    a(f'v_lshlrev_b32 v{RP}, 7, v{CQ}')
    a(f'v_lshl_add_u32 v{RP}, v{TX}, 4, v{RP}')
    a(f'v_and_b32 v{TJ}, 1, v{TY}')
    a(f'v_lshl_add_u32 v{VPX}, v{TJ}, 3, v{RP}')
    a(f's_mov_b32 s{S_STEP}, 0')
    a(f's_mov_b32 s{S_MEMF}, {MEMF_OFF}')
    a(f's_lshl_b32 s{S_T0}, s{S_ROLE}, 9')
    a(f's_add_u32 s{S_P}, s{S_T0}, {P_OFF}')
    a(f's_lshl_b32 s{S_T0}, s{S_ROLE}, 7')
    a(f's_add_u32 s{S_J}, s{S_T0}, {P_OFF + 8192}')
    a(f's_mov_b32 s{S_NXT}, {XNP_OFF}')
    a(f's_lshl_b32 s{S_T0}, s{S_ROLE}, 2')
    a(f's_add_u32 s{S_T0}, s{S_T0}, s{S_WAVE}')
    a(f's_mul_i32 s{S_T0}, s{S_T0}, 7168')
    a(f's_add_u32 s{S_W}, s{S_T0}, {UF_OFF + cfg.warm_ahead*UF_STEP}')
    a(f's_lshl_b32 s{S_T0}, s{S_ROLE}, 2')
    a(f's_add_u32 s{S_T0}, s{S_T0}, s{S_WAVE}')
    a(f's_lshl_b32 s{S_T0}, s{S_T0}, 9')
    a(f's_add_u32 s{S_XW}, s{S_T0}, {XNP_STEP}')
    def kx_load(sg):
        if sg < 3:
            so = S_NXT
            if sg == 2:
                a(f's_add_u32 s{S_T0}, s{S_NXT}, 4096'); so = S_T0
            for T in range(2):
                a(f'buffer_load_dwordx4 v[{KX+14*T+4*sg}:{KX+14*T+4*sg+3}], v{VXG}, {WS}, s{so} offen offset:{(sg*2048 + T*256) % 4096}')
        else:
            for T in range(2):
                a(f'buffer_load_dwordx2 v[{KX+14*T+12}:{KX+14*T+13}], v{VXG2}, {WS}, s{S_NXT} offen offset:{T*256}')
    a('s_waitcnt vmcnt(0)')
    if getattr(cfg, 'tl', 0):
        a('s_memrealtime s[88:89]')
        a('s_waitcnt lgkmcnt(0)')
    for sg in range(4): kx_load(sg)
    a(f's_add_u32 s{S_NXT}, s{S_NXT}, {XNP_STEP}')
    Q = [(SA, SA+4), (SA+8, TA)]
    if getattr(cfg, 'tl', 0):
        a('s_memrealtime s[84:85]')
        a('s_waitcnt lgkmcnt(0)')
    if cfg.total:
        a('s_memtime s[72:73]')
        a('s_memrealtime s[76:77]')
        a('s_waitcnt lgkmcnt(0)')
    a('LA_loop:')
    stamp(a, cfg, 0)
    for r in range(0, 28, 2): a(f'v_mov_b64 v[{ACC+r}:{ACC+r+1}], 0')
    def issue(st):
        for i in range(2):
            q = Q[st][i]
            a(f'buffer_load_dwordx4 v[{q}:{q+3}], v{VPA+i}, {WS}, s{S_MEMF} offen sc1')
    def check(st, lab):
        q0, q1 = Q[st]
        a(f'v_max3_u32 v{CV}, v{q0}, v{q0+1}, v{q0+2}')
        a(f'v_max3_u32 v{CV+1}, v{q0+3}, v{q1}, v{q1+1}')
        a(f'v_max3_u32 v{CV}, v{CV}, v{q1+2}, v{q1+3}')
        a(f'v_max_u32 v{CV}, v{CV}, v{CV+1}')
        a(f'v_cmp_eq_u32 vcc, -1, v{CV}')
        a(f's_cbranch_vccz {lab}')
    a(f's_mov_b32 s{S_SPIN}, 0')
    issue(0)
    a('LA_pl:')
    issue(1)
    a('s_waitcnt vmcnt(2)')
    check(0, 'LA_ok0')
    issue(0)
    a('s_waitcnt vmcnt(2)')
    check(1, 'LA_ok1')
    a(f's_add_u32 s{S_SPIN}, s{S_SPIN}, 1')
    a(f's_cmp_lt_u32 s{S_SPIN}, {SPIN_MAX}')
    a('s_cbranch_scc1 LA_pl')
    a('s_waitcnt vmcnt(0)')
    a('s_branch LA_ok1')
    def sm(tt, k, areg):
        a(f'v_smfmac_f32_16x16x64_bf16 v[{ACC+4*tt}:{ACC+4*tt+3}], v[{areg}:{areg+3}], {wfrag(tt*7+k)}, v{VIDX}')
    for st in (0, 1):
        a(f'LA_ok{st}:')
        stamp(a, cfg, 1)
        q0, q1 = Q[st]
        a(f'ds_write_b128 v{VPA}, v[{q0}:{q0+3}] offset:{A_MEML}')
        a(f'ds_write_b128 v{VPA+1}, v[{q1}:{q1+3}] offset:{A_MEML}')
        sm(0, 0, q0)
        a(f'ds_write_b128 v{VPA}, v[{q0}:{q0+3}] offset:{A_MEML+7168}')
        sm(1, 0, q0)
        a(f'ds_write_b128 v{VPA+1}, v[{q1}:{q1+3}] offset:{A_MEML+7168}')
        for tt in range(2, cfg.bar_at): sm(tt, 0, q0)
        a('s_waitcnt lgkmcnt(0)')
        a('s_barrier')
        lgs = LG(a)
        done = max(2, cfg.bar_at)
        seq = [(tt, 0) for tt in range(done, 7)] + [(tt, 1) for tt in range(7)]
        for i, (tt, k) in enumerate(seq):
            if i < 5: a(f'ds_read_b128 v[{MS+4*i}:{MS+4*i+3}], v{VMR} offset:{A_MEML + (2+i)*1024}')
            sm(tt, k, q0 if k == 0 else q1)
        if st == 0: a('s_branch LA_ph2')
    a('LA_ph2:')
    stamp(a, cfg, 2)
    lg = LG(a)
    lg.q = [f'ms{i}' for i in range(5)]
    keys = [KM4, KX, KX+14]
    def s_mfma1(sg, T):
        ta = TA if sg < 3 else CV+2
        c = '0' if sg == 0 else f'v[{SA+4*T}:{SA+4*T+3}]'
        if sg < 3:
            kb = KM4 if T == 0 else keys[T]+4*sg
            a(f'v_mfma_f32_16x16x32_bf16 v[{SA+4*T}:{SA+4*T+3}], v[{ta}:{ta+3}], v[{kb}:{kb+3}], {c}')
        else:
            kb = KM16 if T == 0 else keys[T]+12
            a(f'v_mfma_f32_16x16x16_bf16 v[{SA+4*T}:{SA+4*T+3}], v[{ta}:{ta+1}], v[{kb}:{kb+1}], {c}')
    F = {}
    def add(tt, k, fn): F.setdefault((tt, k), []).append(fn)
    def kmread(sg): lg.op(f'ds_read_b128 v[{KM4}:{KM4+3}], v{VKM} offset:{A_MEML + sg*512}', f'km{sg}')
    add(0, 5, lambda: kmread(0))
    add(0, 6, lambda: lg.op(f'ds_read_b64 v[{KM16}:{KM16+1}], v{VKM2} offset:{A_MEML}', 'km16'))
    for tt in range(1, 7):
        p = tt - 1; cv = CV + 2*(p & 1)
        add(tt, 4, (lambda p=p, cv=cv: a(f'v_cvt_pk_bf16_f32 v{cv}, v{ACC+4*p}, v{ACC+4*p+1}')))
        add(tt, 4, (lambda p=p, cv=cv: a(f'v_cvt_pk_bf16_f32 v{cv+1}, v{ACC+4*p+2}, v{ACC+4*p+3}')))
        add(tt, 5, (lambda p=p, cv=cv: lg.op(f'ds_write_b64 v{VTW}, v[{cv}:{cv+1}] offset:{p*512}', 'tw')))
    for sg in range(3):
        t1 = 2*sg + 2
        add(t1, 6, (lambda sg=sg: lg.op(f'ds_read_b64_tr_b16 v[{TA}:{TA+1}], v{VTR} offset:{sg*1024}', f'tr{sg}')))
        if sg == 2:
            add(t1, 6, (lambda: lg.op(f'ds_read_b64_tr_b16 v[{TA+2}:{TA+3}], v{VTRB} offset:{2*1024}', 'tr2')))
        if sg < 2:
            add(t1+1, 2, (lambda sg=sg: lg.op(f'ds_read_b64_tr_b16 v[{TA+2}:{TA+3}], v{VTRB} offset:{sg*1024}', f'tr{sg}')))
            add(t1+2, 2, (lambda sg=sg: (lg.wait(f'tr{sg}'), lg.wait(f'km{sg}') if f'km{sg}' in lg.q else None, s_mfma1(sg, 0), kmread(sg+1))))
            add(t1+2, 3, (lambda sg=sg: s_mfma1(sg, 1)))
            add(t1+2, 5, (lambda sg=sg: (s_mfma1(sg, 2), kx_load(sg) if cfg.kx_gemm else None)))
    if cfg.warm:
        wt, wk = cfg.warm_slot // 5, 2 + cfg.warm_slot % 5
        add(wt, wk, lambda: (a(f'v_lshlrev_b32 v{VSINK}, 3, v{VL16}'),
                             a(f'buffer_load_dword v{VSINK}, v{VSINK}, {WS}, s{S_W} offen sc1')))
    nwarm = (1 if cfg.warm else 0)
    if cfg.warm_early:
        add(0, 6, lambda: (a(f's_add_u32 s{S_T0+2}, s{S_MEMF}, {MEMF_STEP}'),
                           a(f'buffer_load_dword v{VSINK2}, v{VPA}, {WS}, s{S_T0+2} offen sc1')))
        add(1, 2, lambda: a(f'buffer_load_dword v{VSINK2}, v{VPA+1}, {WS}, s{S_T0+2} offen sc1'))
        add(1, 3, lambda: (a(f'v_and_b32 v{VSINK2}, 0x30, v{VL16}'),
                           a(f'v_lshlrev_b32 v{VSINK2}, 3, v{VSINK2}'),
                           a(f's_add_u32 s{S_T0+2}, s{S_NXT}, s{S_XW}'),
                           a(f'buffer_load_dword v{VSINK2}, v{VSINK2}, {WS}, s{S_T0+2} offen')))
        nwarm += 3
    add(2, 5, lambda: a(f's_waitcnt vmcnt({nwarm})'))
    VSB, VL2 = ACC, ACC+1
    add(3, 6, lambda: a(f'v_lshlrev_b32 v{VSB}, 1, v{VL16}'))
    add(5, 6, lambda: a(f'v_lshrrev_b32 v{VL2}, 3, v{VL16}'))
    for tt in range(7):
        for k in range(2, 7):
            if tt == 0: lg.wait(f'ms{k-2}')
            sm(tt, k, MS+4*(k-2))
            for fn in F.get((tt, k), []): fn()
    stamp(a, cfg, 3)
    a('s_nop 5')
    a(f'v_cvt_pk_bf16_f32 v{CV}, v{ACC+24}, v{ACC+25}')
    a(f'v_cvt_pk_bf16_f32 v{CV+1}, v{ACC+26}, v{ACC+27}')
    a('s_nop 1')
    a(f'v_mfma_f32_16x16x16_bf16 v[{ACC+20}:{ACC+23}], v[{CV}:{CV+1}], v[{IDN}:{IDN+1}], 0')
    lg.wait('tr2')
    for T in range(3): s_mfma1(2, T)
    a(f'v_cvt_pk_bf16_f32 v{CV+2}, v{ACC+20}, v{ACC+21}')
    a(f'v_cvt_pk_bf16_f32 v{CV+3}, v{ACC+22}, v{ACC+23}')
    a('s_nop 1')
    for T in range(3): s_mfma1(3, T)
    a('s_nop 5')
    a(f'v_permlane32_swap_b32 v{SA}, v{SA+1}')
    a(f'v_permlane32_swap_b32 v{SA+2}, v{SA+3}')
    a(f'v_add_f32 v{SA}, v{SA}, v{SA+1}')
    a(f'v_add_f32 v{SA+2}, v{SA+2}, v{SA+3}')
    a(f'ds_write_b32 v{VSPF}, v{SA}')
    a(f'ds_write_b32 v{VSPF}, v{SA+2} offset:512')
    for r in range(4):
        a(f'v_permlane32_swap_b32 v{SA+4+r}, v{SA+8+r}')
    for r in range(4):
        a(f'v_add_f32 v{SA+4+r}, v{SA+4+r}, v{SA+8+r}')
        a(f'ds_write_b32 v{VSPE}, v{SA+4+r} offset:{r*256}')
    a('s_waitcnt lgkmcnt(0)')
    a('s_barrier')
    stamp(a, cfg, 4)
    a(f's_cmp_lg_u32 s{S_WAVE}, 0')
    a('s_cbranch_scc1 LA_oth')
    X = MS; Mv = MS + 16; T0, T1 = ACC+4, ACC+5
    for w in range(4):
        a(f'ds_read_b128 v[{X+4*w}:{X+4*w+3}], v{VSB} offset:{A_SP + w*2048}')
        a(f'ds_read_b32 v{Mv+w}, v{VSB} offset:{A_SP + w*2048 + 16}')
    a('s_waitcnt lgkmcnt(4)')
    a(f'v_pk_add_f32 v[{X}:{X+1}], v[{X}:{X+1}], v[{X+4}:{X+5}]')
    a(f'v_pk_add_f32 v[{X+2}:{X+3}], v[{X+2}:{X+3}], v[{X+6}:{X+7}]')
    a(f'v_add_f32 v{Mv}, v{Mv}, v{Mv+1}')
    a('s_waitcnt lgkmcnt(0)')
    a(f'v_pk_add_f32 v[{X+8}:{X+9}], v[{X+8}:{X+9}], v[{X+12}:{X+13}]')
    a(f'v_pk_add_f32 v[{X+10}:{X+11}], v[{X+10}:{X+11}], v[{X+14}:{X+15}]')
    a(f'v_add_f32 v{Mv+2}, v{Mv+2}, v{Mv+3}')
    a(f'v_pk_add_f32 v[{X}:{X+1}], v[{X}:{X+1}], v[{X+8}:{X+9}]')
    a(f'v_pk_add_f32 v[{X+2}:{X+3}], v[{X+2}:{X+3}], v[{X+10}:{X+11}]')
    a(f'v_add_f32 v{Mv}, v{Mv}, v{Mv+2}')
    a(f'v_max3_f32 v{T0}, v{X}, v{X+1}, v{X+2}')
    a(f'v_max3_f32 v{T0}, v{T0}, v{X+3}, v{Mv}')
    for ctl in ('quad_perm:[1,0,3,2]', 'quad_perm:[2,3,0,1]', 'row_half_mirror'):
        a('s_nop 1')
        a(f'v_max_f32_dpp v{T0}, v{T0}, v{T0} {ctl} row_mask:0xf bank_mask:0xf')
    for r in range(4): a(f'v_sub_f32 v{X+r}, v{X+r}, v{T0}')
    a(f'v_sub_f32 v{Mv}, v{Mv}, v{T0}')
    for r in range(4): a(f'v_exp_f32 v{X+r}, v{X+r}')
    a(f'v_exp_f32 v{Mv}, v{Mv}')
    a(f'v_add_f32 v{T0}, v{X}, v{X+1}')
    a(f'v_add_f32 v{T1}, v{X+2}, v{X+3}')
    a(f'v_add_f32 v{T0}, v{T0}, v{Mv}')
    a(f'v_add_f32 v{T0}, v{T0}, v{T1}')
    for ctl in ('quad_perm:[1,0,3,2]', 'quad_perm:[2,3,0,1]', 'row_half_mirror'):
        a('s_nop 1')
        a(f'v_add_f32_dpp v{T0}, v{T0}, v{T0} {ctl} row_mask:0xf bank_mask:0xf')
    a(f'v_rcp_f32 v{T0}, v{T0}')
    a('s_nop 0')
    a(f'v_mul_f32 v{X}, v{X}, v{T0}')
    a(f'v_mul_f32 v{X+1}, v{X+1}, v{T0}')
    a(f'v_mul_f32 v{X+2}, v{X+2}, v{T0}')
    a(f'v_mul_f32 v{X+3}, v{X+3}, v{T0}')
    a(f'v_cvt_pk_bf16_f32 v{X+4}, |v{X}|, |v{X+1}|')
    a(f'v_cvt_pk_bf16_f32 v{X+5}, |v{X+2}|, |v{X+3}|')
    a(f'v_mul_f32 v{Mv}, v{Mv}, v{T0}')
    a(f'buffer_store_dwordx2 v[{X+4}:{X+5}], v{VPX}, {WS}, s{S_P} offen')
    a(f'v_cvt_pk_bf16_f32 v{X+6}, |v{Mv}|, |v{Mv}|')
    a(f'buffer_store_short v{X+6}, v{VL2}, {WS}, s{S_J} offen')
    stamp(a, cfg, 5)
    def mem_warm():
        if cfg.warm_mem and not cfg.warm_early:
            a(f's_add_u32 s{S_T0+2}, s{S_MEMF}, {MEMF_STEP}')
            a(f'buffer_load_dword v{VSINK}, v{VPA}, {WS}, s{S_T0+2} offen sc1')
            a(f'buffer_load_dword v{VSINK}, v{VPA+1}, {WS}, s{S_T0+2} offen sc1')
    def kx_rest():
        for sg in range(2 if cfg.kx_gemm else 0, 4): kx_load(sg)
    if cfg.warm_pa:
        a(f's_add_u32 s{S_T0+1}, s{S_P}, {P_STEP}')
        a(f'buffer_load_dword v{VSINK}, v{VPX}, {WS}, s{S_T0+1} offen sc1')
        a(f's_add_u32 s{S_T0+1}, s{S_J}, {P_STEP}')
        a(f'buffer_load_ushort v{VSINK}, v{VL2}, {WS}, s{S_T0+1} offen sc1')
    mem_warm()
    kx_rest()
    if cfg.a_sleep0: a(f's_sleep {cfg.a_sleep0}')
    a('s_branch LA_next')
    a('LA_oth:')
    mem_warm()
    kx_rest()
    stamp(a, cfg, 5)
    if cfg.a_sleep: a(f's_sleep {cfg.a_sleep}')
    a('LA_next:')
    stamp_flush(a, cfg, CV)
    a(f's_add_u32 s{S_NXT}, s{S_NXT}, {XNP_STEP}')
    a(f's_add_u32 s{S_W}, s{S_W}, {UF_STEP}')
    a(f's_add_u32 s{S_STEP}, s{S_STEP}, 1')
    a(f's_add_u32 s{S_MEMF}, s{S_MEMF}, {MEMF_STEP}')
    a(f's_add_u32 s{S_P}, s{S_P}, {P_STEP}')
    a(f's_add_u32 s{S_J}, s{S_J}, {P_STEP}')
    a(f's_cmp_lt_u32 s{S_STEP}, {cfg.nsteps}')
    a('s_cbranch_scc1 LA_loop')
    a('s_waitcnt vmcnt(0)')
    if cfg.total:
        a('s_memtime s[74:75]')
        a('s_memrealtime s[78:79]')
        a('s_waitcnt lgkmcnt(0)')
        a('s_sub_u32 s74, s74, s72')
        a('s_sub_u32 s78, s78, s76')
        a(f's_lshl_b32 s{S_T0}, s{S_ROLE}, 2')
        a(f's_add_u32 s{S_T0}, s{S_T0}, s{S_WAVE}')
        a(f's_lshl_b32 s{S_T0}, s{S_T0}, 3')
        a(f's_add_u32 s{S_T0}, s{S_T0}, {TS_OFF + 0x80000}')
        a(f'v_mov_b32 v{MS}, s74')
        a(f'v_mov_b32 v{MS+1}, s78')
        a(f'v_mov_b32 v{MS+2}, 0')
        a('s_mov_b64 exec, 1')
        a(f'buffer_store_dwordx2 v[{MS}:{MS+1}], v{MS+2}, {WS}, s{S_T0} offen')
        a('s_mov_b64 exec, -1')
        a('s_waitcnt vmcnt(0)')
    stamp_store(a, cfg, VL16, MS)
    a(f's_branch {L_exit}')

Cfg.nou = 0
Cfg.warm_early = 1
Cfg.diag = 0
Cfg.total = 1
Cfg.u_gap = 5
Cfg.u_first = 7
Cfg.warm_slot = 2
Cfg.u_split = 0
Cfg.kx_gemm = 1
Cfg.wstride = 64
Cfg.warm_mem = 1
Cfg.warm_p = 0
Cfg.warm_pa = 1
Cfg.bar_at = 5
Cfg.a_sleep = 0
Cfg.a_sleep0 = 0
Cfg.b_sleep = 0
Cfg.b_psleep = 0

def emit_B2(a, cfg, L_exit):
    R = Regs(0, 120)
    R.next = 1
    a('; ================= B side =================')
    VL, VL16, VIDX, VPA = setup_common(a, R)
    VWL, VPX, VPM, VRR, VMO, VWO = (R.alloc(n) for n in ('VWL', 'VPX', 'VPM', 'VRR', 'VMO', 'VWO'))
    MS = R.alloc('MS', 28, 2)
    ACC = R.alloc('ACC', 8, 2); CV = R.alloc('CV', 4, 2)
    LW = R.alloc('LW', 16, 2); WB = R.alloc('WB', 16, 2); UB = R.alloc('UB', 32, 2)
    PX = MS; PM = MS + 8; PV = MS + 12; RD = MS + 20
    a(f's_sub_u32 s{S_J}, s{S_ROLE}, {NA}')
    for ti in range(7):
        hh, T = ti >> 1, ti & 1
        a(f's_lshl_b32 s{S_T0}, s{S_WAVE}, 2')
        a(f's_add_u32 s{S_T0}, s{S_T0}, {hh}')
        a(f's_mul_i32 s{S_T0}, s{S_T0}, 28')
        a(f's_lshl_b32 s{S_T0+1}, s{S_J}, 1')
        a(f's_add_u32 s{S_T0}, s{S_T0}, s{S_T0+1}')
        a(f's_add_u32 s{S_T0}, s{S_T0}, {T}')
        a(f's_mul_i32 s{S_T0}, s{S_T0}, {7*2048}')
        a(f's_add_u32 s{S_T0}, s{S_T0}, {BF_OFF}')
        for kk in range(7):
            for rh in range(2):
                off = kk*2048 + rh*1024
                if off % 4096 == 0 and off > 0: a(f's_add_u32 s{S_T0}, s{S_T0}, 4096')
                a(f'buffer_load_dwordx4 {wfrag_half(ti*7+kk, rh)}, v{VL16}, {WS}, s{S_T0} offen offset:{off % 4096}')
        a('s_waitcnt vmcnt(14)')
    a(f's_lshl_b32 s{S_T0}, s{S_WAVE}, 2')
    a(f's_add_u32 s{S_T0}, s{S_T0}, 3')
    a(f's_mul_i32 s{S_T0}, s{S_T0}, 28')
    a(f's_lshl_b32 s{S_T0+1}, s{S_J}, 1')
    a(f's_add_u32 s{S_T0}, s{S_T0}, s{S_T0+1}')
    a(f's_add_u32 s{S_T0}, s{S_T0}, 1')
    a(f's_mul_i32 s{S_T0}, s{S_T0}, {7*2048}')
    a(f's_add_u32 s{S_T0}, s{S_T0}, {BF_OFF}')
    a(f's_mul_i32 s{S_T0+1}, s{S_WAVE}, 14336')
    a(f's_add_u32 s{S_T0+1}, s{S_T0+1}, {B_WL}')
    a(f'v_add_u32 v{VWL}, s{S_T0+1}, v{VL16}')
    for d in range(14):
        a(f's_add_u32 m0, s{S_T0+1}, {d*1024}')
        a(f's_add_u32 s{S_T0+2}, s{S_T0}, {d*1024}')
        a(f'buffer_load_dwordx4 v{VL16}, {WS}, s{S_T0+2} offen lds')
    a('s_waitcnt vmcnt(0)')
    TX, TY, TZ = MS, MS+1, MS+2
    a(f's_lshl_b32 s{S_T0}, s{S_WAVE}, 11')
    a(f'v_add_u32 v{VPX}, s{S_T0}, v{VL16}')
    a(f'v_lshrrev_b32 v{TX}, 5, v{VL}')
    a(f'v_lshlrev_b32 v{TX}, 1, v{TX}')
    a(f'v_bfe_u32 v{TY}, v{VL}, 3, 1')
    a(f'v_add_u32 v{TX}, v{TX}, v{TY}')
    a(f'v_lshlrev_b32 v{TX}, 7, v{TX}')
    a(f'v_and_b32 v{TY}, 7, v{VL}')
    a(f'v_lshl_add_u32 v{TX}, v{TY}, 4, v{TX}')
    a(f's_lshl_b32 s{S_T0}, s{S_WAVE}, 9')
    a(f's_add_u32 s{S_T0}, s{S_T0}, 8192')
    a(f'v_add_u32 v{VPM}, s{S_T0}, v{TX}')
    a(f's_lshr_b32 s{S_T0}, s{S_WAVE}, 1')
    a(f's_lshl_b32 s{S_T0}, s{S_T0}, 10')
    a(f's_and_b32 s{S_T0+1}, s{S_WAVE}, 1')
    a(f's_lshl_b32 s{S_T0+1}, s{S_T0+1}, 8')
    a(f's_add_u32 s{S_T0}, s{S_T0}, s{S_T0+1}')
    a(f's_add_u32 s{S_T0}, s{S_T0}, {B_RED}')
    a(f'v_lshl_add_u32 v{VRR}, v{VL}, 2, s{S_T0}')
    a(f'v_lshrrev_b32 v{TX}, 2, v{VL}')
    a(f'v_lshrrev_b32 v{TY}, 3, v{TX}')
    a(f'v_lshlrev_b32 v{TY}, 7, v{TY}')
    a(f'v_and_b32 v{TZ}, 3, v{VL}')
    a(f'v_lshl_add_u32 v{TY}, v{TZ}, 4, v{TY}')
    a(f'v_bfe_u32 v{TZ}, v{TX}, 1, 2')
    a(f'v_lshl_add_u32 v{TY}, v{TZ}, 2, v{TY}')
    a(f's_lshl_b32 s{S_T0}, s{S_J}, 2')
    a(f's_lshr_b32 s{S_T0+1}, s{S_WAVE}, 1')
    a(f's_lshl_b32 s{S_T0+1}, s{S_T0+1}, 1')
    a(f's_add_u32 s{S_T0}, s{S_T0}, s{S_T0+1}')
    a(f's_lshl_b32 s{S_T0}, s{S_T0}, 7')
    a(f's_and_b32 s{S_T0+1}, s{S_WAVE}, 1')
    a(f's_lshl_b32 s{S_T0+1}, s{S_T0+1}, 6')
    a(f's_add_u32 s{S_T0}, s{S_T0}, s{S_T0+1}')
    a(f'v_add_u32 v{VMO}, s{S_T0}, v{TY}')
    a(f's_lshl_b32 s{S_T0}, s{S_J}, 14')
    a(f's_lshl_b32 s{S_T0+1}, s{S_WAVE}, 12')
    a(f's_add_u32 s{S_T0}, s{S_T0}, s{S_T0+1}')
    a(f'v_add_u32 v{VWO}, s{S_T0}, v{VL16}')
    a(f's_lshl_b32 s{S_T0}, s{S_WAVE}, 11')
    a(f's_add_u32 s{S_T0}, s{S_T0}, {B_RED}')
    a(f'v_add_u32 v{VL}, s{S_T0}, v{VL16}')
    VRW = VL
    a(f's_lshl_b32 s{S_T0}, s{S_WAVE}, 2')
    a(f's_mul_i32 s{S_T0}, s{S_T0}, 28')
    a(f's_lshl_b32 s{S_T0+1}, s{S_J}, 1')
    a(f's_add_u32 s{S_T0}, s{S_T0}, s{S_T0+1}')
    a(f's_lshl_b32 s{S_T0}, s{S_T0}, 10')
    a(f's_add_u32 s{S_NXT}, s{S_T0}, {UF_OFF}')
    def u_load1(hh, T):
        b = UB + 16*(hh >> 1) + 8*T + 4*(hh & 1)
        a(f's_add_u32 s{S_T0}, s{S_NXT}, {hh*28*1024}')
        a(f'buffer_load_dwordx4 v[{b}:{b+3}], v{VL16}, {WS}, s{S_T0} offen offset:{T*1024} sc1')
    def w_store1(T, pair):
        b = WB + 8*T + 4*pair
        a(f'buffer_store_dwordx4 v[{b}:{b+3}], v{VWO}, {WS}, s{S_W} offen offset:{(T*2+pair)*1024} sc1')
    a(f's_mov_b32 s{S_STEP}, 0')
    a(f's_mov_b32 s{S_MEMF}, {MEMF_OFF}')
    a(f's_mov_b32 s{S_P}, {P_OFF}')
    a(f's_mov_b32 s{S_W}, {W_OFF - W_STEP}')
    ulist = [(hh, T) for hh in range(4) for T in range(2)]
    for i in range(cfg.u_split): u_load1(*ulist[i])
    if cfg.u_split == 8: a(f's_add_u32 s{S_NXT}, s{S_NXT}, {UF_STEP}')
    a('LB_loop:')
    stamp(a, cfg, 0)
    if cfg.fused:
        a(f's_and_b32 s{S_T0}, s{S_STEP}, 7')
        a(f's_cmp_lg_u32 s{S_T0}, 0')
        a('s_cbranch_scc1 LB_uok')
        a(f's_lshl_b32 s{S_T0}, s{S_STEP}, 7')
        a(f's_add_u32 s{S_T0}, s{S_T0}, {FL_UF}')
        a(f'v_lshlrev_b32 v{ACC}, 3, v{VL16}')
        a(f'v_and_b32 v{ACC}, 0x380, v{ACC}')
        a(f's_mov_b32 s{S_SPIN}, 0')
        a('LB_up:')
        a(f'buffer_load_dword v{ACC+1}, v{ACC}, {WS}, s{S_T0} offen sc1')
        a('s_waitcnt vmcnt(0)')
        a(f'v_cmp_gt_u32 vcc, 28, v{ACC+1}')
        a('s_cbranch_vccz LB_uok')
        a(f's_add_u32 s{S_SPIN}, s{S_SPIN}, 1')
        a(f's_cmp_lt_u32 s{S_SPIN}, {SPIN_MAX}')
        a('s_cbranch_scc1 LB_up')
        a('LB_uok:')
    poll_mem(a, VPA, ACC, 'LB_poll')
    stamp(a, cfg, 1)
    a(f'ds_write_b128 v{VPA}, v[{ACC}:{ACC+3}] offset:{B_MEML}')
    a(f'ds_write_b128 v{VPA+1}, v[{ACC+4}:{ACC+7}] offset:{B_MEML}')
    a('s_waitcnt lgkmcnt(0)')
    a('s_barrier')
    lg = LG(a)
    for kk in range(7):
        lg.op(f'ds_read_b128 v[{MS+4*kk}:{MS+4*kk+3}], v{VL16} offset:{B_MEML+kk*1024}', f'ms{kk}')
    for r in range(0, 8, 2): a(f'v_mov_b64 v[{ACC+r}:{ACC+r+1}], 0')
    if cfg.wstore:
        a(f's_cmp_eq_u32 s{S_STEP}, 0')
        a('s_cbranch_scc1 LB_now')
        for T in range(2):
            for pair in range(2): w_store1(T, pair)
        a('LB_now:')
    def acc(t): return ACC + 4*(t & 1)
    def lwread(kk):
        b = LW + 8*(kk & 1)
        lg.op(f'ds_read_b128 v[{b}:{b+3}], v{VWL} offset:{kk*2048}', f'lw{kk}')
        lg.op(f'ds_read_b128 v[{b+4}:{b+7}], v{VWL} offset:{kk*2048+1024}', f'lw{kk}')
    def cvt(t, i):
        hh, T = t >> 1, t & 1
        pair, hp = hh >> 1, hh & 1
        b = WB + 8*T + 4*pair
        a(f'v_cvt_pk_bf16_f32 v{b+2*i+hp}, v{acc(t)+2*i}, v{acc(t)+2*i+1}')
    ACC7 = 116
    a(f'v_mov_b64 v[{ACC7}:{ACC7+1}], 0')
    a(f'v_mov_b64 v[{ACC7+2}:{ACC7+3}], 0')
    slotn = 0
    def fillers(slot):
        if cfg.warm_p and slot in (1, 3, 5):
            if slot == 1: a(f'buffer_load_dword v{CV+2}, v{VPX}, {WS}, s{S_P} offen sc1')
            if slot == 3: a(f'buffer_load_dword v{CV+2}, v{VPX}, {WS}, s{S_P} offen offset:1024 sc1')
            if slot == 5: a(f'buffer_load_dword v{CV+2}, v{VPM}, {WS}, s{S_P} offen sc1')
        sl = slot - cfg.u_first
        if sl >= 0 and sl % cfg.u_gap == 0 and sl // cfg.u_gap < 8 - cfg.u_split and not cfg.nou:
            u_load1(*ulist[cfg.u_split + sl // cfg.u_gap])
        if sl == cfg.u_gap*(8 - cfg.u_split) and cfg.u_split < 8: a(f's_add_u32 s{S_NXT}, s{S_NXT}, {UF_STEP}')
    for t in range(7):
        for kk in range(7):
            if t == 0: lg.wait(f'ms{kk}')
            a(f'v_smfmac_f32_16x16x64_bf16 v[{acc(t)}:{acc(t)+3}], v[{MS+4*kk}:{MS+4*kk+3}], {wfrag(t*7+kk)}, v{VIDX}')
            if kk == 0: lwread(t)
            if t >= 1 and kk == 2: cvt(t-1, 0); cvt(t-1, 1)
            if t >= 1 and t < 6 and kk == 3: a(f'v_mov_b64 v[{acc(t+1)}:{acc(t+1)+1}], 0')
            if t >= 1 and t < 6 and kk == 4: a(f'v_mov_b64 v[{acc(t+1)+2}:{acc(t+1)+3}], 0')
            fillers(slotn); slotn += 1
        lg.wait(f'lw{t}')
        b = LW + 8*(t & 1)
        a(f'v_smfmac_f32_16x16x64_bf16 v[{ACC7}:{ACC7+3}], v[{MS+4*t}:{MS+4*t+3}], v[{b}:{b+7}], v{VIDX}')
        fillers(slotn); slotn += 1
    assert cfg.u_first + cfg.u_gap*(8 - cfg.u_split) < slotn or cfg.u_split == 8
    a('s_nop 6')
    cvt(6, 0); cvt(6, 1)
    a(f'v_cvt_pk_bf16_f32 v{WB+8+4+1}, v{ACC7}, v{ACC7+1}')
    a(f'v_cvt_pk_bf16_f32 v{WB+8+4+3}, v{ACC7+2}, v{ACC7+3}')
    stamp(a, cfg, 2)
    a(f's_cmp_ge_u32 s{S_STEP}, {cfg.nsteps}')
    a('s_cbranch_scc1 LB_fin')
    for r in range(0, 8, 2): a(f'v_mov_b64 v[{PV+r}:{PV+r+1}], 0')
    if cfg.b_psleep: a(f's_sleep {cfg.b_psleep}')
    PS = [PX, LW]
    def pissue(st):
        b = PS[st]
        a(f'buffer_load_dwordx4 v[{b}:{b+3}], v{VPX}, {WS}, s{S_P} offen sc1')
        a(f'buffer_load_dwordx4 v[{b+4}:{b+7}], v{VPX}, {WS}, s{S_P} offen offset:1024 sc1')
        a(f'buffer_load_dwordx4 v[{b+8}:{b+11}], v{VPM}, {WS}, s{S_P} offen sc1')
    def pcheck(st, lab):
        b = PS[st]
        a(f'v_or3_b32 v{RD}, v{b}, v{b+1}, v{b+2}')
        a(f'v_or3_b32 v{RD+1}, v{b+3}, v{b+4}, v{b+5}')
        a(f'v_or3_b32 v{RD+2}, v{b+6}, v{b+7}, v{b+8}')
        a(f'v_or3_b32 v{RD}, v{RD}, v{b+9}, v{b+10}')
        a(f'v_or3_b32 v{RD+1}, v{RD+1}, v{RD+2}, v{b+11}')
        a(f'v_or_b32 v{RD}, v{RD}, v{RD+1}')
        a(f'v_and_b32 v{RD}, 0x80008000, v{RD}')
        a(f'v_cmp_ne_u32 vcc, 0, v{RD}')
        a(f's_cbranch_vccz {lab}')
    a(f's_mov_b32 s{S_SPIN}, 0')
    if cfg.stamps and cfg.diag:
        a('s_waitcnt vmcnt(0)')
        stamp(a, cfg, 1)
        pissue(0)
        a('s_waitcnt vmcnt(0)')
        stamp(a, cfg, 5)
        pissue(0)
        a('s_waitcnt vmcnt(0)')
        stamp(a, cfg, 0) if False else None
        a(f's_memtime s[{S_TS+12}:{S_TS+13}]')
    pissue(0)
    if cfg.stamps and not cfg.diag:
        a('s_waitcnt vmcnt(0)')
        stamp(a, cfg, 5)
    a('LB_pp:')
    pissue(1)
    a('s_waitcnt vmcnt(3)')
    pcheck(0, 'LB_pk0')
    pissue(0)
    a('s_waitcnt vmcnt(3)')
    pcheck(1, 'LB_pk1')
    a(f's_add_u32 s{S_SPIN}, s{S_SPIN}, 1')
    a(f's_cmp_lt_u32 s{S_SPIN}, {SPIN_MAX}')
    a('s_cbranch_scc1 LB_pp')
    a('s_waitcnt vmcnt(0)')
    a('s_branch LB_pk1')
    for st in (0, 1):
        a(f'LB_pk{st}:')
        stamp(a, cfg, 3)
        b = PS[st]
        for T in range(2):
            a(f'v_smfmac_f32_16x16x64_bf16 v[{PV+4*T}:{PV+4*T+3}], v[{b+8}:{b+11}], v[{WB+8*T}:{WB+8*T+7}], v{VIDX}')
        for hp in range(2):
            for T in range(2):
                a(f'v_smfmac_f32_16x16x64_bf16 v[{PV+4*T}:{PV+4*T+3}], v[{b+4*hp}:{b+4*hp+3}], v[{UB+16*hp+8*T}:{UB+16*hp+8*T+7}], v{VIDX}')
        if st == 0: a('s_branch LB_pv')
    a('LB_pv:')
    a('s_nop 5')
    a(f'ds_write_b128 v{VRW}, v[{PV}:{PV+3}]')
    a('s_nop 1')
    a(f'ds_write_b128 v{VRW}, v[{PV+4}:{PV+7}] offset:1024')
    a('s_waitcnt lgkmcnt(0)')
    a('s_barrier')
    for w in range(4):
        for half in range(2):
            a(f'ds_read_b32 v{RD+2*w+half}, v{VRR} offset:{w*2048+half*512}')
    a('s_waitcnt lgkmcnt(4)')
    a(f'v_add_f32 v{RD}, v{RD}, v{RD+1}')
    a(f'v_add_f32 v{RD+2}, v{RD+2}, v{RD+3}')
    a('s_waitcnt lgkmcnt(0)')
    a(f'v_add_f32 v{RD+4}, v{RD+4}, v{RD+5}')
    a(f'v_add_f32 v{RD+6}, v{RD+6}, v{RD+7}')
    a(f'v_add_f32 v{RD}, v{RD}, v{RD+2}')
    a(f'v_add_f32 v{RD+4}, v{RD+4}, v{RD+6}')
    a(f'v_add_f32 v{RD}, v{RD}, v{RD+4}')
    a('s_nop 1')
    a(f'v_mov_b32_dpp v{RD+1}, v{RD} row_shl:4 row_mask:0xf bank_mask:0xf')
    a(f'v_cvt_pk_bf16_f32 v{RD}, v{RD}, v{RD+1}')
    a(f'v_min_u32 v{RD}, 0xfffffffe, v{RD}')
    a(f's_add_u32 s{S_T0}, s{S_MEMF}, {MEMF_STEP}')
    a(f's_mov_b32 s{S_EXEC}, 0x0f0f0f0f')
    a(f's_mov_b32 s{S_EXEC+1}, 0x0f0f0f0f')
    a(f's_mov_b64 exec, s[{S_EXEC}:{S_EXEC+1}]')
    a(f'buffer_store_dword v{RD}, v{VMO}, {WS}, s{S_T0} offen')
    if cfg.fused:
        a(f's_add_u32 s{S_T0}, s{S_T0}, {MEMG_OFF - MEMF_OFF}')
        a(f'buffer_store_dword v{RD}, v{VMO}, {WS}, s{S_T0} offen sc1')
    a(f's_mov_b64 exec, -1')
    if cfg.fused and cfg.wstore:
        a(f's_cmp_eq_u32 s{S_STEP}, 0')
        a('s_cbranch_scc1 LB_nws')
        a(f's_cmp_lg_u32 s{S_WAVE}, 0')
        a('s_cbranch_scc1 LB_nws')
        a(f's_sub_u32 s{S_T0}, s{S_STEP}, 1')
        chain_signal(a, FL_W, S_T0, RD+2)
        a('LB_nws:')
    stamp(a, cfg, 4)
    for i in range(cfg.u_split): u_load1(*ulist[i])
    if cfg.u_split == 8: a(f's_add_u32 s{S_NXT}, s{S_NXT}, {UF_STEP}')
    if cfg.stamps and not cfg.diag: a(f's_mov_b32 s{S_TS+12}, s{S_SPIN}')
    stamp_flush(a, cfg, CV)
    if cfg.b_sleep: a(f's_sleep {cfg.b_sleep}')
    a(f's_add_u32 s{S_STEP}, s{S_STEP}, 1')
    a(f's_add_u32 s{S_MEMF}, s{S_MEMF}, {MEMF_STEP}')
    a(f's_add_u32 s{S_P}, s{S_P}, {P_STEP}')
    a(f's_add_u32 s{S_W}, s{S_W}, {W_STEP}')
    a('s_branch LB_loop')
    a('LB_fin:')
    a(f's_add_u32 s{S_W}, s{S_W}, {W_STEP}')
    if cfg.wstore:
        for T in range(2):
            for pair in range(2): w_store1(T, pair)
    a('s_waitcnt vmcnt(0)')
    if cfg.fused and cfg.wstore:
        a('s_barrier')
        a(f's_cmp_lg_u32 s{S_WAVE}, 0')
        a('s_cbranch_scc1 LB_nws2')
        a(f's_mov_b32 s{S_T0}, {cfg.nsteps-1}')
        chain_signal(a, FL_W, S_T0, MS)
        a(f's_mov_b32 s{S_T0}, {cfg.nsteps}')
        chain_signal(a, FL_W, S_T0, MS)
        a('LB_nws2:')
        a('s_waitcnt vmcnt(0)')
    stamp_store(a, cfg, VL16, MS)
    a(f's_branch {L_exit}')


def gen_chain2_body(cfg):
    a = Asm()
    prologue_common(a, 'L_exit')
    a(f's_cmp_ge_u32 s{S_ROLE}, {NA}')
    a('s_cbranch_scc1 LB_entry')
    emit_A2(a, cfg, 'L_exit')
    a('LB_entry:')
    emit_B2(a, cfg, 'L_exit')
    a('L_exit:')
    a('s_endpgm')
    return a.text(), (155648 if cfg.stamps else 73728)
```

```python
from roles import *

def emit_X(a, nrep, L='RX', sc='sc1'):
    sH, sREP = sT, sT+1
    a(f's_and_b32 s{sH}, s{sIDX}, 15')
    a(f's_lshr_b32 s{sSEG}, s{sIDX}, 4')
    VL, VL16 = 1, 2
    TK, ACC = 4, 36
    VKX, VKM, VSW, VSR, VQ = 92, 93, 94, 95, 96
    T0 = 100
    sMSK = 48
    a(f's_mul_i32 s{sT+2}, s{sH}, 28')
    a(f's_mul_i32 s{sT+3}, s{sW}, 7')
    a(f's_add_u32 s{sT+2}, s{sT+2}, s{sT+3}')
    a(f's_mul_i32 s{sT+2}, s{sT+2}, {7*2048}')
    a(f's_add_u32 s{sT+2}, s{sT+2}, {AF_OFF}')
    n = 0
    for f in range(49):
        for rh in range(2):
            off = f*2048 + rh*1024
            if off % 4096 == 0 and off > 0: a(f's_add_u32 s{sT+2}, s{sT+2}, 4096')
            a(f'buffer_load_dwordx4 {whalf(f, rh)}, v{VL16}, {WS}, s{sT+2} offen offset:{off % 4096}')
            n += 1
            if n % 32 == 0: a('s_waitcnt vmcnt(16)')
    RHO, G, KEY = T0, T0+1, T0+2
    a(f'v_and_b32 v{RHO}, 15, v{VL}')
    a(f'v_lshrrev_b32 v{G}, 4, v{VL}')
    key_of_rho(a, KEY, RHO, T0+3, None)
    a(f's_mul_i32 s{sT+2}, s{sW}, {14*512}')
    a(f'v_lshrrev_b32 v{T0+3}, 1, v{G}')
    a(f'v_lshlrev_b32 v{T0+4}, 9, v{T0+3}')
    a(f'v_lshl_add_u32 v{T0+4}, v{KEY}, 4, v{T0+4}')
    a(f'v_and_b32 v{T0+5}, 1, v{G}')
    a(f'v_lshl_add_u32 v{T0+4}, v{T0+5}, 3, v{T0+4}')
    a(f'v_add_u32 v{VKX}, s{sT+2}, v{T0+4}')
    a(f's_mul_i32 s{sT+2}, s{sW}, {14*128}')
    a(f'v_lshlrev_b32 v{T0+4}, 7, v{T0+3}')
    a(f'v_and_b32 v{T0+6}, 7, v{RHO}')
    a(f'v_lshl_add_u32 v{T0+4}, v{T0+6}, 4, v{T0+4}')
    a(f'v_lshl_add_u32 v{T0+4}, v{T0+5}, 3, v{T0+4}')
    a(f'v_add_u32 v{VKM}, s{sT+2}, v{T0+4}')
    a(f's_mul_i32 s{sT+2}, s{sW}, 6144')
    a(f'v_add_u32 v{VSW}, s{sT+2}, v{VL16}')
    a(f's_and_b32 s{sT+2}, s{sW}, 1')
    a(f's_lshl_b32 s{sT+2}, s{sT+2}, 10')
    a(f'v_add_u32 v{VSR}, s{sT+2}, v{VL16}')
    a(f's_and_b32 s{sT+2}, s{sW}, 1')
    a(f's_lshl_b32 s{sT+2}, s{sT+2}, 1')
    a(f'v_add_u32 v{VQ}, s{sT+2}, v{KEY}')
    a(f'v_lshrrev_b32 v{T0+3}, 1, v{G}')
    a(f'v_lshlrev_b32 v{T0+3}, 4, v{T0+3}')
    a(f'v_and_b32 v{T0+4}, 1, v{G}')
    a(f'v_lshl_add_u32 v{T0+3}, v{T0+4}, 2, v{T0+3}')
    for Tp in range(2):
        for r in range(4):
            k = (r & 1) + 8*(r >> 1) + 2*Tp
            a(f'v_add_u32 v{T0+4}, {k}, v{T0+3}')
            m = sMSK + 2*(Tp*4+r)
            a(f'v_cmp_le_u32 s[{m}:{m+1}], v{T0+4}, v{VQ}')
    a('s_waitcnt vmcnt(0)')
    a(f'{L}_loop:')
    vm = VM(a)
    sXQ, sXP, sMF = sT+2, sT+3, sT+4
    a(f's_mul_i32 s{sXQ}, s{sSEG}, {XNQ_STEP}')
    a(f's_add_u32 s{sXQ}, s{sXQ}, {XNQ_OFF}')
    a(f's_mul_i32 s{sXP}, s{sSEG}, {XNP_STEP}')
    a(f's_add_u32 s{sXP}, s{sXP}, {XNP_OFF}')
    a(f's_mul_i32 s{sMF}, s{sSEG}, {MEMF_STEP}')
    a(f's_add_u32 s{sMF}, s{sMF}, {MEMG_OFF}')
    def tkload(kb):
        b = TK + 8*(kb & 3)
        a(f's_add_u32 s{sT+5}, s{sXQ}, {kb*1024}')
        vm.op(f'buffer_load_dwordx4 v[{b}:{b+3}], v{VL16}, {WS}, s{sT+5} offen', f'k{kb}')
        a(f's_add_u32 s{sT+5}, s{sXQ}, {(14+kb)*1024}')
        vm.op(f'buffer_load_dwordx4 v[{b+4}:{b+7}], v{VL16}, {WS}, s{sT+5} offen', f'k{kb}')
    for kb in range(3): tkload(kb)
    for kb in range(14):
        vm.wait(f'k{kb}')
        b = TK + 8*(kb & 3)
        for i in range(7):
            for XY in range(2):
                d = ACC + (i*2+XY)*4
                c = '0' if kb == 0 else f'v[{d}:{d+3}]'
                a(f'v_mfma_f32_16x16x32_bf16 v[{d}:{d+3}], {whalf(i*7 + kb//2, kb & 1)}, v[{b+4*XY}:{b+4*XY+3}], {c}')
            if i == 2 and kb + 3 < 14: tkload(kb+3)
    a('s_nop 7')
    for XY in range(2):
        for i in range(7):
            s_ = ACC + (i*2+XY)*4
            d = TK + XY*14 + (i//2)*4 + (i & 1)*2
            a(f'v_cvt_pk_bf16_f32 v{d}, v{s_}, v{s_+1}')
            a(f'v_cvt_pk_bf16_f32 v{d+1}, v{s_+2}, v{s_+3}')
    KB, K16, SA, KM = ACC, ACC+16, ACC+32, T0
    def keyload(sg):
        kb_ = KB + 8*(sg & 1) if sg < 3 else K16
        step = 4 if sg < 3 else 2
        a(f's_add_u32 s{sT+5}, s{sXP}, {sg*2048}')
        for Tp in range(2):
            d = kb_ + Tp*step
            vm.op(f'buffer_load_dwordx2 v[{d}:{d+1}], v{VKX}, {WS}, s{sT+5} offen offset:{Tp*32}', f's{sg}')
            if sg < 3: vm.op(f'buffer_load_dwordx2 v[{d+2}:{d+3}], v{VKX}, {WS}, s{sT+5} offen offset:{Tp*32+1024}', f's{sg}')
    keyload(0); keyload(1); keyload(3)
    for sg in range(4):
        vm.wait(f's{sg}')
        kb_ = KB + 8*(sg & 1) if sg < 3 else K16
        step = 4 if sg < 3 else 2
        for kt in range(2):
            for XY in range(2):
                d = SA + (kt*2+XY)*4
                c = '0' if sg == 0 else f'v[{d}:{d+3}]'
                ka = kb_ + kt*step; tb = TK + XY*14 + sg*4
                if sg < 3: a(f'v_mfma_f32_16x16x32_bf16 v[{d}:{d+3}], v[{ka}:{ka+3}], v[{tb}:{tb+3}], {c}')
                else: a(f'v_mfma_f32_16x16x16_bf16 v[{d}:{d+3}], v[{ka}:{ka+1}], v[{tb}:{tb+1}], {c}')
        if sg == 0: keyload(2)
    a(f's_mov_b32 s47, 0')
    a(f'{L}_mp:')
    for sg in range(4):
        d = KM + 4*sg
        a(f'buffer_load_dwordx2 v[{d}:{d+1}], v{VKM}, {WS}, s{sMF} offen offset:{sg*512} sc1')
        if sg < 3: a(f'buffer_load_dwordx2 v[{d+2}:{d+3}], v{VKM}, {WS}, s{sMF} offen offset:{sg*512+256} sc1')
    a('s_waitcnt vmcnt(0)')
    vm.q = []
    TQ = KM + 14
    a(f'v_max3_u32 v{TQ}, v{KM}, v{KM+1}, v{KM+2}')
    for r in range(3, 13, 2): a(f'v_max3_u32 v{TQ}, v{TQ}, v{KM+r}, v{KM+r+1}')
    a(f'v_max_u32 v{TQ}, v{TQ}, v{KM+13}')
    a(f'v_cmp_eq_u32 vcc, -1, v{TQ}')
    a(f's_cbranch_vccz {L}_mok')
    a(f's_add_u32 s47, s47, 1')
    a(f's_cmp_gt_u32 s47, {SPIN_MAX}')
    a(f's_cbranch_scc1 {L}_mok')
    a('s_sleep 2')
    a(f's_branch {L}_mp')
    a(f'{L}_mok:')
    for sg in range(4):
        for XY in range(2):
            d = SA + (2*2+XY)*4
            c = '0' if sg == 0 else f'v[{d}:{d+3}]'
            ka = KM + 4*sg; tb = TK + XY*14 + sg*4
            if sg < 3: a(f'v_mfma_f32_16x16x32_bf16 v[{d}:{d+3}], v[{ka}:{ka+3}], v[{tb}:{tb+3}], {c}')
            else: a(f'v_mfma_f32_16x16x16_bf16 v[{d}:{d+3}], v[{ka}:{ka+1}], v[{tb}:{tb+1}], {c}')
    a('s_nop 7')
    for t in range(6):
        a(f'ds_write_b128 v{VSW}, v[{SA+4*t}:{SA+4*t+3}] offset:{t*1024}')
    a(f'v_xor_b32 v{VSW}, 0x8000, v{VSW}')
    a('s_waitcnt lgkmcnt(0)')
    a('s_barrier')
    a(f's_cmp_ge_u32 s{sW}, 2')
    a(f's_cbranch_scc1 {L}_next')
    R = ACC
    for w in range(4):
        for kt in range(3):
            b = R + w*12 + kt*4
            a(f'ds_read_b128 v[{b}:{b+3}], v{VSR} offset:{w*6144 + kt*2048}')
    a('s_waitcnt lgkmcnt(0)')
    for r in range(12):
        a(f'v_add_f32 v{R+r}, v{R+r}, v{R+12+r}')
        a(f'v_add_f32 v{R+24+r}, v{R+24+r}, v{R+36+r}')
    for r in range(12): a(f'v_add_f32 v{R+r}, v{R+r}, v{R+24+r}')
    NEG, MX, SM, TP = T0, T0+1, T0+2, T0+3
    a(f'v_mov_b32 v{NEG}, 0xff800000')
    for Tp in range(2):
        for r in range(4):
            m = sMSK + 2*(Tp*4+r)
            a(f'v_cndmask_b32 v{R+Tp*4+r}, v{NEG}, v{R+Tp*4+r}, s[{m}:{m+1}]')
    a(f'v_max3_f32 v{MX}, v{R}, v{R+1}, v{R+2}')
    for r in range(3, 11, 2): a(f'v_max3_f32 v{MX}, v{MX}, v{R+r}, v{R+r+1}')
    a(f'v_max_f32 v{MX}, v{MX}, v{R+11}')
    rowmax4(a, MX, TP)
    for r in range(12): a(f'v_sub_f32 v{R+r}, v{R+r}, v{MX}')
    for r in range(12): a(f'v_exp_f32 v{R+r}, v{R+r}')
    a('s_nop 0')
    a(f'v_add_f32 v{SM}, v{R+8}, v{R+9}')
    a(f'v_add_f32 v{TP}, v{R+10}, v{R+11}')
    a(f'v_add_f32 v{SM}, v{SM}, v{TP}')
    a(f'v_mov_b32 v{TP}, 0')
    a(f'v_cmp_gt_u32 vcc, 32, v{VL}')
    a('s_nop 1')
    a(f'v_cndmask_b32 v{SM}, v{TP}, v{SM}, vcc')
    for r in range(8): a(f'v_add_f32 v{SM}, v{SM}, v{R+r}')
    rowsum4(a, SM, TP)
    a(f'v_rcp_f32 v{SM}, v{SM}')
    a('s_nop 0')
    for r in range(12): a(f'v_mul_f32 v{R+r}, v{R+r}, v{SM}')
    O = R + 12
    for i in range(6): a(f'v_cvt_pk_bf16_f32 v{O+i}, v{R+2*i}, v{R+2*i+1}')
    a(f's_mul_i32 s{sT+5}, s{sSEG}, {PT_STEP}')
    a(f's_add_u32 s{sT+5}, s{sT+5}, {PT_OFF}')
    a(f's_lshl_b32 s{sT+6}, s{sH}, 1')
    a(f's_add_u32 s{sT+6}, s{sT+6}, s{sW}')
    a(f's_lshl_b32 s{sT+6}, s{sT+6}, 10')
    a(f's_add_u32 s{sT+6}, s{sT+6}, s{sT+5}')
    a(f'buffer_store_dwordx4 v[{O}:{O+3}], v{VL16}, {WS}, s{sT+6} offen {sc}')
    a(f's_lshr_b32 s{sT+6}, s{sH}, 1')
    a(f's_lshl_b32 s{sT+6}, s{sT+6}, 1')
    a(f's_add_u32 s{sT+6}, s{sT+6}, s{sW}')
    a(f's_lshl_b32 s{sT+6}, s{sT+6}, 10')
    a(f's_add_u32 s{sT+6}, s{sT+6}, s{sT+5}')
    a(f's_add_u32 s{sT+6}, s{sT+6}, {PTX_STEP}')
    a(f's_and_b32 s{sT+7}, s{sH}, 1')
    a(f's_lshl_b32 s{sT+7}, s{sT+7}, 2')
    a(f's_add_u32 s{sT+6}, s{sT+6}, s{sT+7}')
    a(f'buffer_store_dword v{O+4}, v{VL16}, {WS}, s{sT+6} offen {sc}')
    a(f'buffer_store_dword v{O+5}, v{VL16}, {WS}, s{sT+6} offen offset:8 {sc}')
    a(f'{L}_next:')
    signal_cnt(a, L+'_sig', FL_PT, sSEG, T0)
    a(f'v_xor_b32 v{VSR}, 0x8000, v{VSR}')
    a(f's_add_u32 s{sSEG}, s{sSEG}, {nrep}')
    a(f's_cmp_lt_u32 s{sSEG}, 64')
    a(f's_cbranch_scc1 {L}_loop')
    a('s_branch L_exit')

def emit_V(a, nrep, L='RV', sc='sc1'):
    XS_ = 8
    a(f's_load_dwordx2 s[{XS_}:{XS_+1}], s[0:1], {KA_X}')
    sJ = sT
    divmod_small(a, sSEG, sJ, sIDX, 14)
    a('s_waitcnt lgkmcnt(0)')
    srd_fin(a, XS_, 1835008)
    a(f'{L}_loop:')
    wait_multi(a, L+'_wm', [(FL_PT, 16), (FL_W, 28), (FL_UF, 28)], sSEG, 4)
    VL, VL16 = 1, 2
    UB, WB, PXB, PMB, ACC = 4, 36, 52, 84, 100
    T0 = 116
    vm = VM(a)
    ld = 'sc1' if sc else ''
    a(f's_mul_i32 s{sT+1}, s{sSEG}, {UF_STEP}')
    a(f's_lshl_b32 s{sT+2}, s{sW}, 2')
    a(f's_mul_i32 s{sT+2}, s{sT+2}, 28')
    a(f's_lshl_b32 s{sT+3}, s{sJ}, 1')
    a(f's_add_u32 s{sT+2}, s{sT+2}, s{sT+3}')
    a(f's_lshl_b32 s{sT+2}, s{sT+2}, 10')
    a(f's_add_u32 s{sT+1}, s{sT+1}, s{sT+2}')
    a(f's_add_u32 s{sT+1}, s{sT+1}, {UF_OFF}')
    for hh in range(4):
        a(f's_add_u32 s{sT+2}, s{sT+1}, {hh*28*1024}')
        for T in range(2):
            b = UB + (hh*2+T)*4
            vm.op(f'buffer_load_dwordx4 v[{b}:{b+3}], v{VL16}, {WS}, s{sT+2} offen offset:{T*1024} {ld}', 'u')
    a(f's_mul_i32 s{sT+1}, s{sSEG}, {W_STEP}')
    a(f's_lshl_b32 s{sT+2}, s{sJ}, 14')
    a(f's_add_u32 s{sT+1}, s{sT+1}, s{sT+2}')
    a(f's_lshl_b32 s{sT+2}, s{sW}, 12')
    a(f's_add_u32 s{sT+1}, s{sT+1}, s{sT+2}')
    a(f's_add_u32 s{sT+1}, s{sT+1}, {W_OFF}')
    for T in range(2):
        for pair in range(2):
            b = WB + (T*2+pair)*4
            vm.op(f'buffer_load_dwordx4 v[{b}:{b+3}], v{VL16}, {WS}, s{sT+1} offen offset:{(T*2+pair)*1024} {ld}', 'u')
    a(f's_mul_i32 s{sT+1}, s{sSEG}, {PT_STEP}')
    a(f's_add_u32 s{sT+1}, s{sT+1}, {PT_OFF}')
    a(f's_lshl_b32 s{sT+2}, s{sW}, 13')
    a(f's_add_u32 s{sT+2}, s{sT+2}, s{sT+1}')
    a(f's_add_u32 s{sT+3}, s{sT+2}, 4096')
    for hh in range(4):
        for XY in range(2):
            b = PXB + (hh*2+XY)*4; off = (hh*2+XY)*1024
            vm.op(f'buffer_load_dwordx4 v[{b}:{b+3}], v{VL16}, {WS}, s{sT+2 if off < 4096 else sT+3} offen offset:{off % 4096} {ld}', 'u')
    a(f's_lshl_b32 s{sT+2}, s{sW}, 12')
    a(f's_add_u32 s{sT+2}, s{sT+2}, s{sT+1}')
    a(f's_add_u32 s{sT+2}, s{sT+2}, {PTX_STEP}')
    for pair in range(2):
        for XY in range(2):
            b = PMB + (pair*2+XY)*4
            vm.op(f'buffer_load_dwordx4 v[{b}:{b+3}], v{VL16}, {WS}, s{sT+2} offen offset:{(pair*2+XY)*1024} {ld}', 'u')
    VROW, VX, VH, VST = T0, T0+1, T0+2, T0+3
    a(f'v_and_b32 v{T0+4}, 15, v{VL}')
    key_of_rho(a, VROW, T0+4, T0+5, None)
    a(f's_and_b32 s{sT+4}, s{sW}, 1')
    a(f's_lshl_b32 s{sT+4}, s{sT+4}, 1')
    a(f'v_add_u32 v{VROW}, s{sT+4}, v{VROW}')
    a(f's_lshr_b32 s{sT+5}, s{sW}, 1')
    a(f's_lshl_b32 s{sT+6}, s{sJ}, 1')
    a(f's_add_u32 s{sT+6}, s{sT+6}, s{sT+5}')
    a(f'v_lshrrev_b32 v{T0+4}, 4, v{VL}')
    a(f'v_mul_u32_u24 v{VX}, 896, v{VROW}')
    a(f'v_lshl_add_u32 v{VX}, v{T0+4}, 3, v{VX}')
    a(f's_lshl_b32 s{sT+7}, s{sT+6}, 5')
    a(f's_mul_i32 s{sT+8}, s{sSEG}, {32*896}')
    a(f's_add_u32 s{sT+7}, s{sT+7}, s{sT+8}')
    XV = T0+6
    vm.op(f'buffer_load_dwordx2 v[{XV}:{XV+1}], v{VX}, s[{XS_}:{XS_+3}], s{sT+7} offen', 'x')
    a(f'v_lshrrev_b32 v{T0+5}, 1, v{T0+4}')
    a(f'v_lshlrev_b32 v{VH}, 9, v{T0+5}')
    a(f'v_lshl_add_u32 v{VH}, v{VROW}, 4, v{VH}')
    a(f'v_and_b32 v{T0+5}, 1, v{T0+4}')
    a(f'v_lshl_add_u32 v{VH}, v{T0+5}, 3, v{VH}')
    vm.wait('u')
    for T in range(2):
        for XY in range(2):
            d = ACC + (T*2+XY)*4
            first = True
            for hh in range(4):
                ua = UB + (hh*2+T)*4; pb = PXB + (hh*2+XY)*4
                a(f'v_mfma_f32_16x16x32_bf16 v[{d}:{d+3}], v[{ua}:{ua+3}], v[{pb}:{pb+3}], {"0" if first else f"v[{d}:{d+3}]"}')
                first = False
            for pair in range(2):
                wa = WB + (T*2+pair)*4; pb = PMB + (pair*2+XY)*4
                a(f'v_mfma_f32_16x16x32_bf16 v[{d}:{d+3}], v[{wa}:{wa+3}], v[{pb}:{pb+3}], v[{d}:{d+3}]')
    a('s_nop 7')
    a(f's_lshl_b32 s{sT+9}, s{sW}, 12')
    a(f'v_add_u32 v4, s{sT+9}, v{VL16}')
    for t in range(4):
        a(f'ds_write_b128 v4, v[{ACC+4*t}:{ACC+4*t+3}] offset:{t*1024}')
    a('s_waitcnt lgkmcnt(0)')
    a('s_barrier')
    a(f's_lshl_b32 s{sT+9}, s{sW}, 10')
    a(f'v_add_u32 v4, s{sT+9}, v{VL16}')
    for w in range(4):
        a(f'ds_read_b128 v[{8+4*w}:{8+4*w+3}], v4 offset:{w*4096}')
    a('s_waitcnt lgkmcnt(0)')
    for r in range(4):
        a(f'v_add_f32 v{8+r}, v{8+r}, v{12+r}')
        a(f'v_add_f32 v{16+r}, v{16+r}, v{20+r}')
    for r in range(4): a(f'v_add_f32 v{8+r}, v{8+r}, v{16+r}')
    vm.wait('x')
    a(f'v_lshlrev_b32 v24, 16, v{XV}')
    a(f'v_and_b32 v25, 0xffff0000, v{XV}')
    a(f'v_lshlrev_b32 v26, 16, v{XV+1}')
    a(f'v_and_b32 v27, 0xffff0000, v{XV+1}')
    for r in range(4): a(f'v_add_f32 v{8+r}, v{8+r}, v{24+r}')
    a('v_cvt_pk_bf16_f32 v28, v8, v9')
    a('v_cvt_pk_bf16_f32 v29, v10, v11')
    a(f's_mul_i32 s{sT+9}, s{sSEG}, {HF_STEP}')
    a(f's_lshl_b32 s{sT+10}, s{sT+6}, 10')
    a(f's_add_u32 s{sT+9}, s{sT+9}, s{sT+10}')
    a(f's_add_u32 s{sT+9}, s{sT+9}, {HF_OFF}')
    a(f'buffer_store_dwordx2 v[28:29], v{VH}, {WS}, s{sT+9} offen {sc}')
    a('v_lshlrev_b32 v24, 16, v28')
    a('v_and_b32 v25, 0xffff0000, v28')
    a('v_lshlrev_b32 v26, 16, v29')
    a('v_and_b32 v27, 0xffff0000, v29')
    a('v_add_f32 v30, v24, v25')
    a('v_add_f32 v31, v26, v27')
    a('v_add_f32 v30, v30, v31')
    a('v_mul_f32 v31, v24, v24')
    for r in range(1, 4): a(f'v_fmac_f32 v31, v{24+r}, v{24+r}')
    rowsum4(a, 30, 32); rowsum4(a, 31, 32)
    a(f'v_lshlrev_b32 v32, 8, v{VROW}')
    a(f's_mul_i32 s{sT+9}, s{sSEG}, {ST_STEP}')
    a(f's_lshl_b32 s{sT+10}, s{sT+6}, 3')
    a(f's_add_u32 s{sT+9}, s{sT+9}, s{sT+10}')
    a(f's_add_u32 s{sT+9}, s{sT+9}, {ST_OFF}')
    a('v_cmp_gt_u32 vcc, 16, v1')
    a(f's_and_saveexec_b64 s[{sT+12}:{sT+13}], vcc')
    a(f'buffer_store_dwordx2 v[30:31], v32, {WS}, s{sT+9} offen {sc}')
    a(f's_mov_b64 exec, s[{sT+12}:{sT+13}]')
    signal_cnt(a, L+'_sig', FL_H, sSEG, 4)
    a(f's_add_u32 s{sSEG}, s{sSEG}, {nrep}')
    a(f's_cmp_lt_u32 s{sSEG}, 64')
    a(f's_cbranch_scc1 {L}_loop')
    a('s_branch L_exit')


def emit_F1(a, nrep, L='RF', sc='sc1'):
    WG_, WU_ = 8, 12
    a(f's_load_dwordx2 s[{WG_}:{WG_+1}], s[0:1], {KA_WG}')
    a(f's_load_dwordx2 s[{WU_}:{WU_+1}], s[0:1], {KA_WU}')
    sFG = sT
    divmod_small(a, sSEG, sFG, sIDX, 14)
    a('s_waitcnt lgkmcnt(0)')
    srd_fin(a, WG_, 1605632); srd_fin(a, WU_, 1605632)
    VL, VL16 = 1, 2
    ld = 'sc1' if sc else ''
    RAW = 8
    VG, VW, VR = 3, 4, 5
    a(f'v_lshrrev_b32 v{VG}, 2, v{VL}')
    a(f'v_mul_u32_u24 v{VG}, 3584, v{VG}')
    a(f'v_and_b32 v6, 3, v{VL}')
    a(f'v_lshl_add_u32 v{VG}, v6, 4, v{VG}')
    a(f's_mul_i32 s{sT+1}, s{sW}, 28672')
    a(f'v_add_u32 v{VW}, s{sT+1}, v{VL16}')
    a(f'v_lshrrev_b32 v6, 4, v{VL}')
    a(f'v_lshlrev_b32 v6, 3, v6')
    a(f'v_bfe_u32 v7, v{VL}, 2, 2')
    a(f'v_add_u32 v6, v6, v7')
    a(f'v_lshlrev_b32 v6, 6, v6')
    a(f'v_and_b32 v7, 3, v{VL}')
    a(f'v_lshl_add_u32 v6, v7, 3, v6')
    a(f'v_add_u32 v{VR}, s{sT+1}, v6')
    a(f's_lshl_b32 s{sT+2}, s{sFG}, 8')
    a(f's_lshl_b32 s{sT+3}, s{sW}, 6')
    a(f's_add_u32 s{sT+2}, s{sT+2}, s{sT+3}')
    for m, srdm in enumerate((WG_, WU_)):
        for kb in range(14):
            for half in range(2):
                a(f's_add_u32 s{sT+3}, s{sT+2}, {(32*kb + 16*half)*3584}')
                b = RAW + (kb*2+half)*4
                a(f'buffer_load_dwordx4 v[{b}:{b+3}], v{VG}, s[{srdm}:{srdm+3}], s{sT+3} offen')
        a('s_waitcnt vmcnt(0)')
        for kb in range(14):
            for half in range(2):
                b = RAW + (kb*2+half)*4
                a(f'ds_write_b128 v{VW}, v[{b}:{b+3}] offset:{kb*2048 + half*1024}')
        a('s_waitcnt lgkmcnt(0)')
        for tt in range(2):
            for kb in range(14):
                d = ((m*2+tt)*14+kb)*4
                a(f'ds_read_b64_tr_b16 a[{d}:{d+1}], v{VR} offset:{kb*2048 + tt*32}')
                a(f'ds_read_b64_tr_b16 a[{d+2}:{d+3}], v{VR} offset:{kb*2048 + tt*32 + 256}')
            a('s_waitcnt lgkmcnt(0)')
    TK, STG, ACC, CS, STAT, OUT = 4, 36, 64, 96, 112, 116
    ONE = 8
    for r in range(4): a(f'v_mov_b32 v{ONE+r}, 0x3f803f80')
    a('s_nop 1')
    for t in range(4):
        for kb in range(14):
            d = CS + 4*t; wb = (t*14+kb)*4
            a(f'v_mfma_f32_16x16x32_bf16 v[{d}:{d+3}], a[{wb}:{wb+3}], v[{ONE}:{ONE+3}], {"0" if kb == 0 else f"v[{d}:{d+3}]"}')
    a('s_barrier')
    VLW, VLR, VHB, VST = 124, 125, 126, 127
    SR = 128
    T0 = 160
    a(f's_mul_i32 s{sT+1}, s{sW}, 7168')
    a(f'v_add_u32 v{VLW}, s{sT+1}, v{VL16}')
    a(f'v_mov_b32 v{VLR}, v{VL16}')
    a(f'v_lshrrev_b32 v{T0}, 4, v{VL}')
    a(f'v_and_b32 v{T0+1}, 15, v{VL}')
    a(f'v_lshlrev_b32 v{VHB}, 9, v{T0}')
    a(f'v_lshl_add_u32 v{VHB}, v{T0+1}, 4, v{VHB}')
    a(f'v_lshlrev_b32 v{VST}, 8, v{T0+1}')
    a(f'v_lshl_add_u32 v{VST}, v{T0}, 3, v{VST}')
    sFD = 64
    for i in range(7):
        a(f's_mul_i32 s{sT+1}, s{sW}, 7')
        a(f's_add_u32 s{sT+1}, s{sT+1}, {i}')
        a(f's_cmp_ge_u32 s{sT+1}, 14')
        a(f's_cselect_b32 s{sT+2}, 1, 0')
        a(f's_mul_i32 s{sT+3}, s{sT+2}, 14')
        a(f's_sub_u32 s{sT+1}, s{sT+1}, s{sT+3}')
        a(f's_lshl_b32 s{sT+1}, s{sT+1}, 11')
        a(f's_lshl_b32 s{sT+2}, s{sT+2}, 8')
        a(f's_add_u32 s{sFD+i}, s{sT+1}, s{sT+2}')
    def stage_loads():
        a(f's_mul_i32 s{sT+4}, s{sSEG}, {HF_STEP}')
        a(f's_add_u32 s{sT+4}, s{sT+4}, {HF_OFF}')
        for i in range(7):
            a(f's_add_u32 s{sT+5}, s{sT+4}, s{sFD+i}')
            a(f'buffer_load_dwordx4 v[{STG+4*i}:{STG+4*i+3}], v{VHB}, {WS}, s{sT+5} offen {ld}')
    def stat_loads():
        a(f's_mul_i32 s{sT+4}, s{sSEG}, {ST_STEP}')
        a(f's_add_u32 s{sT+4}, s{sT+4}, {ST_OFF}')
        a(f's_add_u32 s{sT+5}, s{sT+4}, 4096')
        for T in range(2):
            for i in range(7):
                b = SR + (T*7+i)*2
                a(f'buffer_load_dwordx2 v[{b}:{b+1}], v{VST}, {WS}, s{sT+4 if T == 0 else sT+5} offen offset:{i*32} {ld}')
    def stage_write():
        for i in range(7):
            a(f'ds_write_b128 v{VLW}, v[{STG+4*i}:{STG+4*i+3}] offset:{i*1024}')
        a(f'v_xor_b32 v{VLW}, 0x8000, v{VLW}')
    a(f'{L}_loop:')
    sCUR = sT+6
    wait_cnt(a, L+'_wh', FL_H, sSEG, 14, T0)
    stat_loads()
    stage_loads()
    a('s_waitcnt vmcnt(0)')
    stage_write()
    a('s_waitcnt lgkmcnt(0)')
    a('s_barrier')
    a(f's_mov_b32 s{sCUR}, s{sSEG}')
    lg = LG(a)
    def tkread(kb):
        b = TK + 8*(kb & 3)
        lg.op(f'ds_read_b128 v[{b}:{b+3}], v{VLR} offset:{kb*1024}', f'k{kb}')
        lg.op(f'ds_read_b128 v[{b+4}:{b+7}], v{VLR} offset:{(14+kb)*1024}', f'k{kb}')
    for kb in range(3): tkread(kb)
    for kb in range(14):
        lg.wait(f'k{kb}')
        b = TK + 8*(kb & 3)
        for t in range(4):
            for T in range(2):
                d = ACC + (t*2+T)*4
                c = '0' if kb == 0 else f'v[{d}:{d+3}]'
                wb = (t*14+kb)*4
                a(f'v_mfma_f32_16x16x32_bf16 v[{d}:{d+3}], a[{wb}:{wb+3}], v[{b+4*T}:{b+4*T+3}], {c}')
            if t == 1 and kb + 3 < 14: tkread(kb+3)
    a(f'v_xor_b32 v{VLR}, 0x8000, v{VLR}')
    for T in range(2):
        b = SR + T*14
        for i in range(1, 7):
            a(f'v_add_f32 v{b}, v{b}, v{b+2*i}')
            a(f'v_add_f32 v{b+1}, v{b+1}, v{b+2*i+1}')
        rowsum4(a, b, T0); rowsum4(a, b+1, T0)
        a(f'v_mul_f32 v{b}, {hex(f32(1/448))}, v{b}')
        a(f'v_mul_f32 v{b+1}, {hex(f32(1/448))}, v{b+1}')
        a(f'v_fma_f32 v{b+1}, -v{b}, v{b}, v{b+1}')
        a(f'v_max_f32 v{b+1}, 0, v{b+1}')
        a(f'v_add_f32 v{b+1}, {hex(f32(1e-5))}, v{b+1}')
        a(f'v_rsq_f32 v{STAT+2*T}, v{b+1}')
        a('s_nop 0')
        a(f'v_mul_f32 v{STAT+2*T+1}, v{STAT+2*T}, v{b}')
    a(f's_mul_i32 s{sT+7}, s{sCUR}, {ACT_STEP}')
    a(f's_lshl_b32 s{sT+8}, s{sFG}, 2')
    a(f's_add_u32 s{sT+8}, s{sT+8}, s{sW}')
    a(f's_lshl_b32 s{sT+8}, s{sT+8}, 10')
    a(f's_add_u32 s{sT+7}, s{sT+7}, s{sT+8}')
    a(f's_add_u32 s{sT+7}, s{sT+7}, {ACT_OFF}')
    E = T0+2
    for T in range(2):
        R_, RM = STAT+2*T, STAT+2*T+1
        for tt in range(2):
            g = ACC + (tt*2+T)*4; u = ACC + ((2+tt)*2+T)*4
            for r in range(4):
                a(f'v_mul_f32 v{E+r}, v{RM}, v{CS+4*tt+r}')
                a(f'v_fma_f32 v{g+r}, v{R_}, v{g+r}, -v{E+r}')
                a(f'v_mul_f32 v{E+r}, v{RM}, v{CS+4*(2+tt)+r}')
                a(f'v_fma_f32 v{u+r}, v{R_}, v{u+r}, -v{E+r}')
            for r in range(4): a(f'v_mul_f32 v{E+r}, {hex(f32(-LOG2E))}, v{g+r}')
            for r in range(4): a(f'v_exp_f32 v{E+r}, v{E+r}')
            a('s_nop 0')
            for r in range(4): a(f'v_add_f32 v{E+r}, 1.0, v{E+r}')
            for r in range(4): a(f'v_rcp_f32 v{E+r}, v{E+r}')
            for r in range(4): a(f'v_mul_f32 v{g+r}, v{g+r}, v{u+r}')
            for r in range(4): a(f'v_mul_f32 v{g+r}, v{g+r}, v{E+r}')
            o = T0 + 8 + 4*T + 2*tt
            a(f'v_cvt_pk_bf16_f32 v{o}, v{g}, v{g+1}')
            a(f'v_cvt_pk_bf16_f32 v{o+1}, v{g+2}, v{g+3}')
        o = T0 + 8 + 4*T
        if T == 1: a(f's_add_u32 s{sT+7}, s{sT+7}, {56*1024}')
        a(f'buffer_store_dwordx4 v[{o}:{o+3}], v{VL16}, {WS}, s{sT+7} offen {sc}')
    signal_cnt(a, L+'_sig', FL_ACT, sCUR, T0)
    a(f's_add_u32 s{sSEG}, s{sSEG}, {nrep}')
    a(f's_cmp_lt_u32 s{sSEG}, 64')
    a(f's_cbranch_scc1 {L}_loop')
    a('s_branch L_exit')

def emit_F2(a, nrep, L='RG', sc='sc1'):
    WD_, OUT_ = 8, 12
    a(f's_load_dwordx2 s[{WD_}:{WD_+1}], s[0:1], {KA_WD}')
    a(f's_load_dwordx2 s[{OUT_}:{OUT_+1}], s[0:1], {KA_OUT}')
    sCG = sT
    divmod_small(a, sSEG, sCG, sIDX, 7)
    a('s_waitcnt lgkmcnt(0)')
    srd_fin(a, WD_, 1605632); srd_fin(a, OUT_, 1835008)
    VL, VL16 = 1, 2
    ld = 'sc1' if sc else ''
    RAW = 8
    VG, VW, VR = 3, 4, 5
    a(f'v_lshrrev_b32 v{VG}, 3, v{VL}')
    a(f'v_mul_u32_u24 v{VG}, 896, v{VG}')
    a(f'v_and_b32 v6, 7, v{VL}')
    a(f'v_lshl_add_u32 v{VG}, v6, 4, v{VG}')
    a(f's_mul_i32 s{sT+1}, s{sW}, 28672')
    a(f'v_add_u32 v{VW}, s{sT+1}, v{VL16}')
    a(f'v_lshrrev_b32 v6, 4, v{VL}')
    a(f'v_lshlrev_b32 v6, 2, v6')
    a(f'v_bfe_u32 v7, v{VL}, 2, 2')
    a(f'v_add_u32 v6, v6, v7')
    a(f'v_lshlrev_b32 v6, 7, v6')
    a(f'v_and_b32 v7, 3, v{VL}')
    a(f'v_lshl_add_u32 v6, v7, 3, v6')
    a(f'v_add_u32 v{VR}, s{sT+1}, v6')
    a(f's_mul_i32 s{sT+2}, s{sW}, {14*32*896}')
    a(f's_lshl_b32 s{sT+3}, s{sCG}, 7')
    a(f's_add_u32 s{sT+2}, s{sT+2}, s{sT+3}')
    for bt in range(2):
        for k7 in range(7):
            kf = bt*7 + k7
            for q4 in range(4):
                a(f's_add_u32 s{sT+3}, s{sT+2}, {(32*kf + 8*q4)*896}')
                b = RAW + (k7*4+q4)*4
                a(f'buffer_load_dwordx4 v[{b}:{b+3}], v{VG}, s[{WD_}:{WD_+3}], s{sT+3} offen')
        a('s_waitcnt vmcnt(0)')
        for k7 in range(7):
            for q4 in range(4):
                b = RAW + (k7*4+q4)*4
                a(f'ds_write_b128 v{VW}, v[{b}:{b+3}] offset:{k7*4096 + q4*1024}')
        a('s_waitcnt lgkmcnt(0)')
        for i in range(4):
            for k7 in range(7):
                d = (i*14 + bt*7 + k7)*4
                a(f'ds_read_b64_tr_b16 a[{d}:{d+1}], v{VR} offset:{k7*4096 + i*32}')
                a(f'ds_read_b64_tr_b16 a[{d+2}:{d+3}], v{VR} offset:{k7*4096 + i*32 + 2048}')
            a('s_waitcnt lgkmcnt(0)')
    a('s_barrier')
    TK, ACC, T0 = 4, 36, 72
    VRW, VRR, VHO, VOO = 68, 69, 70, 71
    a(f's_lshl_b32 s{sT+1}, s{sW}, 13')
    a(f'v_add_u32 v{VRW}, s{sT+1}, v{VL16}')
    a(f's_lshl_b32 s{sT+1}, s{sW}, 11')
    a(f'v_add_u32 v{VRR}, s{sT+1}, v{VL16}')
    a(f'v_and_b32 v{T0}, 15, v{VL}')
    a(f'v_lshrrev_b32 v{T0+1}, 4, v{VL}')
    a(f'v_lshrrev_b32 v{T0+2}, 1, v{T0+1}')
    a(f'v_lshlrev_b32 v{VHO}, 9, v{T0+2}')
    a(f'v_lshl_add_u32 v{VHO}, v{T0}, 4, v{VHO}')
    a(f'v_and_b32 v{T0+2}, 1, v{T0+1}')
    a(f'v_lshl_add_u32 v{VHO}, v{T0+2}, 3, v{VHO}')
    a(f'v_mul_u32_u24 v{VOO}, 896, v{T0}')
    a(f'v_lshl_add_u32 v{VOO}, v{T0+1}, 3, v{VOO}')
    sCT = sT+1
    a(f's_lshl_b32 s{sCT}, s{sCG}, 2')
    a(f's_add_u32 s{sCT}, s{sCT}, s{sW}')
    a(f'{L}_loop:')
    wait_cnt(a, L+'_wa', FL_ACT, sSEG, 14, T0)
    vm = VM(a)
    sAC = sT+2
    a(f's_mul_i32 s{sAC}, s{sSEG}, {ACT_STEP}')
    a(f's_mul_i32 s{sT+3}, s{sW}, {14*1024}')
    a(f's_add_u32 s{sAC}, s{sAC}, s{sT+3}')
    a(f's_add_u32 s{sAC}, s{sAC}, {ACT_OFF}')
    def tkload(kf):
        b = TK + 8*(kf & 3)
        a(f's_add_u32 s{sT+3}, s{sAC}, {kf*1024}')
        vm.op(f'buffer_load_dwordx4 v[{b}:{b+3}], v{VL16}, {WS}, s{sT+3} offen {ld}', f'k{kf}')
        a(f's_add_u32 s{sT+3}, s{sAC}, {(56+kf)*1024}')
        vm.op(f'buffer_load_dwordx4 v[{b+4}:{b+7}], v{VL16}, {WS}, s{sT+3} offen {ld}', f'k{kf}')
    for kf in range(3): tkload(kf)
    HV = T0 + 4
    a(f's_mul_i32 s{sT+4}, s{sSEG}, {HF_STEP}')
    a(f's_lshl_b32 s{sT+5}, s{sCT}, 10')
    a(f's_add_u32 s{sT+4}, s{sT+4}, s{sT+5}')
    a(f's_add_u32 s{sT+4}, s{sT+4}, {HF_OFF}')
    for T in range(2):
        vm.op(f'buffer_load_dwordx2 v[{HV+2*T}:{HV+2*T+1}], v{VHO}, {WS}, s{sT+4} offen offset:{T*256} {ld}', 'h')
    for kf in range(14):
        vm.wait(f'k{kf}')
        b = TK + 8*(kf & 3)
        for i in range(4):
            for T in range(2):
                d = ACC + (i*2+T)*4
                c = '0' if kf == 0 else f'v[{d}:{d+3}]'
                wb = (i*14+kf)*4
                a(f'v_mfma_f32_16x16x32_bf16 v[{d}:{d+3}], a[{wb}:{wb+3}], v[{b+4*T}:{b+4*T+3}], {c}')
            if i == 1 and kf + 3 < 14: tkload(kf+3)
    a('s_nop 7')
    for t in range(8):
        a(f'ds_write_b128 v{VRW}, v[{ACC+4*t}:{ACC+4*t+3}] offset:{t*1024}')
    a(f'v_xor_b32 v{VRW}, 0x8000, v{VRW}')
    a('s_waitcnt lgkmcnt(0)')
    a('s_barrier')
    for T in range(2):
        for w in range(4):
            b = ACC + (T*4+w)*4
            a(f'ds_read_b128 v[{b}:{b+3}], v{VRR} offset:{w*8192 + T*1024}')
    a(f'v_xor_b32 v{VRR}, 0x8000, v{VRR}')
    a('s_waitcnt lgkmcnt(0)')
    vm.waitall()
    a(f's_mul_i32 s{sT+4}, s{sSEG}, {32*896}')
    a(f's_lshl_b32 s{sT+5}, s{sCT}, 5')
    a(f's_add_u32 s{sT+4}, s{sT+4}, s{sT+5}')
    X = T0 + 8
    for T in range(2):
        b = ACC + T*16
        for r in range(4):
            a(f'v_add_f32 v{b+r}, v{b+r}, v{b+4+r}')
            a(f'v_add_f32 v{b+8+r}, v{b+8+r}, v{b+12+r}')
        for r in range(4): a(f'v_add_f32 v{b+r}, v{b+r}, v{b+8+r}')
        a(f'v_lshlrev_b32 v{X}, 16, v{HV+2*T}')
        a(f'v_and_b32 v{X+1}, 0xffff0000, v{HV+2*T}')
        a(f'v_lshlrev_b32 v{X+2}, 16, v{HV+2*T+1}')
        a(f'v_and_b32 v{X+3}, 0xffff0000, v{HV+2*T+1}')
        for r in range(4): a(f'v_add_f32 v{b+r}, v{b+r}, v{X+r}')
        a(f'v_cvt_pk_bf16_f32 v{X+4+2*T}, v{b}, v{b+1}')
        a(f'v_cvt_pk_bf16_f32 v{X+5+2*T}, v{b+2}, v{b+3}')
        if T == 1: a(f's_add_u32 s{sT+4}, s{sT+4}, {16*896}')
        a(f'buffer_store_dwordx2 v[{X+4+2*T}:{X+5+2*T}], v{VOO}, s[{OUT_}:{OUT_+3}], s{sT+4} offen')
    a(f's_add_u32 s{sSEG}, s{sSEG}, {nrep}')
    a(f's_cmp_lt_u32 s{sSEG}, 64')
    a(f's_cbranch_scc1 {L}_loop')
    a('s_waitcnt vmcnt(0)')
    a('s_branch L_exit')


def emit_W(a, nrep, L='RW'):
    VL, VL16 = 1, 2
    sTIX = sT+2
    FR, ACC, VA, T0 = 4, 64, 80, 84
    sWO = 64
    for i in range(4):
        a(f's_add_u32 s{sT+3}, s{sTIX}, {i}')
        divmod_small(a, sT+4, sT+5, sT+3, 28)
        a(f's_lshr_b32 s{sT+6}, s{sT+5}, 1')
        a(f's_lshl_b32 s{sWO+i}, s{sT+6}, 14')
        a(f's_lshr_b32 s{sT+6}, s{sT+4}, 2')
        a(f's_lshl_b32 s{sT+6}, s{sT+6}, 12')
        a(f's_add_u32 s{sWO+i}, s{sWO+i}, s{sT+6}')
        a(f's_and_b32 s{sT+6}, s{sT+5}, 1')
        a(f's_lshl_b32 s{sT+6}, s{sT+6}, 1')
        a(f's_bfe_u32 s{sT+7}, s{sT+4}, 0x10001')
        a(f's_add_u32 s{sT+6}, s{sT+6}, s{sT+7}')
        a(f's_lshl_b32 s{sT+6}, s{sT+6}, 10')
        a(f's_add_u32 s{sWO+i}, s{sWO+i}, s{sT+6}')
        a(f's_and_b32 s{sT+6}, s{sT+4}, 1')
        a(f's_lshl_b32 s{sT+6}, s{sT+6}, 2')
        a(f's_add_u32 s{sWO+i}, s{sWO+i}, s{sT+6}')
    a(f'v_lshrrev_b32 v{T0}, 5, v{VL}')
    a(f'v_lshlrev_b32 v{VA}, 8, v{T0}')
    a(f'v_and_b32 v{T0}, 7, v{VL}')
    a(f'v_lshl_add_u32 v{VA}, v{T0}, 4, v{VA}')
    a(f'v_bfe_u32 v{T0}, v{VL}, 4, 1')
    a(f'v_lshl_add_u32 v{VA}, v{T0}, 3, v{VA}')
    a(f'v_and_b32 v{T0}, 8, v{VL}')
    a(f'v_lshlrev_b32 v{T0}, 26, v{T0}')
    a(f'v_add_u32 v{VA}, v{VA}, v{T0}')
    a(f's_mov_b32 s{sSEG}, s{sT+1}')
    a(f'{L}_loop:')
    a(f's_mul_i32 s{sT+3}, s{sSEG}, {MEMF_STEP}')
    a(f's_add_u32 s{sT+3}, s{sT+3}, {MEMG_OFF}')
    a(f's_add_u32 s{sT+4}, s{sT+3}, 4096')
    a('s_mov_b32 s47, 0')
    a(f'{L}_mp:')
    for kb in range(14):
        off = kb*512
        so = sT+3 if off < 4096 else sT+4
        b = FR + 4*kb
        a(f'buffer_load_dwordx2 v[{b}:{b+1}], v{VA}, {WS}, s{so} offen offset:{off % 4096} sc1')
        a(f'buffer_load_dwordx2 v[{b+2}:{b+3}], v{VA}, {WS}, s{so} offen offset:{off % 4096 + 128} sc1')
    a('s_waitcnt vmcnt(0)')
    a(f'v_max3_u32 v{T0}, v{FR}, v{FR+1}, v{FR+2}')
    for r in range(3, 55, 2): a(f'v_max3_u32 v{T0}, v{T0}, v{FR+r}, v{FR+r+1}')
    a(f'v_max_u32 v{T0}, v{T0}, v{FR+55}')
    a(f'v_cmp_eq_u32 vcc, -1, v{T0}')
    a(f's_cbranch_vccz {L}_mok')
    a('s_add_u32 s47, s47, 1')
    a(f's_cmp_gt_u32 s47, {SPIN_MAX}')
    a(f's_cbranch_scc1 {L}_mok')
    a('s_sleep 3')
    a(f's_branch {L}_mp')
    a(f'{L}_mok:')
    for kb in range(14): a(f'v_swap_b32 v{FR+4*kb+1}, v{FR+4*kb+2}')
    a('s_nop 1')
    for kb in range(14):
        for i in range(4):
            d = ACC + 4*i; wb = (i*14+kb)*4; b = FR + 4*kb
            a(f'v_mfma_f32_16x16x32_bf16 v[{d}:{d+3}], v[{b}:{b+3}], a[{wb}:{wb+3}], {"0" if kb == 0 else f"v[{d}:{d+3}]"}')
    a(f's_mul_i32 s{sT+3}, s{sSEG}, {W_STEP}')
    a(f's_add_u32 s{sT+3}, s{sT+3}, {W_OFF}')
    a('s_nop 7')
    for i in range(4):
        d = ACC + 4*i; o = T0 + 2*i
        a(f'v_cvt_pk_bf16_f32 v{o}, v{d}, v{d+1}')
        a(f'v_cvt_pk_bf16_f32 v{o+1}, v{d+2}, v{d+3}')
        a(f's_add_u32 s{sT+4}, s{sT+3}, s{sWO+i}')
        a(f'buffer_store_dword v{o}, v{VL16}, {WS}, s{sT+4} offen sc1')
        a(f'buffer_store_dword v{o+1}, v{VL16}, {WS}, s{sT+4} offen offset:8 sc1')
    signal_cnt(a, L+'_sig', FL_W, sSEG, T0+8)
    a(f's_add_u32 s{sSEG}, s{sSEG}, {nrep}')
    a(f's_cmp_lt_u32 s{sSEG}, 64')
    a(f's_cbranch_scc1 {L}_loop')
    a('s_branch L_exit')
```

```python
from common import *

WSR = 4
WS = f's[{WSR}:{WSR+3}]'
sW, sSEG, sSTR, sT = 24, 25, 26, 28

class LG:
    def __init__(self, a): self.a = a; self.q = []
    def op(self, text, tag=None): self.a(text); self.q.append(tag)
    def wait(self, tag):
        idx = max(i for i, t in enumerate(self.q) if t == tag)
        n = len(self.q) - 1 - idx
        self.a(f's_waitcnt lgkmcnt({min(n, 15)})')
        self.q = self.q[idx+1:] if n <= 15 else self.q[len(self.q)-15:]
    def waitall(self): self.a('s_waitcnt lgkmcnt(0)'); self.q = []
class VM:
    def __init__(self, a): self.a = a; self.q = []
    def op(self, text, tag=None): self.a(text); self.q.append(tag)
    def wait(self, tag):
        idxs = [i for i, t in enumerate(self.q) if t == tag]
        if not idxs: return
        idx = max(idxs); n = len(self.q) - 1 - idx
        self.a(f's_waitcnt vmcnt({min(n, 63)})')
        self.q = self.q[idx+1:]
    def waitall(self): self.a('s_waitcnt vmcnt(0)'); self.q = []


SPIN_MAX = 20000
sIDX = 22
class Fz:
    exit = 'L_exit'
def wait_cnt(a, L, base, sseg, target, vt):
    a(f's_cmp_lg_u32 s{sW}, 0')
    a(f's_cbranch_scc1 {L}_w')
    if sseg is None:
        a(f'v_mov_b32 v{vt}, {base}')
    else:
        a(f's_lshl_b32 s46, s{sseg}, 7')
        a(f's_add_u32 s46, s46, {base}')
        a(f'v_mov_b32 v{vt}, s46')
    a(f's_mov_b32 s47, 0')
    a(f'{L}_p:')
    a(f'buffer_load_dword v{vt+1}, v{vt}, {WS}, 0 offen sc1')
    a('s_waitcnt vmcnt(0)')
    a(f'v_readfirstlane_b32 s46, v{vt+1}')
    a(f's_add_u32 s47, s47, 1')
    a('s_nop 1')
    a(f's_cmp_ge_u32 s46, {target}')
    a(f's_cbranch_scc1 {L}_w')
    a(f's_cmp_gt_u32 s47, {SPIN_MAX}')
    a(f's_cbranch_scc1 {L}_w')
    a('s_sleep 1')
    a(f's_branch {L}_p')
    a(f'{L}_w:')
    a('s_barrier')
def signal_cnt(a, L, base, sseg, vt):
    a('s_waitcnt vmcnt(0)')
    a('s_barrier')
    a(f's_cmp_lg_u32 s{sW}, 0')
    a(f's_cbranch_scc1 {L}_s')
    if sseg is None:
        a(f'v_mov_b32 v{vt}, {base}')
    else:
        a(f's_lshl_b32 s46, s{sseg}, 7')
        a(f's_add_u32 s46, s46, {base}')
        a(f'v_mov_b32 v{vt}, s46')
    a(f'v_mov_b32 v{vt+1}, 1')
    a('s_mov_b64 exec, 1')
    a(f'buffer_atomic_add v{vt+1}, v{vt}, {WS}, 0 offen')
    a('s_mov_b64 exec, -1')
    a(f'{L}_s:')

def wait_multi(a, L, items, sseg, vt, sleep=1):
    a(f's_cmp_lg_u32 s{sW}, 0')
    a(f's_cbranch_scc1 {L}_w')
    a(f's_lshl_b32 s46, s{sseg}, 7')
    a(f'v_mov_b32 v{vt}, {items[0][0]}')
    a(f'v_mov_b32 v{vt+1}, {items[0][1]}')
    for i, (base, tgt) in enumerate(items[1:], 1):
        a(f'v_cmp_eq_u32 vcc, {i*16}, v2')
        a(f'v_mov_b32 v{vt+2}, {base}')
        a('s_nop 0')
        a(f'v_cndmask_b32 v{vt}, v{vt}, v{vt+2}, vcc')
        a(f'v_mov_b32 v{vt+2}, {tgt}')
        a(f'v_cndmask_b32 v{vt+1}, v{vt+1}, v{vt+2}, vcc')
    a(f'v_add_u32 v{vt}, s46, v{vt}')
    a('s_mov_b32 s47, 0')
    a(f'{L}_p:')
    a(f'buffer_load_dword v{vt+2}, v{vt}, {WS}, 0 offen sc1')
    a('s_waitcnt vmcnt(0)')
    a(f'v_cmp_lt_u32 vcc, v{vt+2}, v{vt+1}')
    a(f's_cbranch_vccz {L}_w')
    a('s_add_u32 s47, s47, 1')
    a(f's_cmp_gt_u32 s47, {SPIN_MAX}')
    a(f's_cbranch_scc1 {L}_w')
    if sleep: a(f's_sleep {sleep}')
    a(f's_branch {L}_p')
    a(f'{L}_w:')
    a('s_barrier')
def sig_only(a, L, base, sseg, vt):
    a(f's_cmp_lg_u32 s{sW}, 0')
    a(f's_cbranch_scc1 {L}_s')
    a(f's_lshl_b32 s46, s{sseg}, 7')
    a(f's_add_u32 s46, s46, {base}')
    a(f'v_mov_b32 v{vt}, s46')
    a(f'v_mov_b32 v{vt+1}, 1')
    a('s_mov_b64 exec, 1')
    a(f'buffer_atomic_add v{vt+1}, v{vt}, {WS}, 0 offen')
    a('s_mov_b64 exec, -1')
    a(f'{L}_s:')

def role_prologue(a, L, ngrid):
    a(f'''
s_cmp_ge_u32 s2, {ngrid}
s_cbranch_scc1 {L}_exit
s_load_dwordx2 s[{WSR}:{WSR+1}], s[0:1], {KA_WS}
v_lshrrev_b32 v1, 6, v0
s_nop 0
v_readfirstlane_b32 s{sW}, v1
v_and_b32 v1, 63, v0
v_lshlrev_b32 v2, 4, v1
s_waitcnt lgkmcnt(0)''')
    srd_fin(a, WSR, WS_BYTES)

def divmod_small(a, sq, sr_, sx, d):
    m = (65536 + d - 1) // d
    for x in range(1024): assert (x*m) >> 16 == x // d, (x, d)
    a(f's_mul_i32 s{sq}, s{sx}, {m}')
    a(f's_lshr_b32 s{sq}, s{sq}, 16')
    a(f's_mul_i32 s{sr_}, s{sq}, {d}')
    a(f's_sub_u32 s{sr_}, s{sx}, s{sr_}')

def emit_U(a, nrep, L='RU', sc='', fz=None):
    if fz is None: role_prologue(a, L, 28*nrep)
    sCG, sREP = sT, sT+1
    divmod_small(a, sREP, sCG, 2 if fz is None else sIDX, 28)
    a(f's_mov_b32 s{sSEG}, s{sREP}')
    VL, VL16 = 1, 2
    TK, STG, ACC, OUT = 4, 36, 64, 96
    VLW, VLR = 104, 105
    sTIX = sT+2
    a(f's_lshl_b32 s{sTIX}, s{sCG}, 4')
    a(f's_lshl_b32 s{sT+3}, s{sW}, 2')
    a(f's_add_u32 s{sTIX}, s{sTIX}, s{sT+3}')
    a(f's_mul_i32 s{sT+3}, s{sTIX}, 14336')
    a(f's_add_u32 s{sT+3}, s{sT+3}, {BF_OFF}')
    n = 0
    for i in range(4):
        for kb in range(14):
            off = (i*14+kb)*1024
            if off % 4096 == 0 and off > 0: a(f's_add_u32 s{sT+3}, s{sT+3}, 4096')
            b = (i*14+kb)*4
            a(f'buffer_load_dwordx4 a[{b}:{b+3}], v{VL16}, {WS}, s{sT+3} offen offset:{off % 4096}')
            n += 1
            if n % 32 == 0: a('s_waitcnt vmcnt(16)')
    a(f's_mul_i32 s{sT+3}, s{sW}, 7168')
    a(f'v_add_u32 v{VLW}, s{sT+3}, v{VL16}')
    a(f'v_mov_b32 v{VLR}, v{VL16}')
    sSRC = sT+4
    def stage_loads():
        a(f's_mul_i32 s{sSRC}, s{sSEG}, {XNQ_STEP}')
        a(f's_mul_i32 s{sT+5}, s{sW}, 7168')
        a(f's_add_u32 s{sSRC}, s{sSRC}, s{sT+5}')
        a(f's_add_u32 s{sSRC}, s{sSRC}, {XNQ_OFF}')
        a(f's_add_u32 s{sT+5}, s{sSRC}, 4096')
        for i in range(7):
            so = sSRC if i < 4 else sT+5
            a(f'buffer_load_dwordx4 v[{STG+4*i}:{STG+4*i+3}], v{VL16}, {WS}, s{so} offen offset:{(i*1024) % 4096}')
    def stage_write():
        for i in range(7):
            a(f'ds_write_b128 v{VLW}, v[{STG+4*i}:{STG+4*i+3}] offset:{i*1024}')
        a(f'v_xor_b32 v{VLW}, 0x8000, v{VLW}')
    stage_loads()
    a('s_waitcnt vmcnt(0)')
    stage_write()
    a('s_waitcnt lgkmcnt(0)')
    a('s_barrier')
    a(f'{L}_loop:')
    sCUR = sT+6
    a(f's_mov_b32 s{sCUR}, s{sSEG}')
    a(f's_add_u32 s{sSEG}, s{sSEG}, {nrep}')
    a(f's_cmp_ge_u32 s{sSEG}, 64')
    a(f's_cbranch_scc1 {L}_nopf')
    stage_loads()
    a(f'{L}_nopf:')
    lg = LG(a)
    def tkread(kb):
        b = TK + 8*(kb & 3)
        lg.op(f'ds_read_b128 v[{b}:{b+3}], v{VLR} offset:{kb*1024}', f'k{kb}')
        lg.op(f'ds_read_b128 v[{b+4}:{b+7}], v{VLR} offset:{(14+kb)*1024}', f'k{kb}')
    for kb in range(3): tkread(kb)
    for kb in range(14):
        lg.wait(f'k{kb}')
        b = TK + 8*(kb & 3)
        for i in range(4):
            for XY in range(2):
                d = ACC + (i*2+XY)*4
                c = '0' if kb == 0 else f'v[{d}:{d+3}]'
                wb = (i*14+kb)*4
                a(f'v_mfma_f32_16x16x32_bf16 v[{d}:{d+3}], v[{b+4*XY}:{b+4*XY+3}], a[{wb}:{wb+3}], {c}')
            if i == 1 and kb + 3 < 14: tkread(kb+3)
    a(f'v_xor_b32 v{VLR}, 0x8000, v{VLR}')
    a(f's_mul_i32 s{sT+7}, s{sCUR}, {UF_STEP}')
    a(f's_lshl_b32 s{sT+8}, s{sTIX}, 10')
    a(f's_add_u32 s{sT+7}, s{sT+7}, s{sT+8}')
    a(f's_add_u32 s{sT+7}, s{sT+7}, {UF_OFF}')
    a('s_nop 7')
    for i in range(4):
        x, y = ACC + i*8, ACC + i*8 + 4
        o = OUT + 4*(i & 1)
        a(f'v_cvt_pk_bf16_f32 v{o}, v{x}, v{x+1}')
        a(f'v_cvt_pk_bf16_f32 v{o+1}, v{x+2}, v{x+3}')
        a(f'v_cvt_pk_bf16_f32 v{o+2}, v{y}, v{y+1}')
        a(f'v_cvt_pk_bf16_f32 v{o+3}, v{y+2}, v{y+3}')
        a(f'buffer_store_dwordx4 v[{o}:{o+3}], v{VL16}, {WS}, s{sT+7} offen offset:{i*1024} {sc}')
        if i == 1: a('s_nop 2')
    a(f's_cmp_ge_u32 s{sSEG}, 64')
    a(f's_cbranch_scc1 {L}_done')
    a('s_waitcnt vmcnt(4)')
    stage_write()
    a('s_waitcnt lgkmcnt(0)')
    a('s_barrier')
    if fz is not None:
        a(f's_cmp_lt_u32 s{sCUR}, {nrep}')
        a(f's_cbranch_scc1 {L}_loop')
        a(f's_sub_u32 s{sT+9}, s{sCUR}, {nrep}')
        sig_only(a, L+'_sg1', FL_UF, sT+9, OUT)
    a(f's_branch {L}_loop')
    a(f'{L}_done:')
    if fz is not None:
        a('s_waitcnt vmcnt(0)')
        a('s_barrier')
        a(f's_sub_u32 s{sT+9}, s{sCUR}, {nrep}')
        sig_only(a, L+'_sg2', FL_UF, sT+9, OUT)
        sig_only(a, L+'_sg3', FL_UF, sCUR, OUT)
        return
    a('s_waitcnt vmcnt(0)')
    a(f'{L}_exit:')
    a('s_endpgm')


def wbase(f): return ('a', 8*f) if f < 32 else ('v', 120+8*(f-32))
def whalf(f, rh):
    t, b = wbase(f); b += 4*rh; return f'{t}[{b}:{b+3}]'

def emit_X(a, nrep, L='RX', sc=''):
    role_prologue(a, L, 16*nrep)
    sH, sREP = sT, sT+1
    a(f's_and_b32 s{sH}, s2, 15')
    a(f's_lshr_b32 s{sSEG}, s2, 4')
    VL, VL16 = 1, 2
    TK, ACC = 4, 36
    VKX, VKM, VSW, VSR, VQ = 92, 93, 94, 95, 96
    T0 = 100
    sMSK = 48
    a(f's_mul_i32 s{sT+2}, s{sH}, 28')
    a(f's_mul_i32 s{sT+3}, s{sW}, 7')
    a(f's_add_u32 s{sT+2}, s{sT+2}, s{sT+3}')
    a(f's_mul_i32 s{sT+2}, s{sT+2}, {7*2048}')
    a(f's_add_u32 s{sT+2}, s{sT+2}, {AF_OFF}')
    n = 0
    for f in range(49):
        for rh in range(2):
            off = f*2048 + rh*1024
            if off % 4096 == 0 and off > 0: a(f's_add_u32 s{sT+2}, s{sT+2}, 4096')
            a(f'buffer_load_dwordx4 {whalf(f, rh)}, v{VL16}, {WS}, s{sT+2} offen offset:{off % 4096}')
            n += 1
            if n % 32 == 0: a('s_waitcnt vmcnt(16)')
    RHO, G, KEY = T0, T0+1, T0+2
    a(f'v_and_b32 v{RHO}, 15, v{VL}')
    a(f'v_lshrrev_b32 v{G}, 4, v{VL}')
    key_of_rho(a, KEY, RHO, T0+3, None)
    a(f's_mul_i32 s{sT+2}, s{sW}, {14*512}')
    a(f'v_lshrrev_b32 v{T0+3}, 1, v{G}')
    a(f'v_lshlrev_b32 v{T0+4}, 9, v{T0+3}')
    a(f'v_lshl_add_u32 v{T0+4}, v{KEY}, 4, v{T0+4}')
    a(f'v_and_b32 v{T0+5}, 1, v{G}')
    a(f'v_lshl_add_u32 v{T0+4}, v{T0+5}, 3, v{T0+4}')
    a(f'v_add_u32 v{VKX}, s{sT+2}, v{T0+4}')
    a(f's_mul_i32 s{sT+2}, s{sW}, {14*128}')
    a(f'v_lshlrev_b32 v{T0+4}, 7, v{T0+3}')
    a(f'v_and_b32 v{T0+6}, 7, v{RHO}')
    a(f'v_lshl_add_u32 v{T0+4}, v{T0+6}, 4, v{T0+4}')
    a(f'v_lshl_add_u32 v{T0+4}, v{T0+5}, 3, v{T0+4}')
    a(f'v_add_u32 v{VKM}, s{sT+2}, v{T0+4}')
    a(f's_mul_i32 s{sT+2}, s{sW}, 6144')
    a(f'v_add_u32 v{VSW}, s{sT+2}, v{VL16}')
    a(f's_and_b32 s{sT+2}, s{sW}, 1')
    a(f's_lshl_b32 s{sT+2}, s{sT+2}, 10')
    a(f'v_add_u32 v{VSR}, s{sT+2}, v{VL16}')
    a(f's_and_b32 s{sT+2}, s{sW}, 1')
    a(f's_lshl_b32 s{sT+2}, s{sT+2}, 1')
    a(f'v_add_u32 v{VQ}, s{sT+2}, v{KEY}')
    a(f'v_lshrrev_b32 v{T0+3}, 1, v{G}')
    a(f'v_lshlrev_b32 v{T0+3}, 4, v{T0+3}')
    a(f'v_and_b32 v{T0+4}, 1, v{G}')
    a(f'v_lshl_add_u32 v{T0+3}, v{T0+4}, 2, v{T0+3}')
    for Tp in range(2):
        for r in range(4):
            k = (r & 1) + 8*(r >> 1) + 2*Tp
            a(f'v_add_u32 v{T0+4}, {k}, v{T0+3}')
            m = sMSK + 2*(Tp*4+r)
            a(f'v_cmp_le_u32 s[{m}:{m+1}], v{T0+4}, v{VQ}')
    a('s_waitcnt vmcnt(0)')
    a(f'{L}_loop:')
    vm = VM(a)
    sXQ, sXP, sMF = sT+2, sT+3, sT+4
    a(f's_mul_i32 s{sXQ}, s{sSEG}, {XNQ_STEP}')
    a(f's_add_u32 s{sXQ}, s{sXQ}, {XNQ_OFF}')
    a(f's_mul_i32 s{sXP}, s{sSEG}, {XNP_STEP}')
    a(f's_add_u32 s{sXP}, s{sXP}, {XNP_OFF}')
    a(f's_mul_i32 s{sMF}, s{sSEG}, {MEMF_STEP}')
    a(f's_add_u32 s{sMF}, s{sMF}, {MEMF_OFF}')
    def tkload(kb):
        b = TK + 8*(kb & 3)
        a(f's_add_u32 s{sT+5}, s{sXQ}, {kb*1024}')
        vm.op(f'buffer_load_dwordx4 v[{b}:{b+3}], v{VL16}, {WS}, s{sT+5} offen', f'k{kb}')
        a(f's_add_u32 s{sT+5}, s{sXQ}, {(14+kb)*1024}')
        vm.op(f'buffer_load_dwordx4 v[{b+4}:{b+7}], v{VL16}, {WS}, s{sT+5} offen', f'k{kb}')
    for kb in range(3): tkload(kb)
    for kb in range(14):
        vm.wait(f'k{kb}')
        b = TK + 8*(kb & 3)
        for i in range(7):
            for XY in range(2):
                d = ACC + (i*2+XY)*4
                c = '0' if kb == 0 else f'v[{d}:{d+3}]'
                a(f'v_mfma_f32_16x16x32_bf16 v[{d}:{d+3}], {whalf(i*7 + kb//2, kb & 1)}, v[{b+4*XY}:{b+4*XY+3}], {c}')
            if i == 2 and kb + 3 < 14: tkload(kb+3)
    a('s_nop 7')
    for XY in range(2):
        for i in range(7):
            s_ = ACC + (i*2+XY)*4
            d = TK + XY*14 + (i//2)*4 + (i & 1)*2
            a(f'v_cvt_pk_bf16_f32 v{d}, v{s_}, v{s_+1}')
            a(f'v_cvt_pk_bf16_f32 v{d+1}, v{s_+2}, v{s_+3}')
    KB, K16, SA = ACC, ACC+24, ACC+32
    def keyload(sg):
        kb_ = KB + 12*(sg & 1) if sg < 3 else K16
        step = 4 if sg < 3 else 2
        a(f's_add_u32 s{sT+5}, s{sXP}, {sg*2048}')
        for Tp in range(2):
            d = kb_ + Tp*step
            vm.op(f'buffer_load_dwordx2 v[{d}:{d+1}], v{VKX}, {WS}, s{sT+5} offen offset:{Tp*32}', f's{sg}')
            if sg < 3: vm.op(f'buffer_load_dwordx2 v[{d+2}:{d+3}], v{VKX}, {WS}, s{sT+5} offen offset:{Tp*32+1024}', f's{sg}')
        d = kb_ + 2*step
        vm.op(f'buffer_load_dwordx2 v[{d}:{d+1}], v{VKM}, {WS}, s{sMF} offen offset:{sg*512} {"sc1" if sc else ""}', f's{sg}')
        if sg < 3: vm.op(f'buffer_load_dwordx2 v[{d+2}:{d+3}], v{VKM}, {WS}, s{sMF} offen offset:{sg*512+256} {"sc1" if sc else ""}', f's{sg}')
    keyload(0); keyload(1); keyload(3)
    for sg in range(4):
        vm.wait(f's{sg}')
        kb_ = KB + 12*(sg & 1) if sg < 3 else K16
        step = 4 if sg < 3 else 2
        for kt in range(3):
            for XY in range(2):
                d = SA + (kt*2+XY)*4
                c = '0' if sg == 0 else f'v[{d}:{d+3}]'
                ka = kb_ + kt*step; tb = TK + XY*14 + sg*4
                if sg < 3: a(f'v_mfma_f32_16x16x32_bf16 v[{d}:{d+3}], v[{ka}:{ka+3}], v[{tb}:{tb+3}], {c}')
                else: a(f'v_mfma_f32_16x16x16_bf16 v[{d}:{d+3}], v[{ka}:{ka+1}], v[{tb}:{tb+1}], {c}')
        if sg == 0: keyload(2)
    a('s_nop 7')
    for t in range(6):
        a(f'ds_write_b128 v{VSW}, v[{SA+4*t}:{SA+4*t+3}] offset:{t*1024}')
    a(f'v_xor_b32 v{VSW}, 0x8000, v{VSW}')
    a('s_waitcnt lgkmcnt(0)')
    a('s_barrier')
    a(f's_cmp_ge_u32 s{sW}, 2')
    a(f's_cbranch_scc1 {L}_next')
    R = ACC
    for w in range(4):
        for kt in range(3):
            b = R + w*12 + kt*4
            a(f'ds_read_b128 v[{b}:{b+3}], v{VSR} offset:{w*6144 + kt*2048}')
    a('s_waitcnt lgkmcnt(0)')
    for r in range(12):
        a(f'v_add_f32 v{R+r}, v{R+r}, v{R+12+r}')
        a(f'v_add_f32 v{R+24+r}, v{R+24+r}, v{R+36+r}')
    for r in range(12): a(f'v_add_f32 v{R+r}, v{R+r}, v{R+24+r}')
    NEG, MX, SM, TP = T0, T0+1, T0+2, T0+3
    a(f'v_mov_b32 v{NEG}, 0xff800000')
    for Tp in range(2):
        for r in range(4):
            m = sMSK + 2*(Tp*4+r)
            a(f'v_cndmask_b32 v{R+Tp*4+r}, v{NEG}, v{R+Tp*4+r}, s[{m}:{m+1}]')
    a(f'v_max3_f32 v{MX}, v{R}, v{R+1}, v{R+2}')
    for r in range(3, 11, 2): a(f'v_max3_f32 v{MX}, v{MX}, v{R+r}, v{R+r+1}')
    a(f'v_max_f32 v{MX}, v{MX}, v{R+11}')
    rowmax4(a, MX, TP)
    for r in range(12): a(f'v_sub_f32 v{R+r}, v{R+r}, v{MX}')
    for r in range(12): a(f'v_exp_f32 v{R+r}, v{R+r}')
    a('s_nop 0')
    a(f'v_add_f32 v{SM}, v{R+8}, v{R+9}')
    a(f'v_add_f32 v{TP}, v{R+10}, v{R+11}')
    a(f'v_add_f32 v{SM}, v{SM}, v{TP}')
    a(f'v_mov_b32 v{TP}, 0')
    a(f'v_cmp_gt_u32 vcc, 32, v{VL}')
    a('s_nop 1')
    a(f'v_cndmask_b32 v{SM}, v{TP}, v{SM}, vcc')
    for r in range(8): a(f'v_add_f32 v{SM}, v{SM}, v{R+r}')
    rowsum4(a, SM, TP)
    a(f'v_rcp_f32 v{SM}, v{SM}')
    a('s_nop 0')
    for r in range(12): a(f'v_mul_f32 v{R+r}, v{R+r}, v{SM}')
    O = R + 12
    for i in range(6): a(f'v_cvt_pk_bf16_f32 v{O+i}, v{R+2*i}, v{R+2*i+1}')
    a(f's_mul_i32 s{sT+5}, s{sSEG}, {PT_STEP}')
    a(f's_add_u32 s{sT+5}, s{sT+5}, {PT_OFF}')
    a(f's_lshl_b32 s{sT+6}, s{sH}, 1')
    a(f's_add_u32 s{sT+6}, s{sT+6}, s{sW}')
    a(f's_lshl_b32 s{sT+6}, s{sT+6}, 10')
    a(f's_add_u32 s{sT+6}, s{sT+6}, s{sT+5}')
    a(f'buffer_store_dwordx4 v[{O}:{O+3}], v{VL16}, {WS}, s{sT+6} offen {sc}')
    a(f's_lshr_b32 s{sT+6}, s{sH}, 1')
    a(f's_lshl_b32 s{sT+6}, s{sT+6}, 1')
    a(f's_add_u32 s{sT+6}, s{sT+6}, s{sW}')
    a(f's_lshl_b32 s{sT+6}, s{sT+6}, 10')
    a(f's_add_u32 s{sT+6}, s{sT+6}, s{sT+5}')
    a(f's_add_u32 s{sT+6}, s{sT+6}, {PTX_STEP}')
    a(f's_and_b32 s{sT+7}, s{sH}, 1')
    a(f's_lshl_b32 s{sT+7}, s{sT+7}, 2')
    a(f's_add_u32 s{sT+6}, s{sT+6}, s{sT+7}')
    a(f'buffer_store_dword v{O+4}, v{VL16}, {WS}, s{sT+6} offen {sc}')
    a(f'buffer_store_dword v{O+5}, v{VL16}, {WS}, s{sT+6} offen offset:8 {sc}')
    a(f'{L}_next:')
    a(f'v_xor_b32 v{VSR}, 0x8000, v{VSR}')
    a(f's_add_u32 s{sSEG}, s{sSEG}, {nrep}')
    a(f's_cmp_lt_u32 s{sSEG}, 64')
    a(f's_cbranch_scc1 {L}_loop')
    a('s_waitcnt vmcnt(0)')
    a(f'{L}_exit:')
    a('s_endpgm')

def emit_V(a, L='RV', sc=''):
    role_prologue(a, L, 64*14)
    XS_ = 8
    a(f's_load_dwordx2 s[{XS_}:{XS_+1}], s[0:1], {KA_X}')
    sJ = sT
    divmod_small(a, sSEG, sJ, 2, 14)
    a('s_waitcnt lgkmcnt(0)')
    srd_fin(a, XS_, 1835008)
    VL, VL16 = 1, 2
    UB, WB, PXB, PMB, ACC = 4, 36, 52, 84, 100
    T0 = 116
    vm = VM(a)
    ld = 'sc1' if sc else ''
    a(f's_mul_i32 s{sT+1}, s{sSEG}, {UF_STEP}')
    a(f's_lshl_b32 s{sT+2}, s{sW}, 2')
    a(f's_mul_i32 s{sT+2}, s{sT+2}, 28')
    a(f's_lshl_b32 s{sT+3}, s{sJ}, 1')
    a(f's_add_u32 s{sT+2}, s{sT+2}, s{sT+3}')
    a(f's_lshl_b32 s{sT+2}, s{sT+2}, 10')
    a(f's_add_u32 s{sT+1}, s{sT+1}, s{sT+2}')
    a(f's_add_u32 s{sT+1}, s{sT+1}, {UF_OFF}')
    for hh in range(4):
        a(f's_add_u32 s{sT+2}, s{sT+1}, {hh*28*1024}')
        for T in range(2):
            b = UB + (hh*2+T)*4
            vm.op(f'buffer_load_dwordx4 v[{b}:{b+3}], v{VL16}, {WS}, s{sT+2} offen offset:{T*1024} {ld}', 'u')
    a(f's_mul_i32 s{sT+1}, s{sSEG}, {W_STEP}')
    a(f's_lshl_b32 s{sT+2}, s{sJ}, 14')
    a(f's_add_u32 s{sT+1}, s{sT+1}, s{sT+2}')
    a(f's_lshl_b32 s{sT+2}, s{sW}, 12')
    a(f's_add_u32 s{sT+1}, s{sT+1}, s{sT+2}')
    a(f's_add_u32 s{sT+1}, s{sT+1}, {W_OFF}')
    for T in range(2):
        for pair in range(2):
            b = WB + (T*2+pair)*4
            vm.op(f'buffer_load_dwordx4 v[{b}:{b+3}], v{VL16}, {WS}, s{sT+1} offen offset:{(T*2+pair)*1024} {ld}', 'u')
    a(f's_mul_i32 s{sT+1}, s{sSEG}, {PT_STEP}')
    a(f's_add_u32 s{sT+1}, s{sT+1}, {PT_OFF}')
    a(f's_lshl_b32 s{sT+2}, s{sW}, 13')
    a(f's_add_u32 s{sT+2}, s{sT+2}, s{sT+1}')
    a(f's_add_u32 s{sT+3}, s{sT+2}, 4096')
    for hh in range(4):
        for XY in range(2):
            b = PXB + (hh*2+XY)*4; off = (hh*2+XY)*1024
            vm.op(f'buffer_load_dwordx4 v[{b}:{b+3}], v{VL16}, {WS}, s{sT+2 if off < 4096 else sT+3} offen offset:{off % 4096} {ld}', 'u')
    a(f's_lshl_b32 s{sT+2}, s{sW}, 12')
    a(f's_add_u32 s{sT+2}, s{sT+2}, s{sT+1}')
    a(f's_add_u32 s{sT+2}, s{sT+2}, {PTX_STEP}')
    for pair in range(2):
        for XY in range(2):
            b = PMB + (pair*2+XY)*4
            vm.op(f'buffer_load_dwordx4 v[{b}:{b+3}], v{VL16}, {WS}, s{sT+2} offen offset:{(pair*2+XY)*1024} {ld}', 'u')
    VROW, VX, VH, VST = T0, T0+1, T0+2, T0+3
    a(f'v_and_b32 v{T0+4}, 15, v{VL}')
    key_of_rho(a, VROW, T0+4, T0+5, None)
    a(f's_and_b32 s{sT+4}, s{sW}, 1')
    a(f's_lshl_b32 s{sT+4}, s{sT+4}, 1')
    a(f'v_add_u32 v{VROW}, s{sT+4}, v{VROW}')
    a(f's_lshr_b32 s{sT+5}, s{sW}, 1')
    a(f's_lshl_b32 s{sT+6}, s{sJ}, 1')
    a(f's_add_u32 s{sT+6}, s{sT+6}, s{sT+5}')
    a(f'v_lshrrev_b32 v{T0+4}, 4, v{VL}')
    a(f'v_mul_u32_u24 v{VX}, 896, v{VROW}')
    a(f'v_lshl_add_u32 v{VX}, v{T0+4}, 3, v{VX}')
    a(f's_lshl_b32 s{sT+7}, s{sT+6}, 5')
    a(f's_mul_i32 s{sT+8}, s{sSEG}, {32*896}')
    a(f's_add_u32 s{sT+7}, s{sT+7}, s{sT+8}')
    XV = T0+6
    vm.op(f'buffer_load_dwordx2 v[{XV}:{XV+1}], v{VX}, s[{XS_}:{XS_+3}], s{sT+7} offen', 'x')
    a(f'v_lshrrev_b32 v{T0+5}, 1, v{T0+4}')
    a(f'v_lshlrev_b32 v{VH}, 9, v{T0+5}')
    a(f'v_lshl_add_u32 v{VH}, v{VROW}, 4, v{VH}')
    a(f'v_and_b32 v{T0+5}, 1, v{T0+4}')
    a(f'v_lshl_add_u32 v{VH}, v{T0+5}, 3, v{VH}')
    vm.wait('u')
    for T in range(2):
        for XY in range(2):
            d = ACC + (T*2+XY)*4
            first = True
            for hh in range(4):
                ua = UB + (hh*2+T)*4; pb = PXB + (hh*2+XY)*4
                a(f'v_mfma_f32_16x16x32_bf16 v[{d}:{d+3}], v[{ua}:{ua+3}], v[{pb}:{pb+3}], {"0" if first else f"v[{d}:{d+3}]"}')
                first = False
            for pair in range(2):
                wa = WB + (T*2+pair)*4; pb = PMB + (pair*2+XY)*4
                a(f'v_mfma_f32_16x16x32_bf16 v[{d}:{d+3}], v[{wa}:{wa+3}], v[{pb}:{pb+3}], v[{d}:{d+3}]')
    a('s_nop 7')
    a(f's_lshl_b32 s{sT+9}, s{sW}, 12')
    a(f'v_add_u32 v4, s{sT+9}, v{VL16}')
    for t in range(4):
        a(f'ds_write_b128 v4, v[{ACC+4*t}:{ACC+4*t+3}] offset:{t*1024}')
    a('s_waitcnt lgkmcnt(0)')
    a('s_barrier')
    a(f's_lshl_b32 s{sT+9}, s{sW}, 10')
    a(f'v_add_u32 v4, s{sT+9}, v{VL16}')
    for w in range(4):
        a(f'ds_read_b128 v[{8+4*w}:{8+4*w+3}], v4 offset:{w*4096}')
    a('s_waitcnt lgkmcnt(0)')
    for r in range(4):
        a(f'v_add_f32 v{8+r}, v{8+r}, v{12+r}')
        a(f'v_add_f32 v{16+r}, v{16+r}, v{20+r}')
    for r in range(4): a(f'v_add_f32 v{8+r}, v{8+r}, v{16+r}')
    vm.wait('x')
    a(f'v_lshlrev_b32 v24, 16, v{XV}')
    a(f'v_and_b32 v25, 0xffff0000, v{XV}')
    a(f'v_lshlrev_b32 v26, 16, v{XV+1}')
    a(f'v_and_b32 v27, 0xffff0000, v{XV+1}')
    for r in range(4): a(f'v_add_f32 v{8+r}, v{8+r}, v{24+r}')
    a('v_cvt_pk_bf16_f32 v28, v8, v9')
    a('v_cvt_pk_bf16_f32 v29, v10, v11')
    a(f's_mul_i32 s{sT+9}, s{sSEG}, {HF_STEP}')
    a(f's_lshl_b32 s{sT+10}, s{sT+6}, 10')
    a(f's_add_u32 s{sT+9}, s{sT+9}, s{sT+10}')
    a(f's_add_u32 s{sT+9}, s{sT+9}, {HF_OFF}')
    a(f'buffer_store_dwordx2 v[28:29], v{VH}, {WS}, s{sT+9} offen {sc}')
    a('v_lshlrev_b32 v24, 16, v28')
    a('v_and_b32 v25, 0xffff0000, v28')
    a('v_lshlrev_b32 v26, 16, v29')
    a('v_and_b32 v27, 0xffff0000, v29')
    a('v_add_f32 v30, v24, v25')
    a('v_add_f32 v31, v26, v27')
    a('v_add_f32 v30, v30, v31')
    a('v_mul_f32 v31, v24, v24')
    for r in range(1, 4): a(f'v_fmac_f32 v31, v{24+r}, v{24+r}')
    rowsum4(a, 30, 32); rowsum4(a, 31, 32)
    a(f'v_lshlrev_b32 v32, 8, v{VROW}')
    a(f's_mul_i32 s{sT+9}, s{sSEG}, {ST_STEP}')
    a(f's_lshl_b32 s{sT+10}, s{sT+6}, 3')
    a(f's_add_u32 s{sT+9}, s{sT+9}, s{sT+10}')
    a(f's_add_u32 s{sT+9}, s{sT+9}, {ST_OFF}')
    a('v_cmp_gt_u32 vcc, 16, v1')
    a(f's_and_saveexec_b64 s[{sT+12}:{sT+13}], vcc')
    a(f'buffer_store_dwordx2 v[30:31], v32, {WS}, s{sT+9} offen {sc}')
    a(f's_mov_b64 exec, s[{sT+12}:{sT+13}]')
    a('s_waitcnt vmcnt(0)')
    a(f'{L}_exit:')
    a('s_endpgm')


def emit_F1(a, nrep, L='RF', sc=''):
    role_prologue(a, L, 14*nrep)
    WG_, WU_ = 8, 12
    a(f's_load_dwordx2 s[{WG_}:{WG_+1}], s[0:1], {KA_WG}')
    a(f's_load_dwordx2 s[{WU_}:{WU_+1}], s[0:1], {KA_WU}')
    sFG = sT
    divmod_small(a, sSEG, sFG, 2, 14)
    a('s_waitcnt lgkmcnt(0)')
    srd_fin(a, WG_, 1605632); srd_fin(a, WU_, 1605632)
    VL, VL16 = 1, 2
    ld = 'sc1' if sc else ''
    RAW = 8
    VG, VW, VR = 3, 4, 5
    a(f'v_lshrrev_b32 v{VG}, 2, v{VL}')
    a(f'v_mul_u32_u24 v{VG}, 3584, v{VG}')
    a(f'v_and_b32 v6, 3, v{VL}')
    a(f'v_lshl_add_u32 v{VG}, v6, 4, v{VG}')
    a(f's_mul_i32 s{sT+1}, s{sW}, 28672')
    a(f'v_add_u32 v{VW}, s{sT+1}, v{VL16}')
    a(f'v_lshrrev_b32 v6, 4, v{VL}')
    a(f'v_lshlrev_b32 v6, 3, v6')
    a(f'v_bfe_u32 v7, v{VL}, 2, 2')
    a(f'v_add_u32 v6, v6, v7')
    a(f'v_lshlrev_b32 v6, 6, v6')
    a(f'v_and_b32 v7, 3, v{VL}')
    a(f'v_lshl_add_u32 v6, v7, 3, v6')
    a(f'v_add_u32 v{VR}, s{sT+1}, v6')
    a(f's_lshl_b32 s{sT+2}, s{sFG}, 8')
    a(f's_lshl_b32 s{sT+3}, s{sW}, 6')
    a(f's_add_u32 s{sT+2}, s{sT+2}, s{sT+3}')
    for m, srdm in enumerate((WG_, WU_)):
        for kb in range(14):
            for half in range(2):
                a(f's_add_u32 s{sT+3}, s{sT+2}, {(32*kb + 16*half)*3584}')
                b = RAW + (kb*2+half)*4
                a(f'buffer_load_dwordx4 v[{b}:{b+3}], v{VG}, s[{srdm}:{srdm+3}], s{sT+3} offen')
        a('s_waitcnt vmcnt(0)')
        for kb in range(14):
            for half in range(2):
                b = RAW + (kb*2+half)*4
                a(f'ds_write_b128 v{VW}, v[{b}:{b+3}] offset:{kb*2048 + half*1024}')
        a('s_waitcnt lgkmcnt(0)')
        for tt in range(2):
            for kb in range(14):
                d = ((m*2+tt)*14+kb)*4
                a(f'ds_read_b64_tr_b16 a[{d}:{d+1}], v{VR} offset:{kb*2048 + tt*32}')
                a(f'ds_read_b64_tr_b16 a[{d+2}:{d+3}], v{VR} offset:{kb*2048 + tt*32 + 256}')
            a('s_waitcnt lgkmcnt(0)')
    TK, STG, ACC, CS, STAT, OUT = 4, 36, 64, 96, 112, 116
    ONE = 8
    for r in range(4): a(f'v_mov_b32 v{ONE+r}, 0x3f803f80')
    a('s_nop 1')
    for t in range(4):
        for kb in range(14):
            d = CS + 4*t; wb = (t*14+kb)*4
            a(f'v_mfma_f32_16x16x32_bf16 v[{d}:{d+3}], a[{wb}:{wb+3}], v[{ONE}:{ONE+3}], {"0" if kb == 0 else f"v[{d}:{d+3}]"}')
    a('s_barrier')
    VLW, VLR, VHB, VST = 124, 125, 126, 127
    SR = 128
    T0 = 160
    a(f's_mul_i32 s{sT+1}, s{sW}, 7168')
    a(f'v_add_u32 v{VLW}, s{sT+1}, v{VL16}')
    a(f'v_mov_b32 v{VLR}, v{VL16}')
    a(f'v_lshrrev_b32 v{T0}, 4, v{VL}')
    a(f'v_and_b32 v{T0+1}, 15, v{VL}')
    a(f'v_lshlrev_b32 v{VHB}, 9, v{T0}')
    a(f'v_lshl_add_u32 v{VHB}, v{T0+1}, 4, v{VHB}')
    a(f'v_lshlrev_b32 v{VST}, 8, v{T0+1}')
    a(f'v_lshl_add_u32 v{VST}, v{T0}, 3, v{VST}')
    sFD = 64
    for i in range(7):
        a(f's_mul_i32 s{sT+1}, s{sW}, 7')
        a(f's_add_u32 s{sT+1}, s{sT+1}, {i}')
        a(f's_cmp_ge_u32 s{sT+1}, 14')
        a(f's_cselect_b32 s{sT+2}, 1, 0')
        a(f's_mul_i32 s{sT+3}, s{sT+2}, 14')
        a(f's_sub_u32 s{sT+1}, s{sT+1}, s{sT+3}')
        a(f's_lshl_b32 s{sT+1}, s{sT+1}, 11')
        a(f's_lshl_b32 s{sT+2}, s{sT+2}, 8')
        a(f's_add_u32 s{sFD+i}, s{sT+1}, s{sT+2}')
    def stage_loads():
        a(f's_mul_i32 s{sT+4}, s{sSEG}, {HF_STEP}')
        a(f's_add_u32 s{sT+4}, s{sT+4}, {HF_OFF}')
        for i in range(7):
            a(f's_add_u32 s{sT+5}, s{sT+4}, s{sFD+i}')
            a(f'buffer_load_dwordx4 v[{STG+4*i}:{STG+4*i+3}], v{VHB}, {WS}, s{sT+5} offen {ld}')
    def stat_loads():
        a(f's_mul_i32 s{sT+4}, s{sSEG}, {ST_STEP}')
        a(f's_add_u32 s{sT+4}, s{sT+4}, {ST_OFF}')
        a(f's_add_u32 s{sT+5}, s{sT+4}, 4096')
        for T in range(2):
            for i in range(7):
                b = SR + (T*7+i)*2
                a(f'buffer_load_dwordx2 v[{b}:{b+1}], v{VST}, {WS}, s{sT+4 if T == 0 else sT+5} offen offset:{i*32} {ld}')
    def stage_write():
        for i in range(7):
            a(f'ds_write_b128 v{VLW}, v[{STG+4*i}:{STG+4*i+3}] offset:{i*1024}')
        a(f'v_xor_b32 v{VLW}, 0x8000, v{VLW}')
    stage_loads()
    a('s_waitcnt vmcnt(0)')
    stage_write()
    a('s_waitcnt lgkmcnt(0)')
    a('s_barrier')
    a(f'{L}_loop:')
    sCUR = sT+6
    stat_loads()
    a(f's_mov_b32 s{sCUR}, s{sSEG}')
    a(f's_add_u32 s{sSEG}, s{sSEG}, {nrep}')
    a(f's_cmp_ge_u32 s{sSEG}, 64')
    a(f's_cbranch_scc1 {L}_nopf')
    stage_loads()
    a(f'{L}_nopf:')
    lg = LG(a)
    def tkread(kb):
        b = TK + 8*(kb & 3)
        lg.op(f'ds_read_b128 v[{b}:{b+3}], v{VLR} offset:{kb*1024}', f'k{kb}')
        lg.op(f'ds_read_b128 v[{b+4}:{b+7}], v{VLR} offset:{(14+kb)*1024}', f'k{kb}')
    for kb in range(3): tkread(kb)
    for kb in range(14):
        lg.wait(f'k{kb}')
        b = TK + 8*(kb & 3)
        for t in range(4):
            for T in range(2):
                d = ACC + (t*2+T)*4
                c = '0' if kb == 0 else f'v[{d}:{d+3}]'
                wb = (t*14+kb)*4
                a(f'v_mfma_f32_16x16x32_bf16 v[{d}:{d+3}], a[{wb}:{wb+3}], v[{b+4*T}:{b+4*T+3}], {c}')
            if t == 1 and kb + 3 < 14: tkread(kb+3)
    a(f'v_xor_b32 v{VLR}, 0x8000, v{VLR}')
    a('s_waitcnt vmcnt(7)')
    a(f's_cmp_lt_u32 s{sSEG}, 64')
    a(f's_cbranch_scc1 {L}_st')
    a('s_waitcnt vmcnt(0)')
    a(f'{L}_st:')
    for T in range(2):
        b = SR + T*14
        for i in range(1, 7):
            a(f'v_add_f32 v{b}, v{b}, v{b+2*i}')
            a(f'v_add_f32 v{b+1}, v{b+1}, v{b+2*i+1}')
        rowsum4(a, b, T0); rowsum4(a, b+1, T0)
        a(f'v_mul_f32 v{b}, {hex(f32(1/448))}, v{b}')
        a(f'v_mul_f32 v{b+1}, {hex(f32(1/448))}, v{b+1}')
        a(f'v_fma_f32 v{b+1}, -v{b}, v{b}, v{b+1}')
        a(f'v_max_f32 v{b+1}, 0, v{b+1}')
        a(f'v_add_f32 v{b+1}, {hex(f32(1e-5))}, v{b+1}')
        a(f'v_rsq_f32 v{STAT+2*T}, v{b+1}')
        a('s_nop 0')
        a(f'v_mul_f32 v{STAT+2*T+1}, v{STAT+2*T}, v{b}')
    a(f's_mul_i32 s{sT+7}, s{sCUR}, {ACT_STEP}')
    a(f's_lshl_b32 s{sT+8}, s{sFG}, 2')
    a(f's_add_u32 s{sT+8}, s{sT+8}, s{sW}')
    a(f's_lshl_b32 s{sT+8}, s{sT+8}, 10')
    a(f's_add_u32 s{sT+7}, s{sT+7}, s{sT+8}')
    a(f's_add_u32 s{sT+7}, s{sT+7}, {ACT_OFF}')
    E = T0+2
    for T in range(2):
        R_, RM = STAT+2*T, STAT+2*T+1
        for tt in range(2):
            g = ACC + (tt*2+T)*4; u = ACC + ((2+tt)*2+T)*4
            for r in range(4):
                a(f'v_mul_f32 v{E+r}, v{RM}, v{CS+4*tt+r}')
                a(f'v_fma_f32 v{g+r}, v{R_}, v{g+r}, -v{E+r}')
                a(f'v_mul_f32 v{E+r}, v{RM}, v{CS+4*(2+tt)+r}')
                a(f'v_fma_f32 v{u+r}, v{R_}, v{u+r}, -v{E+r}')
            for r in range(4): a(f'v_mul_f32 v{E+r}, {hex(f32(-LOG2E))}, v{g+r}')
            for r in range(4): a(f'v_exp_f32 v{E+r}, v{E+r}')
            a('s_nop 0')
            for r in range(4): a(f'v_add_f32 v{E+r}, 1.0, v{E+r}')
            for r in range(4): a(f'v_rcp_f32 v{E+r}, v{E+r}')
            for r in range(4): a(f'v_mul_f32 v{g+r}, v{g+r}, v{u+r}')
            for r in range(4): a(f'v_mul_f32 v{g+r}, v{g+r}, v{E+r}')
            o = T0 + 8 + 4*T + 2*tt
            a(f'v_cvt_pk_bf16_f32 v{o}, v{g}, v{g+1}')
            a(f'v_cvt_pk_bf16_f32 v{o+1}, v{g+2}, v{g+3}')
        o = T0 + 8 + 4*T
        if T == 1: a(f's_add_u32 s{sT+7}, s{sT+7}, {56*1024}')
        a(f'buffer_store_dwordx4 v[{o}:{o+3}], v{VL16}, {WS}, s{sT+7} offen {sc}')
    a(f's_cmp_ge_u32 s{sSEG}, 64')
    a(f's_cbranch_scc1 {L}_done')
    a('s_waitcnt vmcnt(2)')
    stage_write()
    a('s_waitcnt lgkmcnt(0)')
    a('s_barrier')
    a(f's_branch {L}_loop')
    a(f'{L}_done:')
    a('s_waitcnt vmcnt(0)')
    a(f'{L}_exit:')
    a('s_endpgm')

def emit_F2(a, nrep, L='RG', sc=''):
    role_prologue(a, L, 7*nrep)
    WD_, OUT_ = 8, 12
    a(f's_load_dwordx2 s[{WD_}:{WD_+1}], s[0:1], {KA_WD}')
    a(f's_load_dwordx2 s[{OUT_}:{OUT_+1}], s[0:1], {KA_OUT}')
    sCG = sT
    divmod_small(a, sSEG, sCG, 2, 7)
    a('s_waitcnt lgkmcnt(0)')
    srd_fin(a, WD_, 1605632); srd_fin(a, OUT_, 1835008)
    VL, VL16 = 1, 2
    ld = 'sc1' if sc else ''
    RAW = 8
    VG, VW, VR = 3, 4, 5
    a(f'v_lshrrev_b32 v{VG}, 3, v{VL}')
    a(f'v_mul_u32_u24 v{VG}, 896, v{VG}')
    a(f'v_and_b32 v6, 7, v{VL}')
    a(f'v_lshl_add_u32 v{VG}, v6, 4, v{VG}')
    a(f's_mul_i32 s{sT+1}, s{sW}, 28672')
    a(f'v_add_u32 v{VW}, s{sT+1}, v{VL16}')
    a(f'v_lshrrev_b32 v6, 4, v{VL}')
    a(f'v_lshlrev_b32 v6, 2, v6')
    a(f'v_bfe_u32 v7, v{VL}, 2, 2')
    a(f'v_add_u32 v6, v6, v7')
    a(f'v_lshlrev_b32 v6, 7, v6')
    a(f'v_and_b32 v7, 3, v{VL}')
    a(f'v_lshl_add_u32 v6, v7, 3, v6')
    a(f'v_add_u32 v{VR}, s{sT+1}, v6')
    a(f's_mul_i32 s{sT+2}, s{sW}, {14*32*896}')
    a(f's_lshl_b32 s{sT+3}, s{sCG}, 7')
    a(f's_add_u32 s{sT+2}, s{sT+2}, s{sT+3}')
    for bt in range(2):
        for k7 in range(7):
            kf = bt*7 + k7
            for q4 in range(4):
                a(f's_add_u32 s{sT+3}, s{sT+2}, {(32*kf + 8*q4)*896}')
                b = RAW + (k7*4+q4)*4
                a(f'buffer_load_dwordx4 v[{b}:{b+3}], v{VG}, s[{WD_}:{WD_+3}], s{sT+3} offen')
        a('s_waitcnt vmcnt(0)')
        for k7 in range(7):
            for q4 in range(4):
                b = RAW + (k7*4+q4)*4
                a(f'ds_write_b128 v{VW}, v[{b}:{b+3}] offset:{k7*4096 + q4*1024}')
        a('s_waitcnt lgkmcnt(0)')
        for i in range(4):
            for k7 in range(7):
                d = (i*14 + bt*7 + k7)*4
                a(f'ds_read_b64_tr_b16 a[{d}:{d+1}], v{VR} offset:{k7*4096 + i*32}')
                a(f'ds_read_b64_tr_b16 a[{d+2}:{d+3}], v{VR} offset:{k7*4096 + i*32 + 2048}')
            a('s_waitcnt lgkmcnt(0)')
    a('s_barrier')
    TK, ACC, T0 = 4, 36, 72
    VRW, VRR, VHO, VOO = 68, 69, 70, 71
    a(f's_lshl_b32 s{sT+1}, s{sW}, 13')
    a(f'v_add_u32 v{VRW}, s{sT+1}, v{VL16}')
    a(f's_lshl_b32 s{sT+1}, s{sW}, 11')
    a(f'v_add_u32 v{VRR}, s{sT+1}, v{VL16}')
    a(f'v_and_b32 v{T0}, 15, v{VL}')
    a(f'v_lshrrev_b32 v{T0+1}, 4, v{VL}')
    a(f'v_lshrrev_b32 v{T0+2}, 1, v{T0+1}')
    a(f'v_lshlrev_b32 v{VHO}, 9, v{T0+2}')
    a(f'v_lshl_add_u32 v{VHO}, v{T0}, 4, v{VHO}')
    a(f'v_and_b32 v{T0+2}, 1, v{T0+1}')
    a(f'v_lshl_add_u32 v{VHO}, v{T0+2}, 3, v{VHO}')
    a(f'v_mul_u32_u24 v{VOO}, 896, v{T0}')
    a(f'v_lshl_add_u32 v{VOO}, v{T0+1}, 3, v{VOO}')
    sCT = sT+1
    a(f's_lshl_b32 s{sCT}, s{sCG}, 2')
    a(f's_add_u32 s{sCT}, s{sCT}, s{sW}')
    a(f'{L}_loop:')
    vm = VM(a)
    sAC = sT+2
    a(f's_mul_i32 s{sAC}, s{sSEG}, {ACT_STEP}')
    a(f's_mul_i32 s{sT+3}, s{sW}, {14*1024}')
    a(f's_add_u32 s{sAC}, s{sAC}, s{sT+3}')
    a(f's_add_u32 s{sAC}, s{sAC}, {ACT_OFF}')
    def tkload(kf):
        b = TK + 8*(kf & 3)
        a(f's_add_u32 s{sT+3}, s{sAC}, {kf*1024}')
        vm.op(f'buffer_load_dwordx4 v[{b}:{b+3}], v{VL16}, {WS}, s{sT+3} offen {ld}', f'k{kf}')
        a(f's_add_u32 s{sT+3}, s{sAC}, {(56+kf)*1024}')
        vm.op(f'buffer_load_dwordx4 v[{b+4}:{b+7}], v{VL16}, {WS}, s{sT+3} offen {ld}', f'k{kf}')
    for kf in range(3): tkload(kf)
    HV = T0 + 4
    a(f's_mul_i32 s{sT+4}, s{sSEG}, {HF_STEP}')
    a(f's_lshl_b32 s{sT+5}, s{sCT}, 10')
    a(f's_add_u32 s{sT+4}, s{sT+4}, s{sT+5}')
    a(f's_add_u32 s{sT+4}, s{sT+4}, {HF_OFF}')
    for T in range(2):
        vm.op(f'buffer_load_dwordx2 v[{HV+2*T}:{HV+2*T+1}], v{VHO}, {WS}, s{sT+4} offen offset:{T*256} {ld}', 'h')
    for kf in range(14):
        vm.wait(f'k{kf}')
        b = TK + 8*(kf & 3)
        for i in range(4):
            for T in range(2):
                d = ACC + (i*2+T)*4
                c = '0' if kf == 0 else f'v[{d}:{d+3}]'
                wb = (i*14+kf)*4
                a(f'v_mfma_f32_16x16x32_bf16 v[{d}:{d+3}], a[{wb}:{wb+3}], v[{b+4*T}:{b+4*T+3}], {c}')
            if i == 1 and kf + 3 < 14: tkload(kf+3)
    a('s_nop 7')
    for t in range(8):
        a(f'ds_write_b128 v{VRW}, v[{ACC+4*t}:{ACC+4*t+3}] offset:{t*1024}')
    a(f'v_xor_b32 v{VRW}, 0x8000, v{VRW}')
    a('s_waitcnt lgkmcnt(0)')
    a('s_barrier')
    for T in range(2):
        for w in range(4):
            b = ACC + (T*4+w)*4
            a(f'ds_read_b128 v[{b}:{b+3}], v{VRR} offset:{w*8192 + T*1024}')
    a(f'v_xor_b32 v{VRR}, 0x8000, v{VRR}')
    a('s_waitcnt lgkmcnt(0)')
    vm.waitall()
    a(f's_mul_i32 s{sT+4}, s{sSEG}, {32*896}')
    a(f's_lshl_b32 s{sT+5}, s{sCT}, 5')
    a(f's_add_u32 s{sT+4}, s{sT+4}, s{sT+5}')
    X = T0 + 8
    for T in range(2):
        b = ACC + T*16
        for r in range(4):
            a(f'v_add_f32 v{b+r}, v{b+r}, v{b+4+r}')
            a(f'v_add_f32 v{b+8+r}, v{b+8+r}, v{b+12+r}')
        for r in range(4): a(f'v_add_f32 v{b+r}, v{b+r}, v{b+8+r}')
        a(f'v_lshlrev_b32 v{X}, 16, v{HV+2*T}')
        a(f'v_and_b32 v{X+1}, 0xffff0000, v{HV+2*T}')
        a(f'v_lshlrev_b32 v{X+2}, 16, v{HV+2*T+1}')
        a(f'v_and_b32 v{X+3}, 0xffff0000, v{HV+2*T+1}')
        for r in range(4): a(f'v_add_f32 v{b+r}, v{b+r}, v{X+r}')
        a(f'v_cvt_pk_bf16_f32 v{X+4+2*T}, v{b}, v{b+1}')
        a(f'v_cvt_pk_bf16_f32 v{X+5+2*T}, v{b+2}, v{b+3}')
        if T == 1: a(f's_add_u32 s{sT+4}, s{sT+4}, {16*896}')
        a(f'buffer_store_dwordx2 v[{X+4+2*T}:{X+5+2*T}], v{VOO}, s[{OUT_}:{OUT_+3}], s{sT+4} offen')
    a(f's_add_u32 s{sSEG}, s{sSEG}, {nrep}')
    a(f's_cmp_lt_u32 s{sSEG}, 64')
    a(f's_cbranch_scc1 {L}_loop')
    a('s_waitcnt vmcnt(0)')
    a(f'{L}_exit:')
    a('s_endpgm')

if __name__ == '__main__':
    import subprocess
    for name, fn in [('u_kernel', lambda a: emit_U(a, 9))]:
        a = Asm(); fn(a)
        txt = assemble_file([(name, 252, 256, 65536)], [(name, a.text(), 512, 256)])
        open('r.s', 'w').write(txt)
        r = subprocess.run(['clang', '-x', 'assembler', '-target', 'amdgcn-amd-amdhsa', '-mcpu=gfx950', '-c', 'r.s', '-o', 'r.o'], capture_output=True, text=True)
        print(name, r.returncode, r.stderr[:3000], len(txt.splitlines()))
```

```python
from common import *
import prep, roles, froles, chain, chain2
from chain import S_WS, S_DBG, S_ROLE, S_WAVE, S_T0, S_SPIN, S_EXEC, NCHAIN, NA, SPIN_MAX
KN = 'sequential_preLN__memory_aug_recurrent_mem_tr__swiglu_ffn__prompt'
NW, NX, NV, NF1, NF2 = 2, 4, 3, 3, 2
S_ROLE0 = 91
def fused_prologue(a, tl=False):
    T = S_T0
    if tl: a('s_memrealtime s[80:81]')
    a(f'''
s_cmp_ge_u32 s2, 256
s_cbranch_scc1 L_exit0
s_load_dwordx2 s[{S_WS}:{S_WS+1}], s[0:1], {KA_WS}
s_getreg_b32 s{T}, hwreg(HW_REG_XCC_ID)
s_and_b32 s{T}, s{T}, 15
v_lshrrev_b32 v1, 6, v0
s_nop 0
v_readfirstlane_b32 s{S_WAVE}, v1
s_waitcnt lgkmcnt(0)
s_and_b32 s{S_WS+1}, s{S_WS+1}, 0xffff
s_mov_b32 s{S_WS+2}, {WS_BYTES}
s_mov_b32 s{S_WS+3}, 0x20000
s_cmp_lg_u32 s{S_WAVE}, 0
s_cbranch_scc1 Lel_wait
s_lshl_b32 s{T+1}, s{T}, 7
s_add_u32 s{T+1}, s{T+1}, {FL_XCD}
v_mov_b32 v2, s{T+1}
v_mov_b32 v3, 1
s_mov_b64 exec, 1
buffer_atomic_add v3, v2, s[{S_WS}:{S_WS+3}], 0 offen sc0
s_waitcnt vmcnt(0)
v_readfirstlane_b32 s{T+2}, v3
s_mov_b64 exec, -1
s_nop 3
s_cmp_eq_u32 s{T}, 0
s_cbranch_scc0 Lel_worker
s_cmp_lt_u32 s{T+2}, {NCHAIN}
s_cbranch_scc1 Lel_pub
s_branch Lel_none
Lel_worker:
s_cmp_ge_u32 s{T+2}, 32
s_cbranch_scc1 Lel_none
s_cmp_ge_u32 s{T}, 8
s_cbranch_scc1 Lel_none
s_lshl_b32 s{T+1}, s{T}, 5
s_add_u32 s{T+2}, s{T+2}, s{T+1}
s_add_u32 s{T+2}, s{T+2}, 32
s_branch Lel_pub
Lel_none:
s_mov_b32 s{T+2}, 1000
Lel_pub:
v_mov_b32 v3, s{T+2}
v_mov_b32 v2, 0
ds_write_b32 v2, v3
s_waitcnt lgkmcnt(0)
Lel_wait:
s_barrier
v_mov_b32 v2, 0
ds_read_b32 v3, v2
s_waitcnt lgkmcnt(0)
v_readfirstlane_b32 s{S_ROLE}, v3
s_nop 3
s_barrier
s_cmp_ge_u32 s{S_ROLE}, 1000
s_cbranch_scc1 L_exit0
''')

def build_main(cfg):
    a = Asm()
    tl = getattr(cfg, 'tl', 0)
    fused_prologue(a, tl)
    if tl: a('s_memrealtime s[82:83]')
    a(f's_mov_b32 s{S_ROLE0}, s{S_ROLE}')
    a('s_mov_b32 s88, 0'); a('s_mov_b32 s89, 0'); a('s_mov_b32 s84, 0')
    a(f's_cmp_ge_u32 s{S_ROLE}, 64')
    a('s_cbranch_scc1 L_worker')
    a(f's_cmp_ge_u32 s{S_ROLE}, {NA}')
    a('s_cbranch_scc1 LB_entry')
    chain2.emit_A2(a, cfg, 'L_exit')
    a('LB_entry:')
    chain2.emit_B2(a, cfg, 'L_exit')
    a('L_worker:')
    a(f's_sub_u32 s{roles.sIDX}, s{S_ROLE}, 64')
    a(f's_mov_b32 s{roles.sW}, s{S_WAVE}')
    a('v_and_b32 v1, 63, v0')
    a('v_lshlrev_b32 v2, 4, v1')
    roles.emit_U(a, 8, 'RU', 'sc1', fz=True)
    a('s_barrier')
    if tl: a('s_memrealtime s[84:85]')
    I = roles.sIDX
    b0 = 28*NW
    b1 = b0 + 16*NX; b2 = b1 + 14*NV; b3 = b2 + 14*NF1; b4 = b3 + 7*NF2
    assert b4 <= 224
    a(f's_cmp_lt_u32 s{I}, {b0}'); a('s_cbranch_scc1 L_W')
    a(f's_cmp_lt_u32 s{I}, {b1}'); a('s_cbranch_scc1 L_X')
    a(f's_cmp_lt_u32 s{I}, {b2}'); a('s_cbranch_scc1 L_V')
    a(f's_cmp_lt_u32 s{I}, {b3}'); a('s_cbranch_scc1 L_F1')
    a(f's_cmp_lt_u32 s{I}, {b4}'); a('s_cbranch_scc1 L_F2')
    a('s_branch L_exit')
    a('L_W:'); froles.emit_W(a, NW)
    a('L_X:'); a(f's_sub_u32 s{I}, s{I}, {b0}'); froles.emit_X(a, NX)
    a('L_V:'); a(f's_sub_u32 s{I}, s{I}, {b1}'); froles.emit_V(a, NV)
    a('L_F1:'); a(f's_sub_u32 s{I}, s{I}, {b2}'); froles.emit_F1(a, NF1)
    a('L_F2:'); a(f's_sub_u32 s{I}, s{I}, {b3}'); froles.emit_F2(a, NF2)
    a('L_exit:')
    a('s_waitcnt vmcnt(0)')
    if tl:
        a('s_memrealtime s[86:87]')
        a('s_waitcnt lgkmcnt(0)')
        a(f's_lshl_b32 s90, s{S_ROLE0}, 5')
        a(f's_add_u32 s90, s90, {TS_OFF + 0x90000}')
        a('v_mov_b32 v4, s80'); a('v_mov_b32 v5, s82'); a('v_mov_b32 v6, s84'); a('v_mov_b32 v7, s86')
        a('v_mov_b32 v8, s88'); a('v_mov_b32 v9, s89'); a('v_mov_b32 v10, 0')
        a('s_mov_b64 exec, 1')
        a('buffer_store_dwordx4 v[4:7], v10, s[4:7], s90 offen')
        a('buffer_store_dwordx2 v[8:9], v10, s[4:7], s90 offen offset:16')
        a('s_waitcnt vmcnt(0)')
    a('L_exit0:')
    a('s_endpgm')
    return a.text()

def build(stamps=False, **kw):
    cfg = chain.Cfg(); cfg.stamps = stamps; cfg.fused = True
    cfg.warm = False; cfg.u_gap = 1; cfg.u_first = 1; cfg.a_sleep = 12; cfg.a_sleep0 = 6; cfg.b_sleep = 3; cfg.total = 1; cfg.wstore = False
    for k, v in kw.items(): setattr(cfg, k, v)
    a = Asm(); prep.emit_prep(a, tl=getattr(cfg, 'tl', 0))
    bodies = [('prep_kernel', a.text(), 512, 256), ('main_kernel', build_main(cfg), 512, 256)]
    L = [('prep_kernel', 256, 256, 92160), ('main_kernel', 256, 256, 155648 if stamps else 114688)]
    return assemble_file(L, bodies), L

def write(path, txt):
    hdr = open(f'cdna_kernels/{KN}.s.ref').read().split('\n')
    keep = [l for l in hdr if l.startswith(';') and '@launch' not in l and 'Override launch' not in l and 'grid=ceil' not in l][:17]
    out = '\n'.join(keep) + '\n' + txt
    open(path, 'w').write(out); print(path, len(out), 'bytes')
if __name__ == '__main__':
    txt, L = build()
    write(f'cdna_kernels/{KN}.s', txt)
```

```python
from common import *

def emit_prep(a, L='PR'):
    WSR, W1, W2, XS_, M0_ = 4, 8, 12, 16, 20
    WS = f's[{WSR}:{WSR+3}]'
    sW, sM, sH, sKK, sT = 24, 25, 26, 27, 28
    a(f'''
s_cmp_ge_u32 s2, 256
s_cbranch_scc1 {L}_exit
s_load_dwordx2 s[{WSR}:{WSR+1}], s[0:1], {KA_WS}
v_lshrrev_b32 v1, 6, v0
s_nop 0
v_readfirstlane_b32 s{sW}, v1
v_and_b32 v1, 63, v0              ; lane
s_cmp_ge_u32 s2, 224
s_cbranch_scc1 {L}_ln
; ---------------- P2: A' / B fragments
s_cmp_ge_u32 s2, 112
s_cselect_b32 s{sM}, 1, 0
s_mul_i32 s{sT}, s{sM}, 112
s_sub_u32 s{sT}, s2, s{sT}
s_mul_i32 s{sH}, s{sT}, 9363
s_lshr_b32 s{sH}, s{sH}, 16
s_mul_i32 s{sKK}, s{sH}, 7
s_sub_u32 s{sKK}, s{sT}, s{sKK}
s_cmp_eq_u32 s{sM}, 0
s_cbranch_scc0 {L}_ptrB
s_load_dwordx2 s[{W1}:{W1+1}], s[0:1], {KA_WQ}
s_load_dwordx2 s[{W2}:{W2+1}], s[0:1], {KA_WK}
s_branch {L}_ptr
{L}_ptrB:
s_load_dwordx2 s[{W1}:{W1+1}], s[0:1], {KA_WV}
s_load_dwordx2 s[{W2}:{W2+1}], s[0:1], {KA_WO}
{L}_ptr:
s_waitcnt lgkmcnt(0)''')
    srd_fin(a, WSR, WS_BYTES); srd_fin(a, W1, 3670016); srd_fin(a, W2, 3670016)
    VL, VL16, VA, VB, VT, VT2, VTR, VTRB = 1, 2, 3, 4, 5, 6, 7, 8
    BALL, ACC = 16, 240
    a(f'v_lshlrev_b32 v{VL16}, 4, v{VL}')
    a(f'v_and_b32 v{VT}, 15, v{VL}')
    key_of_rho(a, VA, VT, VT2, None)
    a(f'v_lshlrev_b32 v{VA}, 13, v{VA}')
    a(f'v_lshrrev_b32 v{VT2}, 4, v{VL}')
    a(f'v_lshl_add_u32 v{VA}, v{VT2}, 4, v{VA}')
    a(f's_lshl_b32 s{sT}, s{sKK}, 19')
    a(f's_lshl_b32 s{sT+1}, s{sH}, 9')
    a(f's_add_u32 s{sT}, s{sT}, s{sT+1}')
    cnt = [0]
    def vm(text):
        a(text); cnt[0] += 1
        if cnt[0] % 24 == 0 and cnt[0] >= 48: a('s_waitcnt vmcnt(36)')
    def aloads():
        for rh in range(2):
            for XY in range(2):
                a(f's_add_u32 s{sT+2}, s{sT}, {(32*rh+2*XY)*8192}')
                for ks in range(8):
                    b = ((rh*2+XY)*8+ks)*4
                    vm(f'buffer_load_dwordx4 a[{b}:{b+3}], v{VA}, s[{W1}:{W1+3}], s{sT+2} offen offset:{ks*64}')
    a(f's_mul_i32 s{sT+3}, s{sH}, 28')
    a(f's_mul_i32 s{sT+4}, s{sW}, 7')
    a(f's_add_u32 s{sT+3}, s{sT+3}, s{sT+4}')
    a(f's_mul_i32 s{sT+3}, s{sT+3}, 7')
    a(f's_add_u32 s{sT+3}, s{sT+3}, s{sKK}')
    a(f's_lshl_b32 s{sT+3}, s{sT+3}, 11')
    a(f's_mul_i32 s{sT+5}, s{sM}, {BF_OFF}')
    a(f's_add_u32 s{sT+3}, s{sT+3}, s{sT+5}')
    sOUT = sT+3
    def mfmas(bfn):
        for t in range(4):
            for ks in range(8):
                c = '0' if ks == 0 else f'v[{ACC+4*t}:{ACC+4*t+3}]'
                ab = (t*8+ks)*4
                a(f'v_mfma_f32_16x16x32_bf16 v[{ACC+4*t}:{ACC+4*t+3}], a[{ab}:{ab+3}], {bfn(ks)}, {c}')
    def epilogue(scale):
        a('s_nop 7')
        if scale:
            a(f'v_mov_b32 v{VT}, {hex(f32(LOG2E/16))}')
            for r in range(16): a(f'v_mul_f32 v{ACC+r}, v{ACC+r}, v{VT}')
        for rh in range(2):
            x, y = ACC + 8*rh, ACC + 8*rh + 4
            o = 8 + 4*rh
            a(f'v_cvt_pk_bf16_f32 v{o}, v{x}, v{x+1}')
            a(f'v_cvt_pk_bf16_f32 v{o+1}, v{x+2}, v{x+3}')
            a(f'v_cvt_pk_bf16_f32 v{o+2}, v{y}, v{y+1}')
            a(f'v_cvt_pk_bf16_f32 v{o+3}, v{y+2}, v{y+3}')
            a(f'buffer_store_dwordx4 v[{o}:{o+3}], v{VL16}, {WS}, s{sOUT} offen offset:{rh*1024}')
        a('s_nop 2')
        a(f's_add_u32 s{sOUT}, s{sOUT}, {7*2048}')
    a(f's_cmp_eq_u32 s{sM}, 0')
    a(f's_cbranch_scc0 {L}_matB')
    a(f'v_and_b32 v{VT}, 15, v{VL}')
    a(f'v_lshlrev_b32 v{VB}, 13, v{VT}')
    a(f'v_lshrrev_b32 v{VT2}, 4, v{VL}')
    a(f'v_lshl_add_u32 v{VB}, v{VT2}, 4, v{VB}')
    a(f's_mul_i32 s{sT+4}, s{sW}, {7*16*8192}')
    a(f's_lshl_b32 s{sT+5}, s{sH}, 9')
    a(f's_add_u32 s{sT+4}, s{sT+4}, s{sT+5}')
    cnt[0] = 0
    aloads()
    for cti in range(7):
        for ks in range(8):
            b = BALL + 32*cti + 4*ks
            vm(f'buffer_load_dwordx4 v[{b}:{b+3}], v{VB}, s[{W2}:{W2+3}], s{sT+4} offen offset:{ks*64}')
        a(f's_add_u32 s{sT+4}, s{sT+4}, {16*8192}')
    for cti in range(7):
        a(f's_waitcnt vmcnt({min(63, 8*(6-cti) + 2*cti)})')
        mfmas(lambda ks, cti=cti: f'v[{BALL+32*cti+4*ks}:{BALL+32*cti+4*ks+3}]')
        epilogue(True)
    a(f's_branch {L}_exit')
    a(f'{L}_matB:')
    a(f'v_lshrrev_b32 v{VT}, 1, v{VL}')
    a(f'v_mul_u32_u24 v{VB}, 896, v{VT}')
    a(f'v_and_b32 v{VT}, 1, v{VL}')
    a(f'v_lshl_add_u32 v{VB}, v{VT}, 4, v{VB}')
    a(f's_mul_i32 s{sT+4}, s{sH}, 229376')
    a(f's_mul_i32 s{sT+5}, s{sW}, {7*32}')
    a(f's_add_u32 s{sT+4}, s{sT+4}, s{sT+5}')
    a(f's_lshl_b32 s{sT+5}, s{sW}, 13')
    VLW = 16+224 if False else 7
    a(f'v_add_u32 v{VLW}, s{sT+5}, v{VL16}')
    a(f'v_lshrrev_b32 v{VT}, 4, v{VL}')
    a(f'v_lshlrev_b32 v{VT}, 3, v{VT}')
    a(f'v_bfe_u32 v{VT2}, v{VL}, 2, 2')
    a(f'v_add_u32 v{VT}, v{VT}, v{VT2}')
    a(f'v_lshlrev_b32 v{VT}, 5, v{VT}')
    a(f'v_and_b32 v{VT2}, 3, v{VL}')
    a(f'v_lshl_add_u32 v{VT}, v{VT2}, 3, v{VT}')
    VTR = 6
    a(f'v_add_u32 v{VTR}, s{sT+5}, v{VT}')
    cnt[0] = 0
    aloads()
    for cti in range(7):
        for ks in range(8):
            a(f's_add_u32 s{sT+6}, s{sT+4}, {ks*28672 + cti*32}')
            b = BALL + 32*cti + 4*ks
            vm(f'buffer_load_dwordx4 v[{b}:{b+3}], v{VB}, s[{W2}:{W2+3}], s{sT+6} offen')
    for cti in range(7):
        a(f's_waitcnt vmcnt({min(63, 8*(6-cti) + 2*cti)})')
        for ks in range(8):
            b = BALL + 32*cti + 4*ks
            a(f'ds_write_b128 v{VLW}, v[{b}:{b+3}] offset:{ks*1024}')
        for ks in range(8):
            b = 128 + 4*ks
            a(f'ds_read_b64_tr_b16 a[{b}:{b+1}], v{VTR} offset:{ks*1024}')
            a(f'ds_read_b64_tr_b16 a[{b+2}:{b+3}], v{VTR} offset:{ks*1024+128}')
        a('s_waitcnt lgkmcnt(0)')
        mfmas(lambda ks: f'a[{128+4*ks}:{128+4*ks+3}]')
        epilogue(False)
    a(f's_branch {L}_exit')
    a(f'{L}_ln:')
    a(f's_load_dwordx2 s[{XS_}:{XS_+1}], s[0:1], {KA_X}')
    a(f's_load_dwordx2 s[{M0_}:{M0_+1}], s[0:1], {KA_MEM0}')
    a('s_waitcnt lgkmcnt(0)')
    srd_fin(a, WSR, WS_BYTES); srd_fin(a, XS_, 1835008); srd_fin(a, M0_, 7168)
    sQ, sS, sXY = 26, 27, 25
    a(f's_sub_u32 s{sQ}, s2, 224')
    a(f's_lshr_b32 s{sS}, s{sW}, 1')
    a(f's_lshl_b32 s{sT}, s{sQ}, 1')
    a(f's_add_u32 s{sS}, s{sS}, s{sT}')
    a(f's_and_b32 s{sXY}, s{sW}, 1')
    VKEY, VG, VXA, VQ, VPO, VS, VM, VR = 2, 3, 4, 5, 6, 7, 8, 9
    RAWX, FX, TMP = 16, 72, 184
    a(f'v_and_b32 v{TMP}, 15, v{VL}')
    key_of_rho(a, VKEY, TMP, TMP+1, None)
    a(f's_lshl_b32 s{sT}, s{sXY}, 1')
    a(f'v_add_u32 v{VKEY}, s{sT}, v{VKEY}')
    a(f'v_lshrrev_b32 v{VG}, 4, v{VL}')
    a(f'v_mul_u32_u24 v{VXA}, 896, v{VKEY}')
    a(f'v_lshrrev_b32 v{TMP}, 1, v{VG}')
    a(f'v_lshl_add_u32 v{VXA}, v{TMP}, 5, v{VXA}')
    a(f'v_and_b32 v{TMP+1}, 1, v{VG}')
    a(f'v_lshl_add_u32 v{VXA}, v{TMP+1}, 3, v{VXA}')
    a(f's_mul_i32 s{sT}, s{sS}, {32*896}')
    for kb in range(14):
        for p in range(2):
            b = RAWX + (kb*2+p)*2
            a(f'buffer_load_dwordx2 v[{b}:{b+1}], v{VXA}, s[{XS_}:{XS_+3}], s{sT} offen offset:{(32*kb+8*p)*2}')
    a(f'v_lshlrev_b32 v{VPO}, 10, v{TMP}')
    a(f'v_lshl_add_u32 v{VPO}, v{VKEY}, 4, v{VPO}')
    a(f'v_lshl_add_u32 v{VPO}, v{TMP+1}, 3, v{VPO}')
    a(f'v_lshlrev_b32 v{VQ}, 4, v{VL}')
    a('s_waitcnt vmcnt(0)')
    for i in range(56):
        a(f'v_lshlrev_b32 v{FX+2*i}, 16, v{RAWX+i}')
        a(f'v_and_b32 v{FX+2*i+1}, 0xffff0000, v{RAWX+i}')
    a(f'v_mov_b32 v{VS}, 0')
    for i in range(0, 112, 2):
        a(f'v_add_f32 v{TMP}, v{FX+i}, v{FX+i+1}')
        a(f'v_add_f32 v{VS}, v{VS}, v{TMP}')
    rowsum4(a, VS, TMP)
    a(f'v_mul_f32 v{VM}, {hex(f32(1/448))}, v{VS}')
    a(f'v_mov_b32 v{VS}, 0')
    for i in range(112):
        a(f'v_sub_f32 v{FX+i}, v{FX+i}, v{VM}')
        a(f'v_fmac_f32 v{VS}, v{FX+i}, v{FX+i}')
    rowsum4(a, VS, TMP)
    a(f'v_mov_b32 v{TMP}, {hex(f32(1e-5))}')
    a(f'v_fmac_f32 v{TMP}, {hex(f32(1/448))}, v{VS}')
    a(f'v_rsq_f32 v{VR}, v{TMP}')
    a('s_nop 0')
    for i in range(112): a(f'v_mul_f32 v{FX+i}, v{FX+i}, v{VR}')
    a(f's_lshl_b32 s{sT}, s{sS}, 1')
    a(f's_add_u32 s{sT}, s{sT}, s{sXY}')
    a(f's_mul_i32 s{sT}, s{sT}, {14*1024}')
    a(f's_add_u32 s{sT}, s{sT}, {XNQ_OFF}')
    a(f's_mul_i32 s{sT+1}, s{sS}, {XNP_STEP}')
    a(f's_add_u32 s{sT+1}, s{sT+1}, {XNP_OFF}')
    for kb in range(14):
        x = FX + kb*8; y = x + 4
        q = TMP + 4*(kb & 1); pp = TMP + 8 + 4*(kb & 1)
        a(f'v_cvt_pk_bf16_f32 v{q}, v{x}, v{x+1}')
        a(f'v_cvt_pk_bf16_f32 v{q+1}, v{y}, v{y+1}')
        a(f'v_cvt_pk_bf16_f32 v{q+2}, v{x+2}, v{x+3}')
        a(f'v_cvt_pk_bf16_f32 v{q+3}, v{y+2}, v{y+3}')
        a(f'v_mov_b32 v{pp}, v{q}')
        a(f'v_mov_b32 v{pp+1}, v{q+2}')
        a(f'v_mov_b32 v{pp+2}, v{q+1}')
        a(f'v_mov_b32 v{pp+3}, v{q+3}')
        if kb*1024 >= 4096 and (kb*1024) % 4096 == 0: a(f's_add_u32 s{sT}, s{sT}, 4096')
        a(f'buffer_store_dwordx4 v[{q}:{q+3}], v{VQ}, {WS}, s{sT} offen offset:{(kb*1024) % 4096}')
        a(f's_add_u32 s{sT+2}, s{sT+1}, {4*kb*512}')
        a(f'buffer_store_dwordx2 v[{pp}:{pp+1}], v{VPO}, {WS}, s{sT+2} offen')
        a(f'buffer_store_dwordx2 v[{pp+2}:{pp+3}], v{VPO}, {WS}, s{sT+2} offen offset:512')
        if kb & 1: a('s_waitcnt vmcnt(0)')
    fill0 = MEMF_OFF + MEMF_STEP; filln = P_OFF + P_SZ - fill0
    per = (filln + 31) // 32; per = (per + 4095) // 4096 * 4096
    a(f'v_lshlrev_b32 v{TMP}, 4, v0')
    for r in range(4): a(f'v_mov_b32 v{TMP+4+r}, -1')
    a(f's_mul_i32 s{sT}, s{sQ}, {per}')
    a(f's_add_u32 s{sT}, s{sT}, {fill0}')
    a(f's_mov_b32 s{sT+1}, {P_OFF + P_SZ}')
    for it in range(per // 4096):
        a(f's_cmp_ge_u32 s{sT}, s{sT+1}')
        a(f's_cbranch_scc1 {L}_filled')
        a(f'buffer_store_dwordx4 v[{TMP+4}:{TMP+7}], v{TMP}, {WS}, s{sT} offen')
        a(f's_add_u32 s{sT}, s{sT}, 4096')
    a(f'{L}_filled:')
    assert filln % 4096 == 0 or True
    a(f's_mul_i32 s{sT}, s{sQ}, 14336')
    a(f's_add_u32 s{sT}, s{sT}, {MEMG_OFF + MEMF_STEP}')
    a(f's_mov_b32 s{sT+1}, {MEMG_OFF + MEMG_SZ}')
    for it in range(4):
        a(f's_cmp_ge_u32 s{sT}, s{sT+1}')
        a(f's_cbranch_scc1 {L}_filled2')
        a(f'v_add_u32 v{TMP+1}, s{sT}, v{TMP}')
        a(f's_add_u32 s{sT+2}, s{sT}, {14336 - it*4096}')
        a(f's_min_u32 s{sT+2}, s{sT+2}, s{sT+1}')
        a(f'v_cmp_gt_u32 vcc, s{sT+2}, v{TMP+1}')
        a(f's_and_saveexec_b64 s[{sT+4}:{sT+5}], vcc')
        a(f's_cbranch_execz {L}_f2s{it}')
        a(f'buffer_store_dwordx4 v[{TMP+4}:{TMP+7}], v{TMP+1}, {WS}, 0 offen')
        a(f'{L}_f2s{it}:')
        a(f's_mov_b64 exec, s[{sT+4}:{sT+5}]')
        a(f's_add_u32 s{sT}, s{sT}, 4096')
    a(f'{L}_filled2:')
    for r in range(4): a(f'v_mov_b32 v{TMP+8+r}, 0')
    a(f's_lshl_b32 s{sT}, s{sQ}, 11')
    a(f's_add_u32 s{sT}, s{sT}, {FLAG_OFF}')
    a(f'v_cmp_gt_u32 vcc, 2048, v{TMP}')
    a(f's_and_saveexec_b64 s[{sT+4}:{sT+5}], vcc')
    a(f's_cbranch_execz {L}_flz')
    a(f'buffer_store_dwordx4 v[{TMP+8}:{TMP+11}], v{TMP}, {WS}, s{sT} offen')
    a(f'{L}_flz:')
    a(f's_mov_b64 exec, s[{sT+4}:{sT+5}]')
    a(f's_cmp_lg_u32 s{sQ}, 0')
    a(f's_cbranch_scc1 {L}_exit')
    for rnd in range(2):
        a(f'v_add_u32 v{TMP+1}, {256*rnd}, v0')
        a(f'v_and_b32 v{TMP+2}, 7, v{TMP+1}')
        a(f'v_mul_u32_u24 v{TMP+2}, 896, v{TMP+2}')
        a(f'v_lshrrev_b32 v{TMP+3}, 3, v{TMP+1}')
        a(f'v_lshl_add_u32 v{TMP+2}, v{TMP+3}, 4, v{TMP+2}')
        a(f'v_lshlrev_b32 v{TMP+1}, 4, v{TMP+1}')
        a(f'v_cmp_gt_u32 vcc, 7168, v{TMP+1}')
        a(f's_and_saveexec_b64 s[{sT+2}:{sT+3}], vcc')
        a(f's_cbranch_execz {L}_m0skip{rnd}')
        a(f'buffer_load_dwordx4 v[{TMP+4}:{TMP+7}], v{TMP+2}, s[{M0_}:{M0_+3}], 0 offen')
        a('s_waitcnt vmcnt(0)')
        a(f's_mov_b32 s{sT}, {MEMF_OFF}')
        a(f'buffer_store_dwordx4 v[{TMP+4}:{TMP+7}], v{TMP+1}, {WS}, s{sT} offen')
        a(f's_mov_b32 s{sT}, {MEMG_OFF}')
        a(f'buffer_store_dwordx4 v[{TMP+4}:{TMP+7}], v{TMP+1}, {WS}, s{sT} offen')
        a(f'{L}_m0skip{rnd}:')
        a(f's_mov_b64 exec, s[{sT+2}:{sT+3}]')
    a(f'{L}_exit:')
    a('s_endpgm')

if __name__ == '__main__':
    a = Asm(); emit_prep(a)
    txt = assemble_file([('prep_kernel', 256, 256, 32768)], [('prep_kernel', a.text(), 512, 256)])
    open('prep.s', 'w').write(txt)
    import subprocess
    r = subprocess.run(['clang', '-x', 'assembler', '-target', 'amdgcn-amd-amdhsa', '-mcpu=gfx950', '-c', 'prep.s', '-o', 'prep.o'], capture_output=True, text=True)
    print(r.returncode, r.stderr[:3000], len(txt.splitlines()))
    print((P_OFF+P_SZ-MEMF_OFF-MEMF_STEP), (P_OFF+P_SZ-MEMF_OFF-MEMF_STEP) % 4096, (MEMF_OFF+MEMF_STEP) % 16)
```

```python
from common import *

def emit_prep(a, L='PR', tl=False):
    WSR, W1, W2, XS_, M0_ = 4, 8, 12, 16, 20
    WS = f's[{WSR}:{WSR+3}]'
    sW, sM, sH, sKK, sT = 24, 25, 26, 27, 28
    if tl: a('s_memrealtime s[80:81]')
    a(f'''
s_cmp_ge_u32 s2, 256
s_cbranch_scc1 {L}_exit2
s_load_dwordx2 s[{WSR}:{WSR+1}], s[0:1], {KA_WS}
v_lshrrev_b32 v1, 6, v0
s_nop 0
v_readfirstlane_b32 s{sW}, v1
v_and_b32 v1, 63, v0              ; lane
s_cmp_ge_u32 s2, 224
s_cbranch_scc1 {L}_ln
; ---------------- P2: A' / B fragments
s_and_b32 s{sT}, s2, 7
s_lshr_b32 s{sT+1}, s2, 3
s_mul_i32 s{sT+2}, s{sT+1}, 9363
s_lshr_b32 s{sT+2}, s{sT+2}, 16
s_mul_i32 s{sKK}, s{sT+2}, 7
s_sub_u32 s{sKK}, s{sT+1}, s{sKK}
s_and_b32 s{sM}, s{sT+2}, 1
s_lshr_b32 s{sT+2}, s{sT+2}, 1
s_lshl_b32 s{sH}, s{sT}, 1
s_add_u32 s{sH}, s{sH}, s{sT+2}
s_cmp_eq_u32 s{sM}, 0
s_cbranch_scc0 {L}_ptrB
s_load_dwordx2 s[{W1}:{W1+1}], s[0:1], {KA_WQ}
s_load_dwordx2 s[{W2}:{W2+1}], s[0:1], {KA_WK}
s_branch {L}_ptr
{L}_ptrB:
s_load_dwordx2 s[{W1}:{W1+1}], s[0:1], {KA_WV}
s_load_dwordx2 s[{W2}:{W2+1}], s[0:1], {KA_WO}
{L}_ptr:
s_waitcnt lgkmcnt(0)''')
    srd_fin(a, WSR, WS_BYTES); srd_fin(a, W1, 3670016); srd_fin(a, W2, 3670016)
    VL, VL16, VA, VB, VT, VT2, VTR, VTRB = 1, 2, 3, 4, 5, 6, 7, 8
    BALL, ACC = 16, 240
    a(f'v_lshlrev_b32 v{VL16}, 4, v{VL}')
    a(f'v_and_b32 v{VT}, 15, v{VL}')
    key_of_rho(a, VA, VT, VT2, None)
    a(f'v_lshlrev_b32 v{VA}, 13, v{VA}')
    a(f'v_lshrrev_b32 v{VT2}, 4, v{VL}')
    a(f'v_lshl_add_u32 v{VA}, v{VT2}, 4, v{VA}')
    a(f's_lshl_b32 s{sT}, s{sKK}, 19')
    a(f's_lshl_b32 s{sT+1}, s{sH}, 9')
    a(f's_add_u32 s{sT}, s{sT}, s{sT+1}')
    cnt = [0]
    def vm(text):
        a(text); cnt[0] += 1
        if cnt[0] % 24 == 0 and cnt[0] >= 48: a('s_waitcnt vmcnt(36)')
    def aloads():
        for rh in range(2):
            for XY in range(2):
                a(f's_add_u32 s{sT+2}, s{sT}, {(32*rh+2*XY)*8192}')
                for ks in range(8):
                    b = ((rh*2+XY)*8+ks)*4
                    vm(f'buffer_load_dwordx4 a[{b}:{b+3}], v{VA}, s[{W1}:{W1+3}], s{sT+2} offen offset:{ks*64}')
    a(f's_mul_i32 s{sT+3}, s{sH}, 28')
    a(f's_mul_i32 s{sT+4}, s{sW}, 7')
    a(f's_add_u32 s{sT+3}, s{sT+3}, s{sT+4}')
    a(f's_mul_i32 s{sT+3}, s{sT+3}, 7')
    a(f's_add_u32 s{sT+3}, s{sT+3}, s{sKK}')
    a(f's_lshl_b32 s{sT+3}, s{sT+3}, 11')
    a(f's_mul_i32 s{sT+5}, s{sM}, {BF_OFF}')
    a(f's_add_u32 s{sT+3}, s{sT+3}, s{sT+5}')
    sOUT = sT+3
    def mfmas(bfn):
        for t in range(4):
            for ks in range(8):
                c = '0' if ks == 0 else f'v[{ACC+4*t}:{ACC+4*t+3}]'
                ab = (t*8+ks)*4
                a(f'v_mfma_f32_16x16x32_bf16 v[{ACC+4*t}:{ACC+4*t+3}], a[{ab}:{ab+3}], {bfn(ks)}, {c}')
    def epilogue(scale):
        a('s_nop 7')
        if scale:
            a(f'v_mov_b32 v{VT}, {hex(f32(LOG2E/16))}')
            for r in range(16): a(f'v_mul_f32 v{ACC+r}, v{ACC+r}, v{VT}')
        for rh in range(2):
            x, y = ACC + 8*rh, ACC + 8*rh + 4
            o = 8 + 4*rh
            a(f'v_cvt_pk_bf16_f32 v{o}, v{x}, v{x+1}')
            a(f'v_cvt_pk_bf16_f32 v{o+1}, v{x+2}, v{x+3}')
            a(f'v_cvt_pk_bf16_f32 v{o+2}, v{y}, v{y+1}')
            a(f'v_cvt_pk_bf16_f32 v{o+3}, v{y+2}, v{y+3}')
            a(f'buffer_store_dwordx4 v[{o}:{o+3}], v{VL16}, {WS}, s{sOUT} offen offset:{rh*1024}')
        a('s_nop 2')
        a(f's_add_u32 s{sOUT}, s{sOUT}, {7*2048}')
    a(f's_cmp_eq_u32 s{sM}, 0')
    a(f's_cbranch_scc0 {L}_matB')
    a(f'v_and_b32 v{VT}, 15, v{VL}')
    a(f'v_lshlrev_b32 v{VB}, 13, v{VT}')
    a(f'v_lshrrev_b32 v{VT2}, 4, v{VL}')
    a(f'v_lshl_add_u32 v{VB}, v{VT2}, 4, v{VB}')
    a(f's_mul_i32 s{sT+4}, s{sW}, {7*16*8192}')
    a(f's_lshl_b32 s{sT+5}, s{sH}, 9')
    a(f's_add_u32 s{sT+4}, s{sT+4}, s{sT+5}')
    cnt[0] = 0
    aloads()
    for cti in range(7):
        for ks in range(8):
            b = BALL + 32*cti + 4*ks
            vm(f'buffer_load_dwordx4 v[{b}:{b+3}], v{VB}, s[{W2}:{W2+3}], s{sT+4} offen offset:{ks*64}')
        a(f's_add_u32 s{sT+4}, s{sT+4}, {16*8192}')
    for cti in range(7):
        a(f's_waitcnt vmcnt({min(63, 8*(6-cti) + 2*cti)})')
        mfmas(lambda ks, cti=cti: f'v[{BALL+32*cti+4*ks}:{BALL+32*cti+4*ks+3}]')
        epilogue(True)
    a(f's_branch {L}_exit')
    a(f'{L}_matB:')
    a(f'v_lshrrev_b32 v{VT}, 1, v{VL}')
    a(f'v_mul_u32_u24 v{VB}, 896, v{VT}')
    a(f'v_and_b32 v{VT}, 1, v{VL}')
    a(f'v_lshl_add_u32 v{VB}, v{VT}, 4, v{VB}')
    a(f's_mul_i32 s{sT+4}, s{sH}, 229376')
    a(f's_mul_i32 s{sT+5}, s{sW}, {7*32}')
    a(f's_add_u32 s{sT+4}, s{sT+4}, s{sT+5}')
    a(f's_lshl_b32 s{sT+5}, s{sW}, 13')
    VLW = 16+224 if False else 7
    a(f'v_add_u32 v{VLW}, s{sT+5}, v{VL16}')
    a(f'v_lshrrev_b32 v{VT}, 4, v{VL}')
    a(f'v_lshlrev_b32 v{VT}, 3, v{VT}')
    a(f'v_bfe_u32 v{VT2}, v{VL}, 2, 2')
    a(f'v_add_u32 v{VT}, v{VT}, v{VT2}')
    a(f'v_lshlrev_b32 v{VT}, 5, v{VT}')
    a(f'v_and_b32 v{VT2}, 3, v{VL}')
    a(f'v_lshl_add_u32 v{VT}, v{VT2}, 3, v{VT}')
    VTR = 6
    a(f'v_add_u32 v{VTR}, s{sT+5}, v{VT}')
    cnt[0] = 0
    aloads()
    for cti in range(7):
        for ks in range(8):
            a(f's_add_u32 s{sT+6}, s{sT+4}, {ks*28672 + cti*32}')
            b = BALL + 32*cti + 4*ks
            vm(f'buffer_load_dwordx4 v[{b}:{b+3}], v{VB}, s[{W2}:{W2+3}], s{sT+6} offen')
    for cti in range(7):
        a(f's_waitcnt vmcnt({min(63, 8*(6-cti) + 2*cti)})')
        for ks in range(8):
            b = BALL + 32*cti + 4*ks
            a(f'ds_write_b128 v{VLW}, v[{b}:{b+3}] offset:{ks*1024}')
        for ks in range(8):
            b = 128 + 4*ks
            a(f'ds_read_b64_tr_b16 a[{b}:{b+1}], v{VTR} offset:{ks*1024}')
            a(f'ds_read_b64_tr_b16 a[{b+2}:{b+3}], v{VTR} offset:{ks*1024+128}')
        a('s_waitcnt lgkmcnt(0)')
        mfmas(lambda ks: f'a[{128+4*ks}:{128+4*ks+3}]')
        epilogue(False)
    a(f's_branch {L}_exit')
    a(f'{L}_ln:')
    a(f's_load_dwordx2 s[{XS_}:{XS_+1}], s[0:1], {KA_X}')
    a(f's_load_dwordx2 s[{M0_}:{M0_+1}], s[0:1], {KA_MEM0}')
    a('s_waitcnt lgkmcnt(0)')
    srd_fin(a, WSR, WS_BYTES); srd_fin(a, XS_, 1835008); srd_fin(a, M0_, 7168)
    sQ, sS, sXY = 26, 27, 25
    a(f's_sub_u32 s{sQ}, s2, 224')
    a(f's_lshr_b32 s{sS}, s{sW}, 1')
    a(f's_lshl_b32 s{sT}, s{sQ}, 1')
    a(f's_add_u32 s{sS}, s{sS}, s{sT}')
    a(f's_and_b32 s{sXY}, s{sW}, 1')
    VKEY, VG, VXA, VQ, VPO, VS, VM, VR = 2, 3, 4, 5, 6, 7, 8, 9
    RAWX, FX, TMP = 16, 72, 184
    a(f'v_and_b32 v{TMP}, 15, v{VL}')
    key_of_rho(a, VKEY, TMP, TMP+1, None)
    a(f's_lshl_b32 s{sT}, s{sXY}, 1')
    a(f'v_add_u32 v{VKEY}, s{sT}, v{VKEY}')
    a(f'v_lshrrev_b32 v{VG}, 4, v{VL}')
    a(f'v_mul_u32_u24 v{VXA}, 896, v{VKEY}')
    a(f'v_lshrrev_b32 v{TMP}, 1, v{VG}')
    a(f'v_lshl_add_u32 v{VXA}, v{TMP}, 5, v{VXA}')
    a(f'v_and_b32 v{TMP+1}, 1, v{VG}')
    a(f'v_lshl_add_u32 v{VXA}, v{TMP+1}, 3, v{VXA}')
    a(f's_mul_i32 s{sT}, s{sS}, {32*896}')
    for kb in range(14):
        for p in range(2):
            b = RAWX + (kb*2+p)*2
            a(f'buffer_load_dwordx2 v[{b}:{b+1}], v{VXA}, s[{XS_}:{XS_+3}], s{sT} offen offset:{(32*kb+8*p)*2}')
    a(f'v_lshlrev_b32 v{VPO}, 10, v{TMP}')
    a(f'v_lshl_add_u32 v{VPO}, v{VKEY}, 4, v{VPO}')
    a(f'v_lshl_add_u32 v{VPO}, v{TMP+1}, 3, v{VPO}')
    a(f'v_lshlrev_b32 v{VQ}, 4, v{VL}')
    a('s_waitcnt vmcnt(0)')
    for i in range(56):
        a(f'v_lshlrev_b32 v{FX+2*i}, 16, v{RAWX+i}')
        a(f'v_and_b32 v{FX+2*i+1}, 0xffff0000, v{RAWX+i}')
    a(f'v_mov_b32 v{VS}, 0')
    for i in range(0, 112, 2):
        a(f'v_add_f32 v{TMP}, v{FX+i}, v{FX+i+1}')
        a(f'v_add_f32 v{VS}, v{VS}, v{TMP}')
    rowsum4(a, VS, TMP)
    a(f'v_mul_f32 v{VM}, {hex(f32(1/448))}, v{VS}')
    a(f'v_mov_b32 v{VS}, 0')
    for i in range(112):
        a(f'v_sub_f32 v{FX+i}, v{FX+i}, v{VM}')
        a(f'v_fmac_f32 v{VS}, v{FX+i}, v{FX+i}')
    rowsum4(a, VS, TMP)
    a(f'v_mov_b32 v{TMP}, {hex(f32(1e-5))}')
    a(f'v_fmac_f32 v{TMP}, {hex(f32(1/448))}, v{VS}')
    a(f'v_rsq_f32 v{VR}, v{TMP}')
    a('s_nop 0')
    for i in range(112): a(f'v_mul_f32 v{FX+i}, v{FX+i}, v{VR}')
    a(f's_lshl_b32 s{sT}, s{sS}, 1')
    a(f's_add_u32 s{sT}, s{sT}, s{sXY}')
    a(f's_mul_i32 s{sT}, s{sT}, {14*1024}')
    a(f's_add_u32 s{sT}, s{sT}, {XNQ_OFF}')
    a(f's_mul_i32 s{sT+1}, s{sS}, {XNP_STEP}')
    a(f's_add_u32 s{sT+1}, s{sT+1}, {XNP_OFF}')
    for kb in range(14):
        x = FX + kb*8; y = x + 4
        q = TMP + 4*(kb & 1); pp = TMP + 8 + 4*(kb & 1)
        a(f'v_cvt_pk_bf16_f32 v{q}, v{x}, v{x+1}')
        a(f'v_cvt_pk_bf16_f32 v{q+1}, v{y}, v{y+1}')
        a(f'v_cvt_pk_bf16_f32 v{q+2}, v{x+2}, v{x+3}')
        a(f'v_cvt_pk_bf16_f32 v{q+3}, v{y+2}, v{y+3}')
        a(f'v_mov_b32 v{pp}, v{q}')
        a(f'v_mov_b32 v{pp+1}, v{q+2}')
        a(f'v_mov_b32 v{pp+2}, v{q+1}')
        a(f'v_mov_b32 v{pp+3}, v{q+3}')
        if kb*1024 >= 4096 and (kb*1024) % 4096 == 0: a(f's_add_u32 s{sT}, s{sT}, 4096')
        a(f'buffer_store_dwordx4 v[{q}:{q+3}], v{VQ}, {WS}, s{sT} offen offset:{(kb*1024) % 4096}')
        a(f's_add_u32 s{sT+2}, s{sT+1}, {4*kb*512}')
        a(f'buffer_store_dwordx2 v[{pp}:{pp+1}], v{VPO}, {WS}, s{sT+2} offen')
        a(f'buffer_store_dwordx2 v[{pp+2}:{pp+3}], v{VPO}, {WS}, s{sT+2} offen offset:512')
        if kb & 1: a('s_waitcnt vmcnt(0)')
    fill0 = MEMF_OFF + MEMF_STEP; filln = P_OFF + P_SZ - fill0
    per = (filln + 31) // 32; per = (per + 4095) // 4096 * 4096
    a(f'v_lshlrev_b32 v{TMP}, 4, v0')
    for r in range(4): a(f'v_mov_b32 v{TMP+4+r}, -1')
    a(f's_mul_i32 s{sT}, s{sQ}, {per}')
    a(f's_add_u32 s{sT}, s{sT}, {fill0}')
    a(f's_mov_b32 s{sT+1}, {P_OFF + P_SZ}')
    for it in range(per // 4096):
        a(f's_cmp_ge_u32 s{sT}, s{sT+1}')
        a(f's_cbranch_scc1 {L}_filled')
        a(f'buffer_store_dwordx4 v[{TMP+4}:{TMP+7}], v{TMP}, {WS}, s{sT} offen')
        a(f's_add_u32 s{sT}, s{sT}, 4096')
    a(f'{L}_filled:')
    assert filln % 4096 == 0 or True
    a(f's_mul_i32 s{sT}, s{sQ}, 14336')
    a(f's_add_u32 s{sT}, s{sT}, {MEMG_OFF + MEMF_STEP}')
    a(f's_mov_b32 s{sT+1}, {MEMG_OFF + MEMG_SZ}')
    for it in range(4):
        a(f's_cmp_ge_u32 s{sT}, s{sT+1}')
        a(f's_cbranch_scc1 {L}_filled2')
        a(f'v_add_u32 v{TMP+1}, s{sT}, v{TMP}')
        a(f's_add_u32 s{sT+2}, s{sT}, {14336 - it*4096}')
        a(f's_min_u32 s{sT+2}, s{sT+2}, s{sT+1}')
        a(f'v_cmp_gt_u32 vcc, s{sT+2}, v{TMP+1}')
        a(f's_and_saveexec_b64 s[{sT+4}:{sT+5}], vcc')
        a(f's_cbranch_execz {L}_f2s{it}')
        a(f'buffer_store_dwordx4 v[{TMP+4}:{TMP+7}], v{TMP+1}, {WS}, 0 offen')
        a(f'{L}_f2s{it}:')
        a(f's_mov_b64 exec, s[{sT+4}:{sT+5}]')
        a(f's_add_u32 s{sT}, s{sT}, 4096')
    a(f'{L}_filled2:')
    for r in range(4): a(f'v_mov_b32 v{TMP+8+r}, 0')
    a(f's_lshl_b32 s{sT}, s{sQ}, 11')
    a(f's_add_u32 s{sT}, s{sT}, {FLAG_OFF}')
    a(f'v_cmp_gt_u32 vcc, 2048, v{TMP}')
    a(f's_and_saveexec_b64 s[{sT+4}:{sT+5}], vcc')
    a(f's_cbranch_execz {L}_flz')
    a(f'buffer_store_dwordx4 v[{TMP+8}:{TMP+11}], v{TMP}, {WS}, s{sT} offen')
    a(f'{L}_flz:')
    a(f's_mov_b64 exec, s[{sT+4}:{sT+5}]')
    a(f's_cmp_lg_u32 s{sQ}, 0')
    a(f's_cbranch_scc1 {L}_exit')
    for rnd in range(2):
        a(f'v_add_u32 v{TMP+1}, {256*rnd}, v0')
        a(f'v_and_b32 v{TMP+2}, 7, v{TMP+1}')
        a(f'v_mul_u32_u24 v{TMP+2}, 896, v{TMP+2}')
        a(f'v_lshrrev_b32 v{TMP+3}, 3, v{TMP+1}')
        a(f'v_lshl_add_u32 v{TMP+2}, v{TMP+3}, 4, v{TMP+2}')
        a(f'v_lshlrev_b32 v{TMP+1}, 4, v{TMP+1}')
        a(f'v_cmp_gt_u32 vcc, 7168, v{TMP+1}')
        a(f's_and_saveexec_b64 s[{sT+2}:{sT+3}], vcc')
        a(f's_cbranch_execz {L}_m0skip{rnd}')
        a(f'buffer_load_dwordx4 v[{TMP+4}:{TMP+7}], v{TMP+2}, s[{M0_}:{M0_+3}], 0 offen')
        a('s_waitcnt vmcnt(0)')
        a(f's_mov_b32 s{sT}, {MEMF_OFF}')
        a(f'buffer_store_dwordx4 v[{TMP+4}:{TMP+7}], v{TMP+1}, {WS}, s{sT} offen')
        a(f's_mov_b32 s{sT}, {MEMG_OFF}')
        a(f'buffer_store_dwordx4 v[{TMP+4}:{TMP+7}], v{TMP+1}, {WS}, s{sT} offen')
        a(f'{L}_m0skip{rnd}:')
        a(f's_mov_b64 exec, s[{sT+2}:{sT+3}]')
    a(f'{L}_exit:')
    if tl:
        a('s_waitcnt vmcnt(0)')
        a('s_memrealtime s[82:83]')
        a('s_waitcnt lgkmcnt(0)')
        a('s_lshl_b32 s90, s2, 3')
        a(f's_add_u32 s90, s90, {TS_OFF + 0xA0000}')
        a('v_mov_b32 v4, s80'); a('v_mov_b32 v5, s82'); a('v_mov_b32 v10, 0')
        a('s_mov_b64 exec, 1')
        a('buffer_store_dwordx2 v[4:5], v10, s[4:7], s90 offen')
        a('s_waitcnt vmcnt(0)')
    a(f'{L}_exit2:')
    a('s_endpgm')

if __name__ == '__main__':
    a = Asm(); emit_prep(a)
    txt = assemble_file([('prep_kernel', 256, 256, 32768)], [('prep_kernel', a.text(), 512, 256)])
    open('prep.s', 'w').write(txt)
    import subprocess
    r = subprocess.run(['clang', '-x', 'assembler', '-target', 'amdgcn-amd-amdhsa', '-mcpu=gfx950', '-c', 'prep.s', '-o', 'prep.o'], capture_output=True, text=True)
    print(r.returncode, r.stderr[:3000], len(txt.splitlines()))
    print((P_OFF+P_SZ-MEMF_OFF-MEMF_STEP), (P_OFF+P_SZ-MEMF_OFF-MEMF_STEP) % 4096, (MEMF_OFF+MEMF_STEP) % 16)
```

```python
from common import *

def emit_prep(a, L='PR', tl=False):
    WSR, W1, W2, XS_, M0_ = 4, 8, 12, 16, 20
    WS = f's[{WSR}:{WSR+3}]'
    sW, sM, sH, sKK, sT = 24, 25, 26, 27, 28
    if tl: a('s_memrealtime s[80:81]')
    a(f'''
s_cmp_ge_u32 s2, 256
s_cbranch_scc1 {L}_exit2
s_load_dwordx2 s[{WSR}:{WSR+1}], s[0:1], {KA_WS}
v_lshrrev_b32 v1, 6, v0
s_nop 0
v_readfirstlane_b32 s{sW}, v1
v_and_b32 v1, 63, v0              ; lane
s_cmp_ge_u32 s2, 224
s_cbranch_scc1 {L}_ln
; ---------------- P2: A' / B fragments
s_and_b32 s{sT}, s2, 7
s_lshr_b32 s{sT+1}, s2, 3
s_mul_i32 s{sT+2}, s{sT+1}, 9363
s_lshr_b32 s{sT+2}, s{sT+2}, 16
s_mul_i32 s{sKK}, s{sT+2}, 7
s_sub_u32 s{sKK}, s{sT+1}, s{sKK}
s_and_b32 s{sM}, s{sT+2}, 1
s_lshr_b32 s{sT+2}, s{sT+2}, 1
s_lshl_b32 s{sH}, s{sT}, 1
s_add_u32 s{sH}, s{sH}, s{sT+2}
s_cmp_eq_u32 s{sM}, 0
s_cbranch_scc0 {L}_ptrB
s_load_dwordx2 s[{W1}:{W1+1}], s[0:1], {KA_WQ}
s_load_dwordx2 s[{W2}:{W2+1}], s[0:1], {KA_WK}
s_branch {L}_ptr
{L}_ptrB:
s_load_dwordx2 s[{W1}:{W1+1}], s[0:1], {KA_WV}
s_load_dwordx2 s[{W2}:{W2+1}], s[0:1], {KA_WO}
{L}_ptr:
s_waitcnt lgkmcnt(0)''')
    srd_fin(a, WSR, WS_BYTES); srd_fin(a, W1, 3670016); srd_fin(a, W2, 3670016)
    VL, VL16, VG, VT, VT2, VAW, VAR, VBW, VBR = 1, 2, 3, 4, 5, 6, 7, 8, 9
    RAW, ACC = 16, 240
    LA, LB = 0, 33792
    a(f'v_lshlrev_b32 v{VL16}, 4, v{VL}')
    a(f'v_lshrrev_b32 v{VT}, 5, v{VL}')
    a(f'v_lshlrev_b32 v{VG}, 13, v{VT}')
    a(f'v_and_b32 v{VT2}, 31, v{VL}')
    a(f'v_lshl_add_u32 v{VG}, v{VT2}, 4, v{VG}')
    a(f'v_mul_u32_u24 v{VAW}, 528, v{VT}')
    a(f'v_lshl_add_u32 v{VAW}, v{VT2}, 4, v{VAW}')
    a(f's_lshl_b32 s{sT}, s{sKK}, 19')
    a(f's_lshl_b32 s{sT+1}, s{sH}, 9')
    a(f's_add_u32 s{sT}, s{sT}, s{sT+1}')
    a(f's_lshl_b32 s{sT+1}, s{sW}, 17')
    a(f's_add_u32 s{sT}, s{sT}, s{sT+1}')
    AR = RAW + 192
    for i in range(8):
        a(f's_add_u32 s{sT+2}, s{sT}, {2*i*8192}')
        a(f'buffer_load_dwordx4 v[{AR+4*i}:{AR+4*i+3}], v{VG}, s[{W1}:{W1+3}], s{sT+2} offen')
    a(f's_mul_i32 s{sT+3}, s{sH}, 28')
    a(f's_mul_i32 s{sT+4}, s{sW}, 7')
    a(f's_add_u32 s{sT+3}, s{sT+3}, s{sT+4}')
    a(f's_mul_i32 s{sT+3}, s{sT+3}, 7')
    a(f's_add_u32 s{sT+3}, s{sT+3}, s{sKK}')
    a(f's_lshl_b32 s{sT+3}, s{sT+3}, 11')
    a(f's_mul_i32 s{sT+5}, s{sM}, {BF_OFF}')
    a(f's_add_u32 s{sT+3}, s{sT+3}, s{sT+5}')
    sOUT = sT+3
    a(f'v_and_b32 v{VT}, 15, v{VL}')
    key_of_rho(a, VAR, VT, VT2, None)
    a(f'v_mul_u32_u24 v{VAR}, 528, v{VAR}')
    a(f'v_lshrrev_b32 v{VT2}, 4, v{VL}')
    a(f'v_lshl_add_u32 v{VAR}, v{VT2}, 4, v{VAR}')
    def stage_A():
        a(f's_mul_i32 s{sT+6}, s{sW}, {16*528}')
        a(f'v_add_u32 v{VT}, s{sT+6}, v{VAW}')
        for i in range(8):
            a(f'ds_write_b128 v{VT}, v[{AR+4*i}:{AR+4*i+3}] offset:{LA + 2*i*528}')
        a('s_waitcnt lgkmcnt(0)')
        a('s_barrier')
        for rh in range(2):
            for XY in range(2):
                for ks in range(8):
                    b = ((rh*2+XY)*8+ks)*4
                    a(f'ds_read_b128 a[{b}:{b+3}], v{VAR} offset:{LA + (32*rh+2*XY)*528 + ks*64}')
                a('s_waitcnt lgkmcnt(0)')
    def store_frag(accs, rh, o):
        x, y = accs
        a(f'v_cvt_pk_bf16_f32 v{o}, v{x}, v{x+1}')
        a(f'v_cvt_pk_bf16_f32 v{o+1}, v{x+2}, v{x+3}')
        a(f'v_cvt_pk_bf16_f32 v{o+2}, v{y}, v{y+1}')
        a(f'v_cvt_pk_bf16_f32 v{o+3}, v{y+2}, v{y+3}')
        a(f'buffer_store_dwordx4 v[{o}:{o+3}], v{VL16}, {WS}, s{sOUT} offen offset:{rh*1024}')
    a(f's_cmp_eq_u32 s{sM}, 0')
    a(f's_cbranch_scc0 {L}_matB')
    a(f's_mul_i32 s{sT+4}, s{sW}, {7*16*8192}')
    a(f's_lshl_b32 s{sT+5}, s{sH}, 9')
    a(f's_add_u32 s{sT+4}, s{sT+4}, s{sT+5}')
    for cti in range(6):
        for i in range(8):
            a(f's_add_u32 s{sT+2}, s{sT+4}, {(cti*16+2*i)*8192}')
            b = RAW + 32*cti + 4*i
            a(f'buffer_load_dwordx4 v[{b}:{b+3}], v{VG}, s[{W2}:{W2+3}], s{sT+2} offen')
        if cti == 4: a('s_waitcnt vmcnt(40)')
    a('s_waitcnt vmcnt(48)')
    stage_A()
    for i in range(8):
        a(f's_add_u32 s{sT+2}, s{sT+4}, {(6*16+2*i)*8192}')
        a(f'buffer_load_dwordx4 v[{AR+4*i}:{AR+4*i+3}], v{VG}, s[{W2}:{W2+3}], s{sT+2} offen')
    a(f's_mul_i32 s{sT+6}, s{sW}, {16*528}')
    a(f's_add_u32 s{sT+6}, s{sT+6}, {LB}')
    a(f'v_add_u32 v{VBW}, s{sT+6}, v{VAW}')
    a(f'v_and_b32 v{VT}, 15, v{VL}')
    a(f'v_mul_u32_u24 v{VBR}, 528, v{VT}')
    a(f'v_lshrrev_b32 v{VT2}, 4, v{VL}')
    a(f'v_lshl_add_u32 v{VBR}, v{VT2}, 4, v{VBR}')
    a(f'v_add_u32 v{VBR}, s{sT+6}, v{VBR}')
    a(f'v_mov_b32 v{VT}, {hex(f32(LOG2E/16))}')
    nst = 0
    for cti in range(7):
        younger = (8*(5-cti) + 8 if cti < 6 else 0) + nst
        a(f's_waitcnt vmcnt({min(63, younger)})')
        rb = RAW + 32*cti if cti < 6 else AR
        for i in range(8):
            a(f'ds_write_b128 v{VBW}, v[{rb+4*i}:{rb+4*i+3}] offset:{2*i*528}')
        for ks in range(8):
            a(f'ds_read_b128 a[{128+4*ks}:{128+4*ks+3}], v{VBR} offset:{ks*64}')
        a('s_waitcnt lgkmcnt(0)')
        for t in range(4):
            for ks in range(8):
                c = '0' if ks == 0 else f'v[{ACC+4*t}:{ACC+4*t+3}]'
                ab = (t*8+ks)*4
                a(f'v_mfma_f32_16x16x32_bf16 v[{ACC+4*t}:{ACC+4*t+3}], a[{ab}:{ab+3}], a[{128+4*ks}:{128+4*ks+3}], {c}')
        a('s_nop 7')
        for r in range(16): a(f'v_mul_f32 v{ACC+r}, v{ACC+r}, v{VT}')
        for rh in range(2): store_frag((ACC+8*rh, ACC+8*rh+4), rh, 10 + 0*rh if rh == 0 else 12+2)
        a('s_nop 2')
        a(f's_add_u32 s{sOUT}, s{sOUT}, {7*2048}')
        nst += 2
    a(f's_branch {L}_exit')
    a(f'{L}_matB:')
    a(f's_mul_i32 s{sT+4}, s{sH}, 229376')
    a(f's_mul_i32 s{sT+5}, s{sW}, 7168')
    a(f's_add_u32 s{sT+4}, s{sT+4}, s{sT+5}')
    for ks in range(6):
        a(f's_add_u32 s{sT+2}, s{sT+4}, {ks*28672}')
        a(f's_add_u32 s{sT+5}, s{sT+2}, 4096')
        for i in range(7):
            b = RAW + 28*ks + 4*i
            a(f'buffer_load_dwordx4 v[{b}:{b+3}], v{VL16}, s[{W2}:{W2+3}], s{sT+2 if i < 4 else sT+5} offen offset:{(i*1024) % 4096}')
    a('s_waitcnt vmcnt(42)')
    stage_A()
    for ks, base in ((6, RAW + 168), (7, AR + 0)):
        pass
    ACCB = 128
    a(f's_mul_i32 s{sT+6}, s{sW}, 7168')
    a(f's_add_u32 s{sT+6}, s{sT+6}, {LB}')
    a(f'v_add_u32 v{VBW}, s{sT+6}, v{VL16}')
    a(f'v_lshrrev_b32 v{VT}, 4, v{VL}')
    a(f'v_lshlrev_b32 v{VT}, 3, v{VT}')
    a(f'v_bfe_u32 v{VT2}, v{VL}, 2, 2')
    a(f'v_add_u32 v{VT}, v{VT}, v{VT2}')
    a(f'v_mul_u32_u24 v{VT}, 896, v{VT}')
    a(f'v_and_b32 v{VT2}, 3, v{VL}')
    a(f'v_lshl_add_u32 v{VT}, v{VT2}, 3, v{VT}')
    a(f's_mul_i32 s{sT+6}, s{sW}, {7*32}')
    a(f's_add_u32 s{sT+6}, s{sT+6}, {LB}')
    a(f'v_add_u32 v{VBR}, s{sT+6}, v{VT}')
    BF_ = 208
    slab_reg = lambda ks: RAW + 28*(ks % 6)
    for ks in range(8):
        buf = (ks & 1)*28672
        if ks < 6: a(f's_waitcnt vmcnt({7*(5-ks) + (7 if ks >= 1 and ks <= 2 else 0) + (7 if ks == 2 else 0) if False else 7*(5-ks) + (7*min(ks, 2))})')
        else: a(f's_waitcnt vmcnt({7*(7-ks)})')
        rb = slab_reg(ks)
        for i in range(7):
            a(f'ds_write_b128 v{VBW}, v[{rb+4*i}:{rb+4*i+3}] offset:{buf + i*1024}')
        a('s_waitcnt lgkmcnt(0)')
        if ks < 2:
            a(f's_add_u32 s{sT+2}, s{sT+4}, {(ks+6)*28672}')
            a(f's_add_u32 s{sT+5}, s{sT+2}, 4096')
            for i in range(7):
                a(f'buffer_load_dwordx4 v[{rb+4*i}:{rb+4*i+3}], v{VL16}, s[{W2}:{W2+3}], s{sT+2 if i < 4 else sT+5} offen offset:{(i*1024) % 4096}')
        a('s_barrier')
        for cti in range(7):
            a(f'ds_read_b64_tr_b16 v[{BF_+4*cti}:{BF_+4*cti+1}], v{VBR} offset:{buf + cti*32}')
            a(f'ds_read_b64_tr_b16 v[{BF_+4*cti+2}:{BF_+4*cti+3}], v{VBR} offset:{buf + cti*32 + 4*896}')
        a('s_waitcnt lgkmcnt(0)')
        for cti in range(7):
            for t in range(4):
                d = ACCB + (cti*4+t)*4
                c = '0' if ks == 0 else f'a[{d}:{d+3}]'
                ab = (t*8+ks)*4
                a(f'v_mfma_f32_16x16x32_bf16 a[{d}:{d+3}], a[{ab}:{ab+3}], v[{BF_+4*cti}:{BF_+4*cti+3}], {c}')
    a('s_nop 7')
    for cti in range(7):
        for r in range(16): a(f'v_accvgpr_read_b32 v{ACC+r}, a{ACCB+cti*16+r}')
        for rh in range(2): store_frag((ACC+8*rh, ACC+8*rh+4), rh, 10 if rh == 0 else 14 - 0)
        a('s_nop 2')
        a(f's_add_u32 s{sOUT}, s{sOUT}, {7*2048}')
    a(f's_branch {L}_exit')
    a(f'{L}_ln:')
    a(f's_load_dwordx2 s[{XS_}:{XS_+1}], s[0:1], {KA_X}')
    a(f's_load_dwordx2 s[{M0_}:{M0_+1}], s[0:1], {KA_MEM0}')
    a('s_waitcnt lgkmcnt(0)')
    srd_fin(a, WSR, WS_BYTES); srd_fin(a, XS_, 1835008); srd_fin(a, M0_, 7168)
    sQ, sS, sXY = 26, 27, 25
    a(f's_sub_u32 s{sQ}, s2, 224')
    a(f's_lshr_b32 s{sS}, s{sW}, 1')
    a(f's_lshl_b32 s{sT}, s{sQ}, 1')
    a(f's_add_u32 s{sS}, s{sS}, s{sT}')
    a(f's_and_b32 s{sXY}, s{sW}, 1')
    VKEY, VG, VXA, VQ, VPO, VS, VM, VR = 2, 3, 4, 5, 6, 7, 8, 9
    RAWX, FX, TMP = 16, 72, 184
    a(f'v_and_b32 v{TMP}, 15, v{VL}')
    key_of_rho(a, VKEY, TMP, TMP+1, None)
    a(f's_lshl_b32 s{sT}, s{sXY}, 1')
    a(f'v_add_u32 v{VKEY}, s{sT}, v{VKEY}')
    a(f'v_lshrrev_b32 v{VG}, 4, v{VL}')
    a(f'v_mul_u32_u24 v{VXA}, 896, v{VKEY}')
    a(f'v_lshrrev_b32 v{TMP}, 1, v{VG}')
    a(f'v_lshl_add_u32 v{VXA}, v{TMP}, 5, v{VXA}')
    a(f'v_and_b32 v{TMP+1}, 1, v{VG}')
    a(f'v_lshl_add_u32 v{VXA}, v{TMP+1}, 3, v{VXA}')
    VLN = TMP + 4
    a(f'v_lshlrev_b32 v{VLN}, 4, v{VL}')
    a(f's_mul_i32 s{sT}, s{sQ}, {64*896}')
    a(f's_mul_i32 s{sT+1}, s{sW}, 14336')
    a(f's_add_u32 s{sT}, s{sT}, s{sT+1}')
    for i in range(14):
        if i and i % 4 == 0: a(f's_add_u32 s{sT}, s{sT}, 4096')
        a(f'buffer_load_dwordx4 v[{FX+4*i}:{FX+4*i+3}], v{VLN}, s[{XS_}:{XS_+3}], s{sT} offen offset:{(i*1024) % 4096}')
    a(f'v_add_u32 v{VLN}, s{sT+1}, v{VLN}')
    a('s_waitcnt vmcnt(0)')
    for i in range(14):
        a(f'ds_write_b128 v{VLN}, v[{FX+4*i}:{FX+4*i+3}] offset:{i*1024}')
    a('s_waitcnt lgkmcnt(0)')
    a('s_barrier')
    a(f's_lshr_b32 s{sT}, s{sW}, 1')
    a(f's_mul_i32 s{sT}, s{sT}, {32*896}')
    a(f'v_add_u32 v{VXA}, s{sT}, v{VXA}')
    for kb in range(14):
        for p in range(2):
            b = RAWX + (kb*2+p)*2
            a(f'ds_read_b64 v[{b}:{b+1}], v{VXA} offset:{(32*kb+8*p)*2}')
    a(f'v_lshlrev_b32 v{VPO}, 10, v{TMP}')
    a(f'v_lshl_add_u32 v{VPO}, v{VKEY}, 4, v{VPO}')
    a(f'v_lshl_add_u32 v{VPO}, v{TMP+1}, 3, v{VPO}')
    a(f'v_lshlrev_b32 v{VQ}, 4, v{VL}')
    a('s_waitcnt lgkmcnt(0)')
    for i in range(56):
        a(f'v_lshlrev_b32 v{FX+2*i}, 16, v{RAWX+i}')
        a(f'v_and_b32 v{FX+2*i+1}, 0xffff0000, v{RAWX+i}')
    a(f'v_mov_b32 v{VS}, 0')
    for i in range(0, 112, 2):
        a(f'v_add_f32 v{TMP}, v{FX+i}, v{FX+i+1}')
        a(f'v_add_f32 v{VS}, v{VS}, v{TMP}')
    rowsum4(a, VS, TMP)
    a(f'v_mul_f32 v{VM}, {hex(f32(1/448))}, v{VS}')
    a(f'v_mov_b32 v{VS}, 0')
    for i in range(112):
        a(f'v_sub_f32 v{FX+i}, v{FX+i}, v{VM}')
        a(f'v_fmac_f32 v{VS}, v{FX+i}, v{FX+i}')
    rowsum4(a, VS, TMP)
    a(f'v_mov_b32 v{TMP}, {hex(f32(1e-5))}')
    a(f'v_fmac_f32 v{TMP}, {hex(f32(1/448))}, v{VS}')
    a(f'v_rsq_f32 v{VR}, v{TMP}')
    a('s_nop 0')
    for i in range(112): a(f'v_mul_f32 v{FX+i}, v{FX+i}, v{VR}')
    a(f's_lshl_b32 s{sT}, s{sS}, 1')
    a(f's_add_u32 s{sT}, s{sT}, s{sXY}')
    a(f's_mul_i32 s{sT}, s{sT}, {14*1024}')
    a(f's_add_u32 s{sT}, s{sT}, {XNQ_OFF}')
    a(f's_mul_i32 s{sT+1}, s{sS}, {XNP_STEP}')
    a(f's_add_u32 s{sT+1}, s{sT+1}, {XNP_OFF}')
    for kb in range(14):
        x = FX + kb*8; y = x + 4
        q = TMP + 4*(kb & 1); pp = TMP + 8 + 4*(kb & 1)
        a(f'v_cvt_pk_bf16_f32 v{q}, v{x}, v{x+1}')
        a(f'v_cvt_pk_bf16_f32 v{q+1}, v{y}, v{y+1}')
        a(f'v_cvt_pk_bf16_f32 v{q+2}, v{x+2}, v{x+3}')
        a(f'v_cvt_pk_bf16_f32 v{q+3}, v{y+2}, v{y+3}')
        a(f'v_mov_b32 v{pp}, v{q}')
        a(f'v_mov_b32 v{pp+1}, v{q+2}')
        a(f'v_mov_b32 v{pp+2}, v{q+1}')
        a(f'v_mov_b32 v{pp+3}, v{q+3}')
        if kb*1024 >= 4096 and (kb*1024) % 4096 == 0: a(f's_add_u32 s{sT}, s{sT}, 4096')
        a(f'buffer_store_dwordx4 v[{q}:{q+3}], v{VQ}, {WS}, s{sT} offen offset:{(kb*1024) % 4096}')
        a(f's_add_u32 s{sT+2}, s{sT+1}, {4*kb*512}')
        a(f'buffer_store_dwordx2 v[{pp}:{pp+1}], v{VPO}, {WS}, s{sT+2} offen')
        a(f'buffer_store_dwordx2 v[{pp+2}:{pp+3}], v{VPO}, {WS}, s{sT+2} offen offset:512')
        if kb & 1: a('s_waitcnt vmcnt(0)')
    fill0 = MEMF_OFF + MEMF_STEP; filln = P_OFF + P_SZ - fill0
    per = (filln + 31) // 32; per = (per + 4095) // 4096 * 4096
    a(f'v_lshlrev_b32 v{TMP}, 4, v0')
    for r in range(4): a(f'v_mov_b32 v{TMP+4+r}, -1')
    a(f's_mul_i32 s{sT}, s{sQ}, {per}')
    a(f's_add_u32 s{sT}, s{sT}, {fill0}')
    a(f's_mov_b32 s{sT+1}, {P_OFF + P_SZ}')
    for it in range(per // 4096):
        a(f's_cmp_ge_u32 s{sT}, s{sT+1}')
        a(f's_cbranch_scc1 {L}_filled')
        a(f'buffer_store_dwordx4 v[{TMP+4}:{TMP+7}], v{TMP}, {WS}, s{sT} offen')
        a(f's_add_u32 s{sT}, s{sT}, 4096')
    a(f'{L}_filled:')
    assert filln % 4096 == 0 or True
    a(f's_mul_i32 s{sT}, s{sQ}, 14336')
    a(f's_add_u32 s{sT}, s{sT}, {MEMG_OFF + MEMF_STEP}')
    a(f's_mov_b32 s{sT+1}, {MEMG_OFF + MEMG_SZ}')
    for it in range(4):
        a(f's_cmp_ge_u32 s{sT}, s{sT+1}')
        a(f's_cbranch_scc1 {L}_filled2')
        a(f'v_add_u32 v{TMP+1}, s{sT}, v{TMP}')
        a(f's_add_u32 s{sT+2}, s{sT}, {14336 - it*4096}')
        a(f's_min_u32 s{sT+2}, s{sT+2}, s{sT+1}')
        a(f'v_cmp_gt_u32 vcc, s{sT+2}, v{TMP+1}')
        a(f's_and_saveexec_b64 s[{sT+4}:{sT+5}], vcc')
        a(f's_cbranch_execz {L}_f2s{it}')
        a(f'buffer_store_dwordx4 v[{TMP+4}:{TMP+7}], v{TMP+1}, {WS}, 0 offen')
        a(f'{L}_f2s{it}:')
        a(f's_mov_b64 exec, s[{sT+4}:{sT+5}]')
        a(f's_add_u32 s{sT}, s{sT}, 4096')
    a(f'{L}_filled2:')
    for r in range(4): a(f'v_mov_b32 v{TMP+8+r}, 0')
    a(f's_lshl_b32 s{sT}, s{sQ}, 11')
    a(f's_add_u32 s{sT}, s{sT}, {FLAG_OFF}')
    a(f'v_cmp_gt_u32 vcc, 2048, v{TMP}')
    a(f's_and_saveexec_b64 s[{sT+4}:{sT+5}], vcc')
    a(f's_cbranch_execz {L}_flz')
    a(f'buffer_store_dwordx4 v[{TMP+8}:{TMP+11}], v{TMP}, {WS}, s{sT} offen')
    a(f'{L}_flz:')
    a(f's_mov_b64 exec, s[{sT+4}:{sT+5}]')
    a(f's_cmp_lg_u32 s{sQ}, 0')
    a(f's_cbranch_scc1 {L}_exit')
    for rnd in range(2):
        a(f'v_add_u32 v{TMP+1}, {256*rnd}, v0')
        a(f'v_and_b32 v{TMP+2}, 7, v{TMP+1}')
        a(f'v_mul_u32_u24 v{TMP+2}, 896, v{TMP+2}')
        a(f'v_lshrrev_b32 v{TMP+3}, 3, v{TMP+1}')
        a(f'v_lshl_add_u32 v{TMP+2}, v{TMP+3}, 4, v{TMP+2}')
        a(f'v_lshlrev_b32 v{TMP+1}, 4, v{TMP+1}')
        a(f'v_cmp_gt_u32 vcc, 7168, v{TMP+1}')
        a(f's_and_saveexec_b64 s[{sT+2}:{sT+3}], vcc')
        a(f's_cbranch_execz {L}_m0skip{rnd}')
        a(f'buffer_load_dwordx4 v[{TMP+4}:{TMP+7}], v{TMP+2}, s[{M0_}:{M0_+3}], 0 offen')
        a('s_waitcnt vmcnt(0)')
        a(f's_mov_b32 s{sT}, {MEMF_OFF}')
        a(f'buffer_store_dwordx4 v[{TMP+4}:{TMP+7}], v{TMP+1}, {WS}, s{sT} offen')
        a(f's_mov_b32 s{sT}, {MEMG_OFF}')
        a(f'buffer_store_dwordx4 v[{TMP+4}:{TMP+7}], v{TMP+1}, {WS}, s{sT} offen')
        a(f'{L}_m0skip{rnd}:')
        a(f's_mov_b64 exec, s[{sT+2}:{sT+3}]')
    a(f'{L}_exit:')
    if tl:
        a('s_waitcnt vmcnt(0)')
        a('s_memrealtime s[82:83]')
        a('s_waitcnt lgkmcnt(0)')
        a('s_lshl_b32 s90, s2, 3')
        a(f's_add_u32 s90, s90, {TS_OFF + 0xA0000}')
        a('v_mov_b32 v4, s80'); a('v_mov_b32 v5, s82'); a('v_mov_b32 v10, 0')
        a('s_mov_b64 exec, 1')
        a('buffer_store_dwordx2 v[4:5], v10, s[4:7], s90 offen')
        a('s_waitcnt vmcnt(0)')
    a(f'{L}_exit2:')
    a('s_endpgm')

if __name__ == '__main__':
    a = Asm(); emit_prep(a)
    txt = assemble_file([('prep_kernel', 256, 256, 92160)], [('prep_kernel', a.text(), 512, 256)])
    open('prep.s', 'w').write(txt)
    import subprocess
    r = subprocess.run(['clang', '-x', 'assembler', '-target', 'amdgcn-amd-amdhsa', '-mcpu=gfx950', '-c', 'prep.s', '-o', 'prep.o'], capture_output=True, text=True)
    print(r.returncode, r.stderr[:3000], len(txt.splitlines()))
    print((P_OFF+P_SZ-MEMF_OFF-MEMF_STEP), (P_OFF+P_SZ-MEMF_OFF-MEMF_STEP) % 4096, (MEMF_OFF+MEMF_STEP) % 16)
```
